```python
import torch

def _softmax(x, axis=-1):
    return torch.softmax(x, dim=axis)
def _gelu(x):
    return torch.nn.functional.gelu(x, approximate="tanh")
def _silu(x):
    return torch.nn.functional.silu(x)
def _sigmoid(x):
    return torch.sigmoid(x)
def _layernorm(x, axis=-1, eps=1e-5):
    m = x.mean(dim=axis, keepdim=True)
    v = x.var(dim=axis, keepdim=True, unbiased=False)
    return (x - m) / torch.sqrt(v + eps)
def _scatter_add(tgt, idx, src, axis=0):
    return tgt.clone().index_add_(axis, idx, src)
def _segment_sum(src, seg, n):
    out = torch.zeros((n,) + src.shape[1:], dtype=src.dtype)
    return out.index_add_(0, seg, src)
def _pad(x, pw):
    flat = tuple(v for pair in reversed(pw) for v in pair)
    return torch.nn.functional.pad(x, flat)

kernel_name = 'sequential_preLN__ssm_conv_h3__mixer_channel_mlp__prompt'

def setup_inputs():

    _w = (lambda a: (lambda t: t.to(torch.bfloat16) if t.is_floating_point() else t)(torch.as_tensor(a)))
    def _A_setup():
        B, S, D = 1, 2048, 640
        ks = 4
        return {
            "q": _w((lambda *s: torch.randn(*s, dtype=torch.bfloat16) * 0.05)(B, S, D)),
            "k": _w((lambda *s: torch.randn(*s, dtype=torch.bfloat16) * 0.2)(B, S, D)),
            "v": _w((lambda *s: torch.randn(*s, dtype=torch.bfloat16) * 0.2)(B, S, D)),
            "shift_k": _w((lambda *s: torch.randn(*s, dtype=torch.bfloat16) * 0.2)(D, ks) * 0.5),
            "ssm_k": _w((lambda *s: torch.randn(*s, dtype=torch.bfloat16) * 0.8)(D, S) * (1.0 / S ** 0.5)),
            "ssm_D": _w((lambda *s: torch.randn(*s, dtype=torch.bfloat16) * 0.2)(D)),
        }
    _A_in = _A_setup()

    def _B_setup():
        B, S, D, F = 1, 2048, 640, 1728
        return {
            "x": _w((lambda *s: torch.randn(*s, dtype=torch.bfloat16) * 0.05)(B, S, D)),
            "w1": _w((lambda *s: torch.randn(*s, dtype=torch.bfloat16) * 0.8)(D, F) * (D ** -0.5)),
            "b1": _w((lambda *s: torch.randn(*s, dtype=torch.bfloat16) * 0.4)(F)),
            "w2": _w((lambda *s: torch.randn(*s, dtype=torch.bfloat16) * 0.05)(F, D) * (F ** -0.5)),
            "b2": _w((lambda *s: torch.randn(*s, dtype=torch.bfloat16) * 0.05)(D)),
        }
    _B_in = _B_setup()

    return {
        "A_q": _A_in["q"],
        "A_k": _A_in["k"],
        "A_v": _A_in["v"],
        "A_shift_k": _A_in["shift_k"],
        "A_ssm_k": _A_in["ssm_k"],
        "A_ssm_D": _A_in["ssm_D"],
        "B_x": _B_in["x"],
        "B_w1": _B_in["w1"],
        "B_b1": _B_in["b1"],
        "B_w2": _B_in["w2"],
        "B_b2": _B_in["b2"],
    }

def reference(A_q, A_k, A_v, A_shift_k, A_ssm_k, A_ssm_D, B_x, B_w1, B_b1, B_w2, B_b2):
    def _A_ref(q, k, v, shift_k, ssm_k, ssm_D):
        B, S, D = q.shape
        ks = shift_k.shape[-1]
        k_pad = _pad(k, ((0, 0), (ks - 1, 0), (0, 0)))
        k_shift = torch.zeros_like(k)
        for t in range(ks):
            k_shift = k_shift + k_pad[:, t:t + S, :] * shift_k[:, ks - 1 - t][None, None, :]
        kv = k_shift * v
        L = 2 * S
        kv_pad = _pad(kv, ((0, 0), (0, S), (0, 0)))
        kf_pad = _pad(ssm_k, ((0, 0), (0, S)))
        kv_f = (lambda x, axes=(-2,-1): torch.fft.rfft2(x.float(), dim=axes))(kv_pad[:, None, :, :], axes=(1, 2))
        kf_f = (lambda x, axes=(-2,-1): torch.fft.rfft2(x.float(), dim=axes))(kf_pad[:, None, :], axes=(1, 2))
        kf_f = (lambda x, *d: x.permute(*d))(kf_f, 1, 2, 0)
        y_f = kv_f * kf_f[None, :, :, :]
        y = (lambda x, s, axes=(-2,-1): torch.fft.irfft2(x, s=s, dim=axes).to(torch.bfloat16))(y_f, (1, L), axes=(1, 2))[:, 0, :S, :]
        y = y + kv * ssm_D[None, None, :]
        return q * y

    def _B_ref(x, w1, b1, w2, b2):
        y = _layernorm(x, axis=-1)
        h = _gelu(torch.einsum("bsd,df->bsf", y, w1) + b1)
        return torch.einsum("bsf,fd->bsd", h, w2) + b2

    x = A_q
    h = x + _A_ref(_layernorm(x, axis=-1), A_k, A_v, A_shift_k, A_ssm_k, A_ssm_D)
    h2 = h + _B_ref(_layernorm(h, axis=-1), B_w1, B_b1, B_w2, B_b2)
    return h2
```

```python
import re

REG_RE = re.compile(r"\b([vas])(\d+)\b|\b([vas])\[(\d+):(\d+)\]|\b(vcc|exec|m0|vcc_lo|vcc_hi|exec_lo|exec_hi)\b")


def v(i, n=1):
    return f"v{i}" if n == 1 else f"v[{i}:{i + n - 1}]"


def a(i, n=1):
    return f"a{i}" if n == 1 else f"a[{i}:{i + n - 1}]"


def s(i, n=1):
    return f"s{i}" if n == 1 else f"s[{i}:{i + n - 1}]"


def r(i, n=1):
    if i < 256:
        assert i + n <= 256, (i, n)
        return v(i, n)
    return a(i - 256, n)


def parse_regs(tok):
    out = []
    for m in REG_RE.finditer(tok):
        if m.group(1):
            out.append((m.group(1), int(m.group(2))))
        elif m.group(3):
            out += [(m.group(3), k) for k in range(int(m.group(4)), int(m.group(5)) + 1)]
        else:
            nm = m.group(6)
            out.append(("x", nm.split("_")[0]))
    return out


TRANS = ("v_exp_f32", "v_log_f32", "v_rcp_f32", "v_rsq_f32", "v_sqrt_f32", "v_sin_f32", "v_cos_f32")
S_NODST = ("s_cmp", "s_waitcnt", "s_barrier", "s_nop", "s_branch", "s_cbranch", "s_sleep", "s_setprio",
           "s_endpgm", "s_bitcmp")


class Ins:
    __slots__ = ("text", "op", "kind", "reads", "writes", "tok", "passes", "srcc", "wide_store", "pseudo", "arg",
                 "ab")

    def __init__(self, text, tok=None, pseudo=None, arg=None):
        self.text = text
        self.tok = tok
        self.pseudo = pseudo
        self.arg = arg
        self.reads = set()
        self.writes = set()
        self.kind = "pseudo"
        self.op = ""
        self.passes = 0
        self.srcc = set()
        self.ab = set()
        self.wide_store = set()
        if pseudo is None:
            self._parse()

    def _parse(self):
        t = self.text.split(";")[0].strip()
        parts = t.split(None, 1)
        op = self.op = parts[0]
        rest = parts[1] if len(parts) > 1 else ""
        ops, depth, cur = [], 0, ""
        for ch in rest:
            if ch in "[(":
                depth += 1
            if ch in "])":
                depth -= 1
            if ch == "," and depth == 0:
                ops.append(cur.strip())
                cur = ""
            else:
                cur += ch
        if cur.strip():
            ops.append(cur.strip())
        regs = [parse_regs(o) for o in ops]
        flat = lambda xs: set(x for l in xs for x in l)
        if op.startswith("v_mfma"):
            self.kind = "mfma"
            self.writes = set(regs[0])
            self.ab = flat(regs[1:3])
            self.srcc = set(regs[3])
            self.reads = self.ab | self.srcc
            self.passes = 8 if "32x32" in op else 4
        elif op.startswith("v_"):
            self.kind = "trans" if op.startswith(TRANS) else "valu"
            self.writes = set(regs[0])
            self.reads = flat(regs[1:])
            if op.startswith(("v_fmac", "v_dot2c", "v_writelane")) or "_dpp" in op:
                self.reads |= self.writes
            if "_swap" in op:
                self.reads = self.writes = flat(regs)
            if op.startswith("v_cndmask") and len(ops) == 3:
                self.reads.add(("x", "vcc"))
            if op.startswith(("v_add_co", "v_sub_co", "v_addc_co")):
                self.writes = flat(regs[:2])
                self.reads = flat(regs[2:])
            self.reads.add(("x", "exec"))
        elif op.startswith("ds_"):
            self.kind = "ds"
            if op.startswith(("ds_read", "ds_bpermute", "ds_permute", "ds_swizzle")) or "_rtn" in op:
                self.writes = set(regs[0])
                self.reads = flat(regs[1:])
            else:
                self.reads = flat(regs)
        elif op.startswith(("buffer_", "global_")):
            self.kind = "vmem"
            mods = rest.split()
            is_lds = "lds" in mods or "_lds_" in op
            if is_lds:
                self.reads = flat(regs) | {("x", "m0")}
            elif "_load" in op:
                self.writes = set(regs[0])
                self.reads = flat(regs[1:])
            elif "_atomic" in op and "sc0" in mods:
                self.writes = set(regs[0])
                self.reads = flat(regs) if op.startswith("buffer") else flat(regs[1:])
            else:
                self.reads = flat(regs)
                if op.endswith(("x3", "x4")) and "_store" in op:
                    self.wide_store = set(regs[0] if op.startswith("buffer") else regs[1])
        elif op.startswith(("s_load", "s_memtime", "s_memrealtime", "s_buffer_load")):
            self.kind = "smem"
            self.writes = set(regs[0])
            self.reads = flat(regs[1:])
        elif op.startswith("s_"):
            self.kind = "salu"
            if op.startswith(S_NODST):
                self.reads = flat(regs)
            else:
                self.writes = set(regs[0])
                self.reads = flat(regs[1:])
                if op.startswith(("s_addk", "s_mulk", "s_cmov")):
                    self.reads |= self.writes
                if "saveexec" in op:
                    self.writes.add(("x", "exec"))
                    self.reads.add(("x", "exec"))
            if op.startswith("s_cbranch_vcc"):
                self.reads.add(("x", "vcc"))
        else:
            raise ValueError("unknown op: " + self.text)


class Prog:
    def __init__(self):
        self.ins = []
        self.ntok = 0

    def e(self, text, tok=None):
        i = Ins(text, tok)
        self.ins.append(i)
        return i

    def tok(self):
        self.ntok += 1
        return self.ntok

    def add(self, items):
        for it in items:
            self.ins.append(it if isinstance(it, Ins) else Ins(it))

    def label(self, name):
        self.ins.append(Ins(name + ":", pseudo="label"))

    def raw(self, text):
        self.ins.append(Ins(text, pseudo="raw"))

    def comment(self, text):
        self.ins.append(Ins("; " + text, pseudo="raw"))

    def wait(self, tok):
        self.ins.append(wait(tok))

    def wait_all(self, vm=True, lgkm=True):
        self.ins.append(wait_all(vm, lgkm))

    def save(self, name):
        self.ins.append(Ins("", pseudo="save", arg=name))

    def restore(self, name):
        self.ins.append(Ins("", pseudo="restore", arg=name))

    def reset(self):
        self.ins.append(Ins("", pseudo="reset"))


def wait(tok):
    return Ins("", pseudo="wait", arg=tok)


def wait_all(vm=True, lgkm=True):
    return Ins("", pseudo="waitall", arg=(vm, lgkm))


LG_AGE = 14


class Stats:
    def __init__(self):
        self.nops = 0
        self.waits = 0
        self.n = 0


def finalize(prog, verbose=False):
    out = []
    vm, lg = [], []
    saved = {}
    hist = []
    slot = [0]
    st = Stats()
    done_toks = set()

    def emit(text, states=1, ins=None):
        out.append(text)
        if ins is not None:
            hist.append((ins, slot[0]))
            if len(hist) > 40:
                del hist[0]
        slot[0] += states

    def do_wait(nvm, nlg):
        parts = []
        if nvm is not None:
            nvm = min(nvm, 63)
            for w in vm[: max(0, len(vm) - nvm)]:
                done_toks.add(w[1])
            del vm[: max(0, len(vm) - nvm)]
            parts.append(f"vmcnt({nvm})")
        if nlg is not None:
            if any(x[2] for x in lg):
                nlg = 0
            nlg = min(nlg, 15)
            for w in lg[: max(0, len(lg) - nlg)]:
                done_toks.add(w[1])
            del lg[: max(0, len(lg) - nlg)]
            parts.append(f"lgkmcnt({nlg})")
        if parts:
            emit("s_waitcnt " + " ".join(parts))
            st.waits += 1

    def need(q, pred):
        n = None
        for k, w in enumerate(q):
            if pred(w):
                n = len(q) - 1 - k
        return n

    def pad(n):
        while n > 0:
            k = min(n, 16)
            emit(f"s_nop {k - 1}", states=k)
            st.nops += k
            n -= k

    def hazard_need(i):
        worst = 0
        for p, ps in hist:
            dist = slot[0] - ps - 1
            req = 0
            if p.kind == "mfma":
                big = p.passes == 8
                if i is None:
                    req = 12 if big else 8
                elif i.kind == "mfma":
                    if p.writes & i.ab:
                        req = 12 if big else 8
                    elif p.writes & i.srcc:
                        if not (p.writes == i.srcc and p.passes == i.passes):
                            req = 10 if big else 6
                    elif p.writes & i.writes:
                        req = 10 if big else 6
                elif i.kind in ("valu", "trans", "ds", "vmem"):
                    if p.writes & (i.reads | i.writes):
                        req = 12 if big else 8
                    if i.kind in ("valu", "trans") and p.srcc & i.writes:
                        req = max(req, 7 if big else 3)
            elif p.kind in ("valu", "trans"):
                pw_v = {x for x in p.writes if x[0] in "va"}
                pw_s = {x for x in p.writes if x[0] == "s" or x == ("x", "vcc")}
                if i is None:
                    req = 5 if pw_s else 3
                else:
                    if i.kind == "mfma" and pw_v & i.reads:
                        req = 2
                    if p.op.startswith("v_dot") and pw_v & (i.reads | i.writes):
                        chain = i.op == p.op and i.writes == p.writes and i.text.count(i.text.split()[1].rstrip(",")) == 2
                        if not chain:
                            req = max(req, 3)
                    if i.kind in ("valu", "trans"):
                        if p.kind == "trans" and i.kind == "valu" and pw_v & i.reads:
                            req = max(req, 1)
                        if ("_dpp" in i.op or "permlane" in i.op) and pw_v & i.reads:
                            req = max(req, 2)
                        if i.op.startswith(("v_readlane", "v_readfirstlane")) and pw_v & i.reads:
                            req = max(req, 1)
                        if pw_s & i.reads:
                            req = max(req, 4 if i.op.startswith(("v_readlane", "v_writelane")) else 2)
                        if ("sdwa" in p.op or "op_sel:" in p.text) and pw_v & (i.reads | i.writes):
                            req = max(req, 1)
                    if i.kind == "vmem" and pw_s & i.reads:
                        req = max(req, 5)
                    if i.kind in ("salu", "smem") and pw_s & i.reads:
                        req = max(req, 1)
                    if ("x", "exec") in p.writes:
                        req = max(req, 5)
            elif p.kind == "salu":
                if ("x", "m0") in p.writes and (i is None or (i.kind == "vmem" and ("x", "m0") in i.reads)):
                    req = 1
            elif p.kind == "vmem":
                if p.wide_store and (i is None or p.wide_store & i.writes):
                    req = 2
            worst = max(worst, req - dist)
        return worst

    for i in prog.ins:
        if i.pseudo == "raw":
            out.append(i.text)
            continue
        if i.pseudo == "label":
            pad(hazard_need(None))
            out.append(i.text)
            continue
        if i.pseudo == "save":
            saved[i.arg] = (list(vm), list(lg), set(done_toks))
            continue
        if i.pseudo == "restore":
            vm[:], lg[:] = list(saved[i.arg][0]), list(saved[i.arg][1])
            done_toks.clear()
            done_toks.update(saved[i.arg][2])
            hist.clear()
            continue
        if i.pseudo == "reset":
            for w in vm + lg:
                done_toks.add(w[1])
            vm.clear()
            lg.clear()
            continue
        if i.pseudo == "wait":
            toks = i.arg if isinstance(i.arg, (list, tuple, set)) else [i.arg]
            for t in toks:
                assert t in done_toks or any(w[1] == t for w in vm + lg), f"wait on unknown token {t}"
            do_wait(need(vm, lambda w: w[1] in toks), need(lg, lambda w: w[1] in toks))
            continue
        if i.pseudo == "waitall":
            do_wait(0 if i.arg[0] else None, 0 if i.arg[1] else None)
            continue
        touched = i.reads | i.writes
        nvm = need(vm, lambda w: w[0] & touched)
        nlg = need(lg, lambda w: w[0] & touched)
        if nlg is not None:
            old = need(lg, lambda w: slot[0] - w[3] >= LG_AGE)
            if old is not None:
                nlg = min(nlg, old)
        do_wait(nvm, nlg)
        if i.op.startswith(("s_branch", "s_cbranch")):
            pad(max(hazard_need(None) - 1, hazard_need(i)))
        else:
            pad(hazard_need(i))
        states = 1
        if i.op == "s_nop":
            states = int(i.text.split()[1], 0) + 1
        emit(i.text, states, i)
        st.n += 1
        if i.op == "s_waitcnt":
            raise ValueError("use wait()/wait_all()")
        if i.kind == "vmem" and not i.op.startswith(("buffer_wbl2", "buffer_inv")):
            vm.append((i.writes, i.tok, False, slot[0]))
        elif i.kind == "ds":
            lg.append((i.writes, i.tok, False, slot[0]))
        elif i.kind == "smem":
            lg.append((i.writes, i.tok, True, slot[0]))
    if verbose:
        print(f"; instr {st.n} waits {st.waits} nop-states {st.nops}")
    lines = []
    for t in out:
        lines.append(t if t.endswith(":") or t.startswith((".", ";")) else "    " + t)
    return "\n".join(lines) + "\n", st


def merge(main, fill, start=0, end=None, per=None):
    main = list(main)
    fill = list(fill)
    end = len(main) if end is None else end
    n = end - start
    out = []
    k = 0
    for j, m in enumerate(main):
        out.append(m)
        if start <= j < end:
            if per is None:
                want = (len(fill) * (j - start + 1) + n - 1) // n
            else:
                want = min(len(fill), k + per)
                if j == end - 1:
                    want = len(fill)
            while k < want:
                out.append(fill[k])
                k += 1
    assert k == len(fill)
    return out


def flat(x):
    out = []
    for i in x:
        if isinstance(i, (list, tuple)):
            out += flat(i)
        else:
            out.append(i)
    return out
```

```python
import sys
from dsl import *

NAME = "sequential_preLN__ssm_conv_h3__mixer_channel_mlp__prompt"

UT, XT, HB, HID, W2P, ST, CTR = 0, 0x280000, 0x500000, 0x780000, 0xE80000, 0x10B0000, 0x10C0000
STAMP = 0x1100000
WS_BYTES = 0x1200000
CTR3 = CTR
L_T, L_U, L_X, L_ST, L_HA, L_MISC = 0, 66560, 84992, 101376, 117760, 158720
L_KT = 66560
L_HBUF = [L_HA, 0, 40960, L_HA]
L_RES = 81920
L_RED = [0, 21504]
LDS_BYTES = 163840
R_Q, R_K, R_V, R_SSM, R_W1, R_W2, R_OUT, R_WS, R_SH, R_D, R_B1, R_B2, R_DBG = range(4, 56, 4)
S_W, S_XCD, S_IDX, S_CW, S_G, S_DS, S_M, S_T = range(56, 64)
S_TO = 64
S_A, S_B, S_C, S_E, S_F, S_H = 65, 66, 67, 68, 69, 70
S_K0, S_K1, S_HI, S_PL, S_PH = 71, 72, 73, 74, 75
S_MK = 76
S_HSO, S_HID, S_CT, S_OSO = 84, 85, 86, 87
S_STMP = 90
srd = lambda b: s(b, 4)
SIZES = {R_Q: 2621440, R_K: 2621440, R_V: 2621440, R_SSM: 2621440, R_W1: 2211840, R_W2: 2211840, R_OUT: 2621440,
         R_WS: WS_BYTES, R_SH: 5120, R_D: 1280, R_B1: 3456, R_B2: 1280, R_DBG: 256}
KARG = {R_Q: 0, R_K: 8, R_V: 16, R_SH: 24, R_SSM: 32, R_D: 40, R_W1: 56, R_B1: 64, R_W2: 72, R_B2: 80, R_OUT: 88,
        R_DBG: 96, R_WS: 104}

STAMPS = False
A0 = 256


def f32(x):
    import struct
    return "0x%08x" % struct.unpack("<I", struct.pack("<f", x))[0]


def stamp(p, k):
    if not STAMPS:
        return
    p.e(f"s_memrealtime {s(S_STMP, 2)}")
    p.e(f"v_writelane_b32 {v(STAMP_V[0])}, {s(S_STMP)}, {k}")


def stamp_flush(p):
    if not STAMPS:
        return
    p.e(f"s_lshl_b32 {s(S_A)}, s2, 2")
    p.e(f"s_add_u32 {s(S_A)}, {s(S_A)}, {s(S_W)}")
    p.e(f"s_lshl_b32 {s(S_A)}, {s(S_A)}, 8")
    p.e(f"s_add_u32 {s(S_A)}, {s(S_A)}, {STAMP + STAMP_BASE[0]}")
    p.e("v_lshlrev_b32 v2, 2, v1")
    p.e(f"buffer_store_dword {v(STAMP_V[0])}, v2, {srd(R_WS)}, {s(S_A)} offen")


STAMP_BASE = [0]
STAMP_V = [255]


def prologue(p, end):
    p.e("s_cmp_ge_u32 s2, 256")
    p.e(f"s_cbranch_scc1 {end}")
    for b, o in KARG.items():
        p.e(f"s_load_dwordx2 {s(b, 2)}, s[0:1], {o}")
    if STAMPS:
        p.e(f"v_mov_b32 {v(STAMP_V[0])}, 0")
    p.e("v_and_b32 v1, 63, v0")
    p.e("v_lshrrev_b32 v2, 6, v0")
    for b, n in SIZES.items():
        p.e(f"s_mov_b32 {s(b + 2)}, {n}")
        p.e(f"s_mov_b32 {s(b + 3)}, 0x20000")
    p.e(f"v_readfirstlane_b32 {s(S_W)}, v2")
    p.e(f"s_and_b32 {s(S_XCD)}, s2, 7")
    p.e(f"s_lshr_b32 {s(S_IDX)}, s2, 3")
    p.e(f"s_mul_i32 {s(S_CW)}, {s(S_XCD)}, 20")
    p.e(f"s_add_u32 {s(S_CW)}, {s(S_CW)}, {s(S_IDX)}")
    p.e(f"s_lshr_b32 {s(S_G)}, {s(S_XCD)}, 1")
    p.e(f"s_lshl_b32 {s(S_G)}, {s(S_G)}, 2")
    p.e(f"s_lshr_b32 {s(S_A)}, {s(S_IDX)}, 3")
    p.e(f"s_add_u32 {s(S_G)}, {s(S_G)}, {s(S_A)}")
    p.e(f"s_and_b32 {s(S_DS)}, {s(S_IDX)}, 7")
    p.e(f"s_and_b32 {s(S_T)}, {s(S_XCD)}, 1")
    p.e(f"s_lshl_b32 {s(S_M)}, {s(S_T)}, 3")
    p.e(f"s_add_u32 {s(S_M)}, {s(S_M)}, {s(S_DS)}")
    p.e(f"s_mov_b32 {s(S_TO)}, 0x20000")
    p.e(f"s_mov_b32 {s(S_HI)}, 0xffff0000")
    p.e(f"s_mov_b32 {s(S_PL)}, 0x05040100")
    p.e(f"s_mov_b32 {s(S_PH)}, 0x07060302")
    p.wait_all(vm=False)
    stamp(p, 0)


def dma(p, vaddr, rs, soff, tok=None, mods=""):
    return Ins(f"buffer_load_dwordx4 {v(vaddr)}, {srd(rs)}, {soff} offen{mods} lds", tok)


_lbl = [0]


def poll(p, vtmp, voff, soff, target):
    _lbl[0] += 1
    L, Dn = f"L_poll{_lbl[0]}", f"L_polld{_lbl[0]}"
    p.label(L)
    p.e(f"buffer_load_dword {v(vtmp)}, {v(voff)}, {srd(R_WS)}, {soff} offen sc1")
    p.e(f"v_cmp_gt_u32 vcc, {target}, {v(vtmp)}")
    p.e(f"s_cbranch_vccz {Dn}")
    p.e(f"s_sub_u32 {s(S_TO)}, {s(S_TO)}, 1")
    p.e(f"s_cbranch_scc0 {L}")
    p.e(f"s_mov_b32 {s(S_TO)}, 0")
    p.label(Dn)


def p0_conv(p):
    VA, VH, VK, VU, VX = 2, 3, 4, 5, 6
    W, WP, KR, VR, KF, U, VF, OUT = 8, 16, 32, 54, 70, 114, 146, 152
    p.e(f"v_lshrrev_b32 v7, 3, v1")
    p.e(f"v_mul_u32_u24 v7, 1280, v7")
    p.e(f"v_and_b32 {v(VA)}, 7, v1")
    p.e(f"v_lshl_add_u32 {v(VA)}, {v(VA)}, 4, v7")
    p.e(f"s_lshr_b32 {s(S_E)}, {s(S_CW)}, 4")
    p.e(f"s_and_b32 {s(S_F)}, {s(S_CW)}, 15")
    p.e(f"s_mul_i32 {s(S_A)}, {s(S_F)}, {128 * 1280}")
    p.e(f"s_lshl_b32 {s(S_B)}, {s(S_E)}, 7")
    p.e(f"s_add_u32 {s(S_A)}, {s(S_A)}, {s(S_B)}")
    p.e(f"s_sub_u32 {s(S_B)}, {s(S_A)}, 10240")
    p.e(f"v_add_u32 {v(VH)}, {s(S_B)}, {v(VA)}")
    p.e(f"s_mul_i32 {s(S_B)}, {s(S_W)}, {4 * 10240}")
    p.e(f"s_add_u32 {s(S_A)}, {s(S_A)}, {s(S_B)}")
    p.e(f"s_mul_i32 {s(S_C)}, {s(S_W)}, {4 * 1040}")
    p.e(f"s_cmp_lg_u32 {s(S_W)}, 0")
    p.e("s_cbranch_scc1 L_nohalo")
    p.e(f"s_mov_b32 m0, {L_KT}")
    p.e("s_mov_b32 exec_lo, 0")
    p.add([dma(p, VH, R_K, 0)])
    p.e("s_mov_b32 exec_lo, -1")
    p.label("L_nohalo")
    p.reset()
    tkv, tx = p.tok(), p.tok()
    for rs, lb, tk in ((R_K, L_KT + 1040, tkv), (R_V, L_KT + 17680, tkv), (R_Q, L_KT + 34320, tx)):
        if rs == R_K:
            p.e(f"v_lshrrev_b32 v7, 4, v1")
            p.e(f"v_lshl_add_u32 v7, {s(S_W)}, 2, v7")
            p.e(f"v_lshlrev_b32 {v(VU)}, 5, v7")
            p.e(f"s_lshl_b32 {s(S_B)}, {s(S_E)}, 9")
            p.e(f"buffer_load_dwordx4 {v(W, 4)}, {v(VU)}, {srd(R_SH)}, {s(S_B)} offen")
            p.e(f"buffer_load_dwordx4 {v(W + 4, 4)}, {v(VU)}, {srd(R_SH)}, {s(S_B)} offen offset:16")
        for o in range(4):
            p.e(f"s_add_u32 m0, {s(S_C)}, {lb + 1040 * o}")
            p.e(f"s_add_u32 {s(S_B)}, {s(S_A)}, {10240 * o}")
            p.add([dma(p, VA, rs, s(S_B), tk)])
    p.e(f"v_and_b32 {v(VH)}, 15, v1")
    p.e(f"v_mul_u32_u24 {v(VK)}, 1040, {v(VH)}")
    p.e(f"v_lshl_add_u32 {v(VK)}, v7, 3, {v(VK)}")
    p.e(f"v_add_u32 {v(VK)}, {L_KT}, {v(VK)}")
    p.e(f"v_lshlrev_b32 {v(VH)}, 4, {v(VH)}")
    p.e(f"v_lshl_add_u32 {v(VX)}, v7, 14, {v(VH)}")
    p.e(f"v_sub_u32 {v(VH)}, 240, {v(VH)}")
    p.e(f"v_lshl_add_u32 {v(VU)}, v7, 14, {v(VH)}")
    for ch in range(4):
        for j in range(4):
            dst = WP + (ch >> 1) * 8 + j * 2 + (ch & 1)
            src = W + 2 * ch + (j >> 1)
            p.e(f"v_and_b32 {v(dst)}, {s(S_HI)}, {v(src)}" if j & 1 else f"v_lshlrev_b32 {v(dst)}, 16, {v(src)}")
    p.wait(tkv)
    p.e("s_barrier")
    stamp(p, 1)
    for i in range(11):
        off = 640 + 128 * i if i < 3 else 1040 + 128 * (i - 3)
        p.e(f"ds_read_b64 {v(KR + 2 * i, 2)}, {v(VK)} offset:{off}")
        if i >= 3:
            p.e(f"ds_read_b64 {v(VR + 2 * (i - 3), 2)}, {v(VK)} offset:{17680 + 128 * (i - 3)}")
    p.e(f"s_lshl_b32 {s(S_A)}, {s(S_E)}, 18")
    p.e(f"s_lshl_b32 {s(S_B)}, {s(S_F)}, 8")
    p.e(f"s_add_u32 {s(S_H)}, {s(S_A)}, {s(S_B)}")
    p.e(f"s_sub_u32 {s(S_A)}, {s(S_A)}, {s(S_B)}")
    def unpack(dst, src):
        p.e(f"v_lshlrev_b32 {v(dst)}, 16, {v(src)}")
        p.e(f"v_and_b32 {v(dst + 1)}, {s(S_HI)}, {v(src)}")
    for i in range(3):
        for pr in range(2):
            unpack(KF + 4 * i + 2 * pr, KR + 2 * i + pr)
    for t in range(8):
        for pr in range(2):
            unpack(KF + 4 * (t + 3) + 2 * pr, KR + 2 * (t + 3) + pr)
            unpack(VF + 2 * pr, VR + 2 * t + pr)
        for j in (3, 2, 1, 0):
            for pr in range(2):
                d, kf, w = v(U + 4 * t + 2 * pr, 2), v(KF + 4 * (t + 3 - j) + 2 * pr, 2), v(WP + 8 * pr + 2 * j, 2)
                p.e(f"v_pk_mul_f32 {d}, {kf}, {w}" if j == 3 else f"v_pk_fma_f32 {d}, {kf}, {w}, {d}")
        for pr in range(2):
            d = v(U + 4 * t + 2 * pr, 2)
            p.e(f"v_pk_mul_f32 {d}, {d}, {v(VF + 2 * pr, 2)}")
    tu = p.tok()
    for ch in range(4):
        for i in range(4):
            p.e(f"v_cvt_pk_bf16_f32 {v(OUT + 4 * ch + i)}, {v(U + 4 * (7 - 2 * i) + ch)}, {v(U + 4 * (6 - 2 * i) + ch)}")
        p.e(f"s_add_u32 {s(S_B)}, {s(S_A)}, {UT + 3840 + 4096 * ch}")
        p.e(f"buffer_store_dwordx4 {v(OUT + 4 * ch, 4)}, {v(VU)}, {srd(R_WS)}, {s(S_B)} offen sc1", tu)
    stamp(p, 2)
    p.wait(tx)
    p.e("s_barrier")
    for t in range(8):
        p.e(f"ds_read_b64 {v(KR + 2 * t, 2)}, {v(VK)} offset:{34320 + 128 * t}")
    for ch in range(4):
        for i in range(4):
            p.e(f"v_perm_b32 {v(U + 4 * ch + i)}, {v(KR + 2 * (2 * i + 1) + (ch >> 1))}, {v(KR + 2 * (2 * i) + (ch >> 1))}, {s(S_PH if ch & 1 else S_PL)}")
        p.e(f"s_add_u32 {s(S_B)}, {s(S_H)}, {XT + 4096 * ch}")
        p.e(f"buffer_store_dwordx4 {v(U + 4 * ch, 4)}, {v(VX)}, {srd(R_WS)}, {s(S_B)} offen sc1")
    stamp(p, 3)


def p0_stats(p):
    X, SU, SQ = 8, 48, 50
    p.e(f"s_sub_u32 {s(S_A)}, {s(S_IDX)}, 20")
    p.e(f"s_lshr_b32 {s(S_E)}, {s(S_A)}, 1")
    p.e(f"s_and_b32 {s(S_F)}, {s(S_A)}, 1")
    p.e(f"s_lshl_b32 {s(S_A)}, {s(S_XCD)}, 8")
    p.e(f"s_lshl_b32 {s(S_B)}, {s(S_F)}, 7")
    p.e(f"s_add_u32 {s(S_A)}, {s(S_A)}, {s(S_B)}")
    p.e(f"s_lshl_b32 {s(S_B)}, {s(S_E)}, 2")
    p.e(f"s_add_u32 {s(S_A)}, {s(S_A)}, {s(S_B)}")
    p.e(f"s_lshl_b32 {s(S_B)}, {s(S_W)}, 5")
    p.e(f"s_add_u32 {s(S_A)}, {s(S_A)}, {s(S_B)}")
    p.e(f"s_mul_i32 {s(S_A)}, {s(S_A)}, 1280")
    p.e("v_lshrrev_b32 v2, 5, v1")
    p.e("v_bfe_u32 v3, v1, 3, 2")
    p.e("v_lshl_add_u32 v2, v2, 4, v3")
    p.e("v_mul_u32_u24 v2, 1280, v2")
    p.e("v_and_b32 v3, 7, v1")
    p.e("v_lshl_add_u32 v2, v3, 4, v2")
    for i in range(10):
        p.e(f"buffer_load_dwordx4 {v(X + 4 * i, 4)}, v2, {srd(R_Q)}, {s(S_A)} offen offset:{128 * i}")
    p.e(f"s_mov_b32 {s(S_B)}, 0x3f803f80")
    for k in range(4):
        p.e(f"v_mov_b32 {v(SU + k)}, 0")
    p.e("v_lshrrev_b32 v4, 3, v0")
    p.e("v_lshlrev_b32 v4, 2, v4")
    p.e("v_bfe_u32 v5, v1, 2, 1")
    p.e("v_lshl_add_u32 v4, v5, 7, v4")
    p.e(f"v_cmp_eq_u32 {s(S_MK, 2)}, 0, v5")
    for i in range(40):
        p.e(f"v_dot2_f32_bf16 {v(SU + (i & 1))}, {v(X + i)}, {s(S_B)}, {v(SU + (i & 1))}")
        p.e(f"v_dot2_f32_bf16 {v(SQ + (i & 1))}, {v(X + i)}, {v(X + i)}, {v(SQ + (i & 1))}")
    p.e(f"v_add_f32 {v(SU)}, {v(SU)}, {v(SU + 1)}")
    p.e(f"v_add_f32 {v(SQ)}, {v(SQ)}, {v(SQ + 1)}")
    for ctl in ("quad_perm:[1,0,3,2]", "quad_perm:[2,3,0,1]", "row_half_mirror"):
        for x in (SU, SQ):
            p.e(f"v_add_f32_dpp {v(x)}, {v(x)}, {v(x)} {ctl} row_mask:0xf bank_mask:0xf")
    p.e(f"v_mul_f32 {v(SU)}, {f32(1 / 640)}, {v(SU)}")
    p.e(f"v_mul_f32 {v(SQ)}, {f32(1 / 640)}, {v(SQ)}")
    p.e(f"v_fma_f32 {v(SQ)}, -{v(SU)}, {v(SU)}, {v(SQ)}")
    p.e(f"v_max_f32 {v(SQ)}, 0, {v(SQ)}")
    p.e(f"v_add_f32 {v(SQ)}, {f32(1e-5)}, {v(SQ)}")
    p.e(f"v_rsq_f32 {v(SQ)}, {v(SQ)}")
    p.e(f"v_mul_f32 {v(SU)}, -{v(SU)}, {v(SQ)}".replace("v_mul_f32", "v_mul_f32_e64"))
    p.e(f"v_cndmask_b32 {v(SU)}, {v(SU)}, {v(SQ)}, {s(S_MK, 2)}")
    p.e(f"ds_write_b32 v4, {v(SU)} offset:0")
    p.wait_all(vm=False)
    p.e("s_barrier")
    p.e(f"s_cmp_lg_u32 {s(S_W)}, 0")
    p.e("s_cbranch_scc1 L_stats_done")
    p.e("v_lshlrev_b32 v4, 2, v1")
    p.e(f"ds_read_b32 {v(SU)}, v4")
    p.e("v_lshrrev_b32 v5, 5, v1")
    p.e("v_and_b32 v4, 127, v4")
    p.e("v_lshl_add_u32 v4, v5, 10, v4")
    p.e(f"s_lshl_b32 {s(S_A)}, {s(S_XCD)}, 11")
    p.e(f"s_lshl_b32 {s(S_B)}, {s(S_E)}, 8")
    p.e(f"s_add_u32 {s(S_A)}, {s(S_A)}, {s(S_B)}")
    p.e(f"s_lshl_b32 {s(S_B)}, {s(S_F)}, 7")
    p.e(f"s_add_u32 {s(S_A)}, {s(S_A)}, {s(S_B)}")
    p.e(f"s_add_u32 {s(S_A)}, {s(S_A)}, {ST}")
    p.e(f"buffer_store_dword {v(SU)}, v4, {srd(R_WS)}, {s(S_A)} offen sc1")
    p.wait_all()
    p.label("L_stats_done")


def p0_prep(p):
    VO, VT, VZ, VS, FR = 8, 14, 15, 16, 20
    p.e(f"s_sub_u32 {s(S_E)}, {s(S_IDX)}, 28")
    for i in range(5):
        p.e(f"v_add_u32 v2, {64 * i}, v1")
        p.e("v_mul_u32_u24 v3, 6554, v2")
        p.e("v_lshrrev_b32 v3, 16, v3")
        p.e("v_mul_u32_u24 v4, 10, v3")
        p.e("v_sub_u32 v4, v2, v4")
        p.e("v_mul_u32_u24 v3, 1280, v3")
        p.e(f"v_lshl_add_u32 {v(VO + i)}, v4, 4, v3")
    p.e(f"s_mul_i32 {s(S_C)}, {s(S_W)}, 20480")
    p.e(f"s_mul_i32 {s(S_F)}, {s(S_XCD)}, 160")
    p.e(f"s_mul_i32 {s(S_A)}, {s(S_E)}, 12")
    p.e(f"s_add_u32 {s(S_A)}, {s(S_A)}, {s(S_W)}")
    p.e(f"s_mul_i32 {s(S_A)}, {s(S_A)}, {32 * 1280}")
    p.e(f"s_add_u32 {s(S_A)}, {s(S_A)}, {s(S_F)}")
    toks = []
    for k in range(3):
        toks.append(p.tok())
        p.e(f"s_add_u32 {s(S_B)}, {s(S_A)}, {k * 4 * 32 * 1280}")
        for i in range(5):
            p.e(f"s_add_u32 m0, {s(S_C)}, {5120 * k + 1024 * i}")
            p.add([dma(p, VO + i, R_W2, s(S_B), toks[k])])
    toks.append(p.tok())
    p.e(f"s_and_b32 {s(S_H)}, {s(S_W)}, 1")
    p.e(f"s_lshl_b32 {s(S_A)}, {s(S_E)}, 1")
    p.e(f"s_add_u32 {s(S_A)}, {s(S_A)}, {s(S_H)}")
    p.e(f"s_mul_i32 {s(S_A)}, {s(S_A)}, {24 * 1280}")
    p.e(f"s_add_u32 {s(S_A)}, {s(S_A)}, {s(S_F)}")
    p.e(f"s_add_u32 {s(S_A)}, {s(S_A)}, {1536 * 1280}")
    for i in range(4):
        p.e(f"s_add_u32 m0, {s(S_C)}, {5120 * 3 + 1024 * i}")
        p.add([dma(p, VO + i, R_W2, s(S_A), toks[3])])
    for k in range(4):
        p.e(f"v_mov_b32 {v(FR + k)}, 0")
    p.e(f"v_lshl_add_u32 v2, v1, 4, {s(S_C)}")
    p.e(f"ds_write_b128 v2, {v(FR, 4)} offset:{5120 * 3 + 4096}")
    p.e("v_lshrrev_b32 v2, 5, v1")
    p.e("v_bfe_u32 v3, v1, 2, 3")
    p.e("v_lshl_add_u32 v3, v2, 4, v3")
    p.e("v_mul_u32_u24 v3, 160, v3")
    p.e("v_and_b32 v4, 3, v1")
    p.e(f"v_lshl_add_u32 v4, v4, 3, {s(S_C)}")
    p.e(f"v_add_u32 {v(VT)}, v3, v4")
    p.e("v_lshrrev_b32 v3, 2, v1")
    p.e("v_mul_u32_u24 v3, 160, v3")
    p.e("v_add_u32 v5, 1920, v3")
    p.e("v_mov_b32 v6, 4096")
    p.e("v_cmp_gt_u32 vcc, 48, v1")
    p.e("v_cndmask_b32 v3, v6, v3, vcc")
    p.e("v_cndmask_b32 v5, v6, v5, vcc")
    p.e(f"v_add_u32 {v(VZ)}, v3, v4")
    p.e(f"v_add_u32 v7, v5, v4")
    p.e(f"v_lshlrev_b32 {v(VS)}, 4, v1")
    p.e(f"s_lshl_b32 {s(S_A)}, {s(S_XCD)}, 2")
    p.e(f"s_add_u32 {s(S_A)}, {s(S_A)}, {s(S_E)}")
    p.e(f"s_mul_i32 {s(S_A)}, {s(S_A)}, {70 * 1024}")
    p.e(f"s_add_u32 {s(S_A)}, {s(S_A)}, {W2P}")
    p.e(f"s_mul_i32 {s(S_F)}, {s(S_W)}, 5120")
    p.e(f"s_mul_i32 {s(S_H)}, {s(S_H)}, 5120")
    p.e(f"s_add_u32 {s(S_F)}, {s(S_F)}, {s(S_A)}")
    p.e(f"s_add_u32 {s(S_H)}, {s(S_H)}, {s(S_A)}")
    for k in range(4):
        p.wait(toks[k])
        fr = FR + 20 * k
        for tl in range(5):
            for aa in range(2):
                if k < 3:
                    p.e(f"ds_read_b64_tr_b16 {v(fr + 4 * tl + 2 * aa, 2)}, {v(VT)} offset:{5120 * k + 1280 * aa + 32 * tl}")
                else:
                    p.e(f"ds_read_b64_tr_b16 {v(fr + 4 * tl + 2 * aa, 2)}, {v(7 if aa else VZ)} offset:{5120 * 3 + 32 * tl}")
        for tl in range(5):
            if k < 3:
                p.e(f"s_add_u32 {s(S_B)}, {s(S_F)}, {(20 * k + tl) * 1024}")
            else:
                p.e(f"s_add_u32 {s(S_B)}, {s(S_H)}, {(60 + tl) * 1024}")
            p.e(f"buffer_store_dwordx4 {v(fr + 4 * tl, 4)}, {v(VS)}, {srd(R_WS)}, {s(S_B)} offen sc1")


C_ACC, C_FR, C_AD, C_TMP = 8, 40, 128, 132
C_VT, C_VP, C_VX, C_VS, C_VH = 2, 3, 4, 5, 6


def conv_load_ssm(p, raw):
    p.e(f"s_lshl_b32 {s(S_A)}, {s(S_CW)}, 2")
    p.e(f"s_add_u32 {s(S_A)}, {s(S_A)}, {s(S_W)}")
    p.e(f"s_lshl_b32 {s(S_B)}, {s(S_A)}, 12")
    p.e(f"v_lshlrev_b32 {v(raw + 16)}, 4, v1")
    for q in range(4):
        p.e(f"buffer_load_dwordx4 {v(raw + 4 * q, 4)}, {v(raw + 16)}, {srd(R_SSM)}, {s(S_B)} offen offset:{1024 * q}")
    p.e(f"s_lshl_b32 {s(S_B)}, {s(S_A)}, 1")
    p.e(f"v_mov_b32 {v(raw + 18)}, 0")
    p.e(f"buffer_load_ushort {v(raw + 17)}, {v(raw + 18)}, {srd(R_D)}, {s(S_B)} offen")


def conv_build_t(p, raw, tmp):
    va = tmp
    p.e(f"s_mul_i32 {s(S_A)}, {s(S_W)}, 16640")
    p.e(f"v_lshl_add_u32 {v(va)}, v1, 4, {s(S_A)}")
    z = tmp + 2
    for k in range(4):
        p.e(f"v_mov_b32 {v(z + k)}, 0")
    p.e(f"v_bfe_u32 {v(tmp + 1)}, v1, 1, 2")
    p.e(f"v_mul_u32_u24 {v(tmp + 1)}, 4160, {v(tmp + 1)}")
    p.e(f"v_and_b32 {v(tmp + 6)}, 1, v1")
    p.e(f"v_lshl_add_u32 {v(tmp + 1)}, {v(tmp + 6)}, 4, {v(tmp + 1)}")
    p.e(f"v_add_u32 {v(tmp + 1)}, {s(S_A)}, {v(tmp + 1)}")
    p.e(f"ds_write_b128 {v(tmp + 1)}, {v(z, 4)} offset:{L_T}")
    for q in range(4):
        d = raw + 4 * q
        b = tmp + 8 + 14 * (q & 1)
        Q1, Q2, Q3, DM2 = b, b + 4, b + 8, b + 12
        if q == 0:
            p.e(f"v_mov_b32 {v(Q2)}, 0")
            p.e(f"v_mov_b32 {v(DM2)}, 0")
        else:
            p.e(f"v_mov_b32_dpp {v(Q2)}, {v(d - 1)} wave_ror:1 row_mask:0xf bank_mask:0xf")
            p.e(f"v_mov_b32_dpp {v(DM2)}, {v(d - 2)} wave_ror:1 row_mask:0xf bank_mask:0xf")
        p.e(f"ds_write_b128 {v(va)}, {v(d, 4)} offset:{L_T + 32 + 1024 * q}")
        for k in range(3):
            p.e(f"v_mov_b32 {v(Q2 + 1 + k)}, {v(d + k)}")
        p.e(f"v_mov_b32_dpp {v(Q2)}, {v(d + 3)} wave_shr:1 row_mask:0xf bank_mask:0xf")
        p.e(f"v_mov_b32_dpp {v(DM2)}, {v(d + 2)} wave_shr:1 row_mask:0xf bank_mask:0xf")
        for k in range(1, 4):
            p.e(f"v_alignbit_b32 {v(Q1 + k)}, {v(d + k)}, {v(d + k - 1)}, 16")
        p.e(f"ds_write_b128 {v(va)}, {v(Q2, 4)} offset:{L_T + 2 * 4160 + 32 + 1024 * q}")
        p.e(f"v_alignbit_b32 {v(Q1)}, {v(d)}, {v(Q2)}, 16")
        p.e(f"v_alignbit_b32 {v(Q3)}, {v(Q2)}, {v(DM2)}, 16")
        for k in range(3):
            p.e(f"v_mov_b32 {v(Q3 + 1 + k)}, {v(Q1 + k)}")
        p.e(f"ds_write_b128 {v(va)}, {v(Q1, 4)} offset:{L_T + 4160 + 32 + 1024 * q}")
        p.e(f"ds_write_b128 {v(va)}, {v(Q3, 4)} offset:{L_T + 3 * 4160 + 32 + 1024 * q}")
    t0, t1, t2 = tmp + 1, tmp + 6, tmp + 7
    p.e(f"v_and_b32 {v(t0)}, 15, v1")
    p.e(f"v_lshrrev_b32 {v(t1)}, 4, v1")
    p.e(f"v_lshl_add_u32 {v(t0)}, {v(t1)}, 3, {v(t0)}")
    p.e(f"v_sub_u32 {v(t0)}, 15, {v(t0)}")
    p.e(f"v_and_b32 {v(t1)}, 1, {v(t0)}")
    p.e(f"v_lshlrev_b32 {v(t1)}, 4, {v(t1)}")
    p.e(f"v_lshlrev_b32 {v(t2)}, {v(t1)}, {v(raw + 17)}")
    p.e(f"v_ashrrev_i32 {v(t0)}, 1, {v(t0)}")
    for k in range(4):
        p.e(f"v_cmp_eq_u32 vcc, {k}, {v(t0)}")
        p.e(f"v_cndmask_b32 {v(C_AD + k)}, 0, {v(t2)}, vcc")


def conv_addr(p):
    t0, t1, t2 = C_TMP, C_TMP + 1, C_TMP + 2
    p.e(f"v_and_b32 {v(t0)}, 15, v1")
    p.e(f"v_lshrrev_b32 {v(t1)}, 4, v1")
    p.e(f"v_sub_u32 {v(t2)}, 15, {v(t0)}")
    p.e(f"v_and_b32 {v(C_VT)}, 3, {v(t2)}")
    p.e(f"v_mul_u32_u24 {v(C_VT)}, 4160, {v(C_VT)}")
    p.e(f"v_lshl_add_u32 {v(C_VT)}, {v(t1)}, 4, {v(C_VT)}")
    p.e(f"v_lshrrev_b32 {v(t2)}, 2, {v(t2)}")
    p.e(f"v_lshlrev_b32 {v(t2)}, 3, {v(t2)}")
    p.e(f"v_sub_u32 {v(C_VT)}, {v(C_VT)}, {v(t2)}")
    p.e(f"s_mul_i32 {s(S_A)}, {s(S_W)}, 16640")
    p.e(f"s_add_u32 {s(S_A)}, {s(S_A)}, {L_T + 32}")
    p.e(f"v_add_u32 {v(C_VT)}, {s(S_A)}, {v(C_VT)}")
    p.e(f"s_mul_i32 {s(S_A)}, {s(S_W)}, 4608")
    p.e(f"s_add_u32 {s(S_A)}, {s(S_A)}, {L_U + 480}")
    p.e(f"v_lshl_add_u32 {v(C_VP)}, {v(t1)}, 4, {s(S_A)}")
    p.e(f"v_lshlrev_b32 {v(t2)}, 5, {v(t0)}")
    p.e(f"v_sub_u32 {v(C_VP)}, {v(C_VP)}, {v(t2)}")
    p.e(f"s_lshl_b32 {s(S_A)}, {s(S_W)}, 12")
    p.e(f"s_add_u32 {s(S_A)}, {s(S_A)}, {L_X}")
    p.e(f"v_lshl_add_u32 {v(C_VX)}, {v(t1)}, 3, {v(t2)}")
    p.e(f"v_add_u32 {v(C_VX)}, {s(S_A)}, {v(C_VX)}")
    p.e(f"v_lshlrev_b32 v7, 4, v1")
    p.e(f"v_add_u32 {v(C_VS)}, {L_ST}, v7")
    p.e(f"s_and_b32 {s(S_A)}, {s(S_CW)}, 1")
    p.e(f"s_lshl_b32 {s(S_A)}, {s(S_A)}, 1")
    p.e(f"v_and_b32 {v(t2)}, 3, v1")
    p.e(f"v_xor_b32 {v(t2)}, {s(S_A)}, {v(t2)}")
    p.e(f"v_lshrrev_b32 {v(C_VH)}, 2, v1")
    p.e(f"v_mul_u32_u24 {v(C_VH)}, 163840, {v(C_VH)}")
    p.e(f"v_lshl_add_u32 {v(C_VH)}, {v(t2)}, 4, {v(C_VH)}")
    p.e(f"s_lshl_b32 {s(S_HSO)}, {s(S_CW)}, 2")
    p.e(f"s_add_u32 {s(S_HSO)}, {s(S_HSO)}, {s(S_W)}")
    p.e(f"s_lshl_b32 {s(S_HSO)}, {s(S_HSO)}, 6")
    p.e(f"s_add_u32 {s(S_HSO)}, {s(S_HSO)}, {HB}")


def conv_load_u(p):
    tu, tx = p.tok(), p.tok()
    p.e(f"s_lshl_b32 {s(S_A)}, {s(S_CW)}, 2")
    p.e(f"s_add_u32 {s(S_A)}, {s(S_A)}, {s(S_W)}")
    p.e(f"s_lshl_b32 {s(S_A)}, {s(S_A)}, 12")
    p.e(f"s_mul_i32 {s(S_B)}, {s(S_W)}, 4608")
    p.e(f"s_add_u32 m0, {s(S_B)}, {L_U}")
    for q in (3, 2, 1, 0):
        p.add([dma(p, 7, R_WS, s(S_A), tu, f" offset:{1024 * q} sc1")])
    z = C_TMP + 4
    for k in range(2):
        p.e(f"v_mov_b32 {v(z + k)}, 0")
    p.e(f"s_add_u32 {s(S_B)}, {s(S_B)}, {L_U + 4096}")
    p.e(f"v_lshl_add_u32 {v(z + 2)}, v1, 3, {s(S_B)}")
    p.e(f"ds_write_b64 {v(z + 2)}, {v(z, 2)}")
    p.e(f"s_lshl_b32 {s(S_B)}, {s(S_W)}, 12")
    p.e(f"s_add_u32 m0, {s(S_B)}, {L_X}")
    p.e(f"s_add_u32 {s(S_A)}, {s(S_A)}, {XT}")
    for q in range(4):
        p.add([dma(p, 7, R_WS, s(S_A), tx, f" offset:{1024 * q} sc1")])
    p.e(f"s_add_u32 m0, {s(S_B)}, {L_ST}")
    p.e(f"s_add_u32 {s(S_A)}, {s(S_B)}, {ST}")
    for q in range(4):
        p.add([dma(p, 7, R_WS, s(S_A), tx, f" offset:{1024 * q} sc1")])
    return tu, tx


def conv_epi(p, c, tmp, tok):
    pre, post = [], []
    XR, RR, Q, XF, O = tmp, tmp + 2, tmp + 8, tmp + 16, tmp + 24
    RR = tmp + 4
    for jj in range(2):
        j = 2 * c + jj
        pre.append(f"ds_read_b64 {v(XR, 2)}, {v(C_VX)} offset:{512 * j}")
        pre.append(f"ds_read_b128 {v(RR, 4)}, {v(C_VS)} offset:{2048 * j}")
        pre.append(f"ds_read_b128 {v(Q + 4 * jj, 4)}, {v(C_VS)} offset:{2048 * j + 1024}")
        pre += [None] * 6
        for k in range(4):
            pre.append(f"v_and_b32 {v(XF + 4 * jj + k)}, {s(S_HI)}, {v(XR + (k >> 1))}" if k & 1 else
                       f"v_lshlrev_b32 {v(XF + 4 * jj + k)}, 16, {v(XR + (k >> 1))}")
        for k in range(4):
            pre.append(f"v_fmac_f32 {v(Q + 4 * jj + k)}, {v(XF + 4 * jj + k)}, {v(RR + k)}")
        for k in range(4):
            post.append(f"v_fmac_f32 {v(XF + 4 * jj + k)}, {v(Q + 4 * jj + k)}, {v(C_ACC + 4 * j + k)}")
        for k in range(2):
            post.append(f"v_cvt_pk_bf16_f32 {v(O + 2 * jj + k)}, {v(XF + 4 * jj + 2 * k)}, {v(XF + 4 * jj + 2 * k + 1)}")
    post.append(f"s_add_u32 {s(S_A)}, {s(S_HSO)}, {40960 * c}")
    post.append(Ins(f"buffer_store_dwordx4 {v(O, 4)}, {v(C_VH)}, {srd(R_WS)}, {s(S_A)} offen sc1", tok))
    return pre, post


CONV_STAGES = [
    [(m, j) for j in range(4) for m in range(4) if m + j <= 3],
    [(m, j) for j in range(4) for m in range(8) if 4 <= m + j <= 7],
    [(m, j) for j in range(4, 8) for m in range(4) if m + j <= 7],
]


def conv_steps():
    steps = []
    inited = set()
    k = 0
    for si, pairs in enumerate(CONV_STAGES):
        for c in range(8):
            base = C_FR + 44 * (k & 1)
            loc, loads, mf = {}, [], []
            def get(kind, i):
                if (kind, i) not in loc:
                    rg = base + 4 * len(loc)
                    loc[(kind, i)] = rg
                    if kind == "T":
                        loads.append(f"ds_read_b64 {v(rg, 2)}, {v(C_VT)} offset:{512 * i + 64 * c}")
                        loads.append(f"ds_read_b64 {v(rg + 2, 2)}, {v(C_VT)} offset:{512 * i + 64 * c + 8}")
                    else:
                        loads.append(f"ds_read_b128 {v(rg, 4)}, {v(C_VP)} offset:{512 * (7 - i) + 64 * c}")
                return loc[(kind, i)]
            ms = sorted(set(m for m, _ in pairs))
            js = sorted(set(j for _, j in pairs))
            order = sorted(pairs, key=lambda x: (max(ms.index(x[0]) / len(ms), js.index(x[1]) / len(js)), x[0] + x[1]))
            for m, j in order:
                pj = get("P", j)
                tm = get("T", m)
                acc = v(C_ACC + 4 * (m + j), 4)
                if c == 0 and m == 0:
                    mf.append(f"v_mfma_f32_16x16x32_bf16 {acc}, {v(C_AD, 4)}, {v(pj, 4)}, {acc if j in inited else 0}")
                    inited.add(j)
                mf.append(f"v_mfma_f32_16x16x32_bf16 {acc}, {v(tm, 4)}, {v(pj, 4)}, {acc if m + j in inited else 0}")
                inited.add(m + j)
            assert len(loc) <= 11
            steps.append((si, loads, mf))
            k += 1
    return steps


def conv_main(p, fillers, toks):
    steps = conv_steps()
    p.add(steps[0][1])
    pos = {k: 0 for k in fillers}
    nst = {si: sum(len(x[2]) for x in steps if x[0] == si) for si in range(len(CONV_STAGES))}
    seen = {si: 0 for si in nst}
    for k, (si, loads, mf) in enumerate(steps):
        nxt = list(steps[k + 1][1]) if k + 1 < len(steps) else []
        fl = fillers.get(si, [])
        for gi, m in enumerate(mf):
            p.e(m)
            seen[si] += 1
            room = 2
            while nxt and room:
                p.e(nxt.pop(0))
                room -= 1
            want = (len(fl) * seen[si] + nst[si] - 1) // nst[si]
            last = seen[si] == nst[si]
            while si in pos and pos[si] < len(fl) and (last or (room > 0 and pos[si] < want + 8)):
                it = fl[pos[si]]
                pos[si] += 1
                room -= 1
                if it is not None:
                    p.add([it])
        assert not nxt


G_ACC, G_BF, G_B1, G_CS, G_TMP, G_PK = [16, 32], 48, 64, 80, 96, 108
G_VA, G_VB, G_VD, G_VSH, G_VST, G_R, G_MR, G_VRR, G_VRW, G_VC, G_X0, G_X1 = 2, 3, 4, 5, 6, 7, 8, 9, 10, 11, 12, 13
G_ONE = 14
W2LOC = [A0 + 160 + 4 * i for i in range(24)] + [116 + 4 * i for i in range(35)] + [A0 + 56 + 4 * i for i in range(11)]
HIDBUF = [A0 + 0, A0 + 100]


def w1_stage(p, w3):
    t0, t1, vo, vt, vf, on = 96, 97, 98, 99, 100, 104
    n = 20 if w3 else 40
    p.e(f"s_mul_i32 {s(S_C)}, {s(S_W)}, 10240")
    p.e(f"s_add_u32 {s(S_C)}, {s(S_C)}, {L_HA}")
    if not w3:
        p.e(f"v_lshrrev_b32 {v(t0)}, 2, v1")
        p.e(f"v_and_b32 {v(t1)}, 3, v1")
        p.e(f"s_mul_i32 {s(S_A)}, {s(S_M)}, 3")
        p.e(f"s_add_u32 {s(S_A)}, {s(S_A)}, {s(S_W)}")
        p.e(f"s_lshl_b32 {s(S_A)}, {s(S_A)}, 6")
        rows = 16
    else:
        p.e(f"v_lshrrev_b32 {v(t0)}, 1, v1")
        p.e(f"v_and_b32 {v(t1)}, 1, v1")
        p.e(f"s_mul_i32 {s(S_A)}, {s(S_M)}, 24")
        p.e(f"s_add_u32 {s(S_A)}, {s(S_A)}, 3072")
        rows = 32
    p.e(f"v_mul_u32_u24 {v(t0)}, 3456, {v(t0)}")
    p.e(f"v_lshl_add_u32 {v(vo)}, {v(t1)}, 4, {v(t0)}")
    toks = [p.tok() for _ in range(n)]
    def issue(i):
        return [f"s_add_u32 m0, {s(S_C)}, {1024 * (i % 10)}", f"s_add_u32 {s(S_B)}, {s(S_A)}, {rows * 3456 * i}",
                dma(p, vo, R_W1, s(S_B), toks[i])]
    for i in range(10):
        p.add(issue(i))
    if not w3:
        p.e(f"v_lshrrev_b32 {v(t0)}, 5, v1")
        p.e(f"v_lshlrev_b32 {v(t0)}, 3, {v(t0)}")
        for q in range(4):
            p.e(f"buffer_load_dwordx2 {v(G_BF + 2 * q, 2)}, {v(t0)}, {srd(R_B1)}, {s(S_A)} offen offset:{16 * q}")
        p.e(f"v_bfe_u32 {v(t1)}, v1, 2, 2")
        p.e(f"v_add_u32 {v(t1)}, {v(t0)}, {v(t1)}")
        p.e(f"v_lshlrev_b32 {v(vt)}, 6, {v(t1)}")
        p.e(f"v_bfe_u32 {v(t1)}, v1, 4, 1")
        p.e(f"v_lshl_add_u32 {v(vt)}, {v(t1)}, 5, {v(vt)}")
        astep = 256
    else:
        p.e(f"v_lshrrev_b32 {v(t0)}, 4, v1")
        p.e(f"v_lshlrev_b32 {v(t0)}, 3, {v(t0)}")
        p.e(f"buffer_load_dwordx2 {v(G_BF, 2)}, {v(t0)}, {srd(R_B1)}, {s(S_A)} offen")
        p.e(f"v_lshrrev_b32 {v(t1)}, 2, v1")
        p.e(f"v_lshlrev_b32 {v(vt)}, 5, {v(t1)}")
        p.e(f"v_and_b32 {v(t1)}, 31, v1")
        p.e(f"v_lshl_add_u32 {v(vf)}, {v(t1)}, 5, {s(S_C)}")
        p.e(f"v_mov_b32 {v(vf + 2)}, 0x3f80")
        p.e(f"v_mov_b32 {v(vf + 3)}, 0")
        astep = 512
    p.e(f"v_and_b32 {v(t1)}, 3, v1")
    p.e(f"v_lshl_add_u32 {v(vt)}, {v(t1)}, 3, {v(vt)}")
    p.e(f"v_add_u32 {v(vt)}, {s(S_C)}, {v(vt)}")
    for k in range(4):
        p.e(f"v_mov_b32 {v(on + k)}, 0x3f803f80")
    rtok = [p.tok() for _ in range(n)]
    for i in range(n + 1):
        if i < n:
            p.wait(toks[i])
            if w3:
                p.e(f"ds_write_b64 {v(vf)}, {v(vf + 2, 2)} offset:{1024 * (i % 10) + 24}")
            for aa in range(2):
                p.e(f"ds_read_b64_tr_b16 {a(4 * i + 2 * aa, 2)}, {v(vt)} offset:{1024 * (i % 10) + astep * aa}", rtok[i])
        if i >= 1:
            k = i - 1
            p.wait(rtok[k])
            if k + 10 < n:
                p.add(issue(k + 10))
            if w3:
                p.e(f"v_mfma_f32_16x16x32_bf16 {v(G_CS, 4)}, {a(4 * k, 4)}, {v(on, 4)}, {v(G_CS, 4) if k else 0}")
            else:
                p.e(f"v_mfma_f32_32x32x16_bf16 {v(G_CS, 16)}, {a(4 * k, 4)}, {v(on, 4)}, {v(G_CS, 16) if k else 0}")
    for k in range(4 if w3 else 16):
        src = G_BF + (k >> 1)
        p.e(f"v_and_b32 {v(G_B1 + k)}, {s(S_HI)}, {v(src)}" if k & 1 else f"v_lshlrev_b32 {v(G_B1 + k)}, 16, {v(src)}")


def w2_load(i):
    out = []
    if i % 4 == 0 or True:
        out.append(f"s_add_u32 {s(S_B)}, {s(S_F)}, {(i & ~3) * 1024}")
    out.append(f"buffer_load_dwordx4 {r(W2LOC[i], 4)}, {v(G_VD)}, {srd(R_WS)}, {s(S_B)} offen offset:{(i & 3) * 1024} sc1")
    return out


def gemm_addr(p, w3):
    t0, t1, t2 = G_TMP, G_TMP + 1, G_TMP + 2
    p.e(f"v_lshlrev_b32 {v(G_VD)}, 4, v1")
    p.e(f"s_lshl_b32 {s(S_F)}, {s(S_DS)}, 2")
    p.e(f"s_add_u32 {s(S_F)}, {s(S_F)}, {s(S_W)}")
    p.e(f"s_mul_i32 {s(S_F)}, {s(S_F)}, {70 * 1024}")
    p.e(f"s_add_u32 {s(S_F)}, {s(S_F)}, {W2P}")
    p.e(f"s_mov_b32 {s(S_K0)}, {f32(-2.302208198)}")
    p.e(f"s_mov_b32 {s(S_K1)}, {f32(-0.1029432397)}")
    p.e(f"v_mov_b32 {v(G_ONE)}, 1")
    p.e(f"v_mov_b32 {v(G_VC)}, 0")
    p.e(f"v_min_u32 {v(G_X1)}, 1, v1")
    p.e(f"v_lshlrev_b32 {v(G_X1)}, 30, {v(G_X1)}")
    p.e(f"v_mov_b32 v15, {s(S_K0)}")
    p.e(f"v_and_b32 {v(t2)}, 3, v1")
    p.e(f"v_lshlrev_b32 {v(t2)}, 3, {v(t2)}")
    p.e(f"v_bfe_u32 {v(t1)}, v1, 4, 1")
    p.e(f"s_mul_i32 {s(S_HID)}, {s(S_G)}, {4 * 114688}")
    p.e(f"s_add_u32 {s(S_HID)}, {s(S_HID)}, {HID}")
    p.e(f"s_lshr_b32 {s(S_A)}, {s(S_M)}, 2")
    p.e(f"s_lshl_b32 {s(S_CT)}, {s(S_G)}, 11")
    p.e(f"s_add_u32 {s(S_CT)}, {s(S_CT)}, {CTR3}")
    p.e(f"s_lshl_b32 {s(S_B)}, {s(S_A)}, 7")
    p.e(f"s_add_u32 {s(S_E)}, {s(S_CT)}, {s(S_B)}")
    p.e(f"s_lshl_b32 {s(S_B)}, {s(S_W)}, 7")
    p.e(f"s_add_u32 {s(S_CT)}, {s(S_CT)}, {s(S_B)}")
    p.e(f"s_mul_i32 {s(S_A)}, {s(S_A)}, 14336")
    p.e(f"s_add_u32 {s(S_H)}, {s(S_HID)}, {s(S_A)}")
    p.e(f"s_and_b32 {s(S_A)}, {s(S_M)}, 3")
    if not w3:
        p.e(f"s_mul_i32 {s(S_A)}, {s(S_A)}, 3")
        p.e(f"s_add_u32 {s(S_A)}, {s(S_A)}, {s(S_W)}")
        p.e(f"s_lshl_b32 {s(S_A)}, {s(S_A)}, 10")
        p.e(f"s_add_u32 {s(S_H)}, {s(S_H)}, {s(S_A)}")
        p.e(f"v_lshrrev_b32 {v(t0)}, 5, v1")
        p.e(f"v_bfe_u32 {v(G_VA)}, v1, 2, 2")
        p.e(f"v_lshl_add_u32 {v(G_VA)}, {v(t0)}, 3, {v(G_VA)}")
        p.e(f"v_lshl_add_u32 {v(G_VA)}, {v(G_VA)}, 6, {v(t2)}")
        p.e(f"v_lshl_add_u32 {v(G_VA)}, {v(t1)}, 5, {v(G_VA)}")
        p.e(f"v_xor_b32 {v(G_VB)}, 0x120, {v(G_VA)}")
        p.e(f"v_mul_u32_u24 {v(G_VSH)}, 57344, {v(t1)}")
        p.e(f"v_lshl_add_u32 {v(G_VSH)}, {v(t0)}, 8, {v(G_VSH)}")
        p.e(f"v_and_b32 {v(t0)}, 15, v1")
        p.e(f"v_lshl_add_u32 {v(G_VSH)}, {v(t0)}, 4, {v(G_VSH)}")
        p.e(f"v_and_b32 {v(G_VST)}, 31, v1")
        p.e(f"v_lshlrev_b32 {v(G_VST)}, 3, {v(G_VST)}")
        p.e(f"v_add_u32 {v(G_VST)}, {L_MISC}, {v(G_VST)}")
        p.e(f"s_mul_i32 {s(S_A)}, {s(S_DS)}, 5")
        p.e(f"s_add_u32 {s(S_A)}, {s(S_A)}, {s(S_W)}")
        p.e(f"s_lshl_b32 {s(S_A)}, {s(S_A)}, 10")
        p.e(f"v_lshrrev_b32 {v(G_VRR)}, 2, v1")
        p.e(f"v_lshl_add_u32 {v(G_VRR)}, {v(G_VRR)}, 6, {v(t2)}")
        p.e(f"v_xor_b32 {v(t1)}, {s(S_T)}, {v(t1)}")
        p.e(f"v_lshl_add_u32 {v(G_VRR)}, {v(t1)}, 5, {v(G_VRR)}")
        p.e(f"v_add_u32 {v(G_VRR)}, {s(S_A)}, {v(G_VRR)}")
        p.e(f"v_mul_u32_u24 {v(G_VRW)}, 160, {v(t0)}")
        p.e(f"v_lshrrev_b32 {v(t1)}, 4, v1")
        p.e(f"v_lshl_add_u32 {v(G_VRW)}, {v(t1)}, 3, {v(G_VRW)}")
        p.e(f"s_lshl_b32 {s(S_A)}, {s(S_W)}, 5")
        p.e(f"s_add_u32 {s(S_A)}, {s(S_A)}, {L_RES}")
        p.e(f"v_add_u32 {v(G_VRW)}, {s(S_A)}, {v(G_VRW)}")
        regs = (G_VA, G_VB, G_VRR)
    else:
        p.e(f"s_lshl_b32 {s(S_A)}, {s(S_A)}, 9")
        p.e(f"s_add_u32 {s(S_A)}, {s(S_A)}, 12288")
        p.e(f"s_add_u32 {s(S_H)}, {s(S_H)}, {s(S_A)}")
        p.e(f"v_lshrrev_b32 {v(G_VA)}, 2, v1")
        p.e(f"v_lshl_add_u32 {v(G_VA)}, {v(G_VA)}, 6, {v(t2)}")
        p.e(f"v_lshl_add_u32 {v(G_VA)}, {v(t1)}, 5, {v(G_VA)}")
        p.e(f"v_xor_b32 {v(G_VB)}, 32, {v(G_VA)}")
        p.e(f"v_lshlrev_b32 {v(G_VSH)}, 3, v1")
        p.e(f"v_and_b32 {v(t0)}, 15, v1")
        p.e(f"v_lshlrev_b32 {v(G_VST)}, 3, {v(t0)}")
        p.e(f"v_add_u32 {v(G_VST)}, {L_MISC}, {v(G_VST)}")
        p.e(f"v_mov_b32 {v(t2)}, {L_MISC + 1024}")
        p.e(f"v_cmp_le_u32 {s(S_MK + 6, 2)}, 48, v1")
        p.e(f"v_cndmask_b32 {v(G_VRR)}, {v(t2)}, {v(G_VST)}, {s(S_MK + 6, 2)}")
        p.e(f"v_lshrrev_b32 {v(t1)}, 4, v1")
        p.e(f"v_lshrrev_b32 {v(t0)}, 2, {v(t0)}")
        p.e(f"v_cmp_eq_u32 vcc, {v(t0)}, {v(t1)}")
        p.e(f"v_cndmask_b32 {v(G_VRW)}, {v(t2)}, {v(G_VST)}, vcc")
        p.e(f"v_and_b32 {v(t0)}, 3, v1")
        for k in range(1, 4):
            p.e(f"v_cmp_eq_u32 {s(S_MK + 2 * (k - 1), 2)}, {k}, {v(t0)}")
        regs = (G_VA, G_VB)
    for x in regs:
        p.e(f"v_add_u32 {v(x)}, {L_HBUF[0]}, {v(x)}")
    p.e(f"s_lshl_b32 {s(S_A)}, {s(S_T)}, 2")
    p.e(f"s_add_u32 {s(S_A)}, {s(S_A)}, {s(S_W)}")
    p.e(f"s_mul_i32 {s(S_A)}, {s(S_A)}, 14336")
    p.e(f"s_add_u32 {s(S_HID)}, {s(S_HID)}, {s(S_A)}")
    p.e(f"s_mul_i32 {s(S_HSO)}, {s(S_G)}, 163840")
    p.e(f"s_mul_i32 {s(S_C)}, {s(S_W)}, 10240")
    p.e(f"s_add_u32 {s(S_HSO)}, {s(S_HSO)}, {s(S_C)}")
    p.e(f"s_add_u32 {s(S_HSO)}, {s(S_HSO)}, {HB}")


def h_dma(p, c, tok):
    out = []
    for i in range(10):
        if i % 4 == 0:
            out.append(f"s_add_u32 m0, {s(S_C)}, {L_HBUF[c] + 1024 * i}")
            out.append(f"s_add_u32 {s(S_B)}, {s(S_HSO)}, {40960 * c + 1024 * i}")
        out.append(dma(p, G_VD, R_WS, s(S_B), tok, f" offset:{1024 * (i % 4)} sc1"))
    return out


def hid_loads(c):
    b = HIDBUF[c & 1]
    out = []
    for st in range(12):
        x = [f"s_add_u32 {s(S_B)}, {s(S_HID)}, {114688 * c + 1024 * (st & ~3)}"]
        x.append(f"buffer_load_dwordx4 {r(b + 4 * st, 4)}, {v(G_VD)}, {srd(R_WS)}, {s(S_B)} offen offset:{1024 * (st & 3)} sc1")
        out.append(x)
    for a2 in range(2):
        x = [f"s_add_u32 {s(S_B)}, {s(S_HID)}, {114688 * c + 12288}"]
        for h in range(2):
            x.append(f"buffer_load_dwordx2 {r(b + 48 + 4 * a2 + 2 * h, 2)}, {v(G_X0)}, {srd(R_WS)}, {s(S_B)} offen offset:{512 * (2 * a2 + h)} sc1")
        out.append(x)
    return out


def ln_scale(rr, mr):
    sm, sq = rr, rr + 1
    return [f"v_mul_f32 {v(sm)}, {f32(1 / 640)}, {v(sm)}",
            f"v_mul_f32 {v(sq)}, {f32(1 / 640)}, {v(sq)}",
            f"v_fma_f32 {v(sq)}, -{v(sm)}, {v(sm)}, {v(sq)}",
            f"v_max_f32 {v(sq)}, 0, {v(sq)}",
            f"v_add_f32 {v(mr)}, {f32(1e-5)}, {v(sq)}",
            f"v_fmac_f32 {v(sq)}, {f32(1e-5)}, {v(mr)}",
            f"v_rsq_f32 {v(sq)}, {v(sq)}",
            None,
            f"v_mul_f32_e64 {v(mr)}, -{v(sm)}, {v(sq)}"]


def gelu_group(acc, idx, rs, mr, tmp):
    out = []
    t = lambda j: v(tmp + j)
    for j, k in enumerate(idx):
        out.append(f"v_fma_f32 {t(j)}, {v(mr)}, {v(G_CS + k)}, {v(G_B1 + k)}")
    for j, k in enumerate(idx):
        out.append(f"v_fma_f32 {v(acc + k)}, {v(rs)}, {v(acc + k)}, {t(j)}")
    for j, k in enumerate(idx):
        out.append(f"v_mul_f32 {t(j)}, {v(acc + k)}, {v(acc + k)}")
    for j, k in enumerate(idx):
        out.append(f"v_fma_f32 {t(j)}, {t(j)}, {s(S_K1)}, v15")
    for j, k in enumerate(idx):
        out.append(f"v_mul_f32 {t(j)}, {t(j)}, {v(acc + k)}")
    for j, k in enumerate(idx):
        out.append(f"v_exp_f32 {t(j)}, {t(j)}")
    for j, k in enumerate(idx):
        out.append(f"v_add_f32 {t(j)}, 1.0, {t(j)}")
    for j, k in enumerate(idx):
        out.append(f"v_rcp_f32 {t(j)}, {t(j)}")
    for j, k in enumerate(idx):
        out.append(f"v_mul_f32 {v(acc + k)}, {v(acc + k)}, {t(j)}")
    return out


def g1_epi(p, c, w3, tok):
    acc = G_ACC[c & 1]
    out = []
    so = 256 * (c & 1)
    SR = G_TMP + 4
    if not w3:
        out.append(f"ds_read_b64 {v(SR, 2)}, {v(G_VST)} offset:{so}")
        out += [None] * 4
        out += ln_scale(SR, SR + 2)
        for q in range(2):
            for h in range(2):
                k0 = 8 * q + 4 * h
                out += gelu_group(acc, range(k0, k0 + 4), SR + 1, SR + 2, G_TMP)
                for k in range(2):
                    out.append(f"v_cvt_pk_bf16_f32 {v(G_PK + 4 * q + 2 * h + k)}, {v(acc + k0 + 2 * k)}, {v(acc + k0 + 2 * k + 1)}")
            out.append(f"s_add_u32 {s(S_A)}, {s(S_H)}, {114688 * c}")
            out.append(Ins(f"buffer_store_dwordx4 {v(G_PK + 4 * q, 4)}, {v(G_VSH)}, {srd(R_WS)}, {s(S_A)} offen offset:{512 * q} sc1", tok))
    else:
        for t in range(2):
            out.append(f"ds_read_b64 {v(SR + 4 * t, 2)}, {v(G_VST)} offset:{so + 128 * t}")
        out += [None] * 4
        for t in range(2):
            out += ln_scale(SR + 4 * t, SR + 4 * t + 2)
            out += gelu_group(acc + 8 * t, range(4), SR + 4 * t + 1, SR + 4 * t + 2, G_TMP)
            for k in range(2):
                out.append(f"v_cvt_pk_bf16_f32 {v(G_PK + 2 * t + k)}, {v(acc + 8 * t + 2 * k)}, {v(acc + 8 * t + 2 * k + 1)}")
            for k in range(2):
                out.append(f"v_cndmask_b32 {v(G_PK + 2 * t + k)}, {v(G_PK + 2 * t + k)}, 0, {s(S_MK + 6, 2)}")
            out.append(f"s_add_u32 {s(S_A)}, {s(S_H)}, {114688 * c + 57344 * t}")
            out.append(Ins(f"buffer_store_dwordx2 {v(G_PK + 2 * t, 2)}, {v(G_VSH)}, {srd(R_WS)}, {s(S_A)} offen sc1", tok))
    return out


def g1_stats_out(c):
    acc = G_ACC[c & 1]
    out = []
    for t in range(2):
        g = acc + 8 * t + 4
        out.append(f"ds_write_b32 {v(G_VRR)}, {v(acc + 8 * t)} offset:{256 * (c & 1) + 128 * t}")
        for k in range(1, 4):
            out.append(f"v_cndmask_b32 {v(g)}, {v(g)}, {v(g + k)}, {s(S_MK + 2 * (k - 1), 2)}")
        out.append(f"ds_write_b32 {v(G_VRW)}, {v(g)} offset:{256 * (c & 1) + 128 * t + 4}")
    return out


def signal3(c, tok):
    return [wait(tok), f"s_add_u32 {s(S_A)}, {s(S_E)}, {512 * c}",
            f"buffer_atomic_add {v(G_ONE)}, {v(G_X1)}, {srd(R_WS)}, {s(S_A)} offen sc1"]


def g1_chunk(p, c, w3, head, body, tail_by_step=None):
    acc = G_ACC[c & 1]
    DEP = 3
    def reads(st):
        if not w3:
            b = G_BF + 4 * (st % 4)
            return [f"ds_read_b64_tr_b16 {v(b, 2)}, {v(G_VA)} offset:{1024 * st}",
                    f"ds_read_b64_tr_b16 {v(b + 2, 2)}, {v(G_VB)} offset:{1024 * st}"]
        ks, t = st >> 1, st & 1
        b = G_BF + 4 * (st % 4)
        va = G_VB if t else G_VA
        return [f"ds_read_b64_tr_b16 {v(b, 2)}, {v(va)} offset:{2048 * ks}",
                f"ds_read_b64_tr_b16 {v(b + 2, 2)}, {v(va)} offset:{2048 * ks + 1024}"]
    for st in range(DEP):
        p.add(reads(st))
    HB_AT = 5
    body = list(body)
    head = list(head)
    k = 0
    for st in range(40):
        b = v(G_BF + 4 * (st % 4), 4)
        rd = reads(st + DEP) if st + DEP < 40 else []
        if st < HB_AT:
            n = (len(head) + HB_AT - 1) // HB_AT
            fl = head[st * n:(st + 1) * n]
        else:
            want = (len(body) * (st - HB_AT + 1) + (38 - HB_AT) - 1) // (38 - HB_AT)
            fl = body[k:want]
            k = max(k, min(want, len(body)))
        fl = [x for x in fl if x is not None]
        if tail_by_step:
            fl = fl + tail_by_step.get(st, [])
        if not w3:
            p.e(f"v_mfma_f32_32x32x16_bf16 {v(acc, 16)}, {a(4 * st, 4)}, {b}, {v(acc, 16) if st else 0}")
            p.add(rd + fl)
        else:
            ks, t = st >> 1, st & 1
            x, g = v(acc + 8 * t, 4), v(acc + 8 * t + 4, 4)
            allf = rd + fl
            p.e(f"v_mfma_f32_16x16x32_bf16 {x}, {a(4 * ks, 4)}, {b}, {x if ks else 0}")
            p.add(allf[:len(allf) // 2])
            p.e(f"v_mfma_f32_16x16x32_bf16 {g}, {b}, {b}, {g if ks else 0}")
            p.add(allf[len(allf) // 2:])
        if st == HB_AT - 1 and c > 0:
            if w3:
                p.wait_all(vm=False)
            p.e("s_barrier")


def res_stash(c):
    T = G_TMP + 8
    return [f"ds_read_b64_tr_b16 {v(T, 2)}, {v(G_VRR)} offset:0",
            f"ds_read_b64_tr_b16 {v(T + 2, 2)}, {v(G_VRR)} offset:2048", None, None, None, None, None, None,
            f"ds_write_b64 {v(G_VRW)}, {v(T, 2)} offset:{2560 * c}",
            f"ds_write_b64 {v(G_VRW)}, {v(T + 2, 2)} offset:{2560 * c + 64}"]


def gemm1(p, w3):
    th = [p.tok() for _ in range(4)]
    ts = [p.tok() for _ in range(4)]
    p.e(f"v_lshlrev_b32 {v(G_X0)}, 3, v1")
    p.e("s_barrier")
    for c in range(3):
        p.add(h_dma(p, c, th[c]))
    for i in range(59):
        p.add(w2_load(i))
    regs = (G_VA, G_VB) if w3 else (G_VA, G_VB, G_VRR)
    for c in range(4):
        p.wait(th[c])
        p.e("s_barrier")
        stamp(p, 2 + c)
        head = g1_stats_out(c - 1) if (w3 and c) else []
        if w3 and c:
            head = [None] * 5 + head
        if not w3:
            head = res_stash(c)
        body = g1_epi(p, c - 1, w3, ts[c - 1]) if c else []
        tail = {}
        if c == 1:
            body = h_dma(p, 3, th[3]) + body
        if c >= 2:
            body = signal3(c - 2, ts[c - 2]) + body
        if c == 3:
            poll(p, G_TMP, G_VC, s(S_CT), 16)
            hl = hid_loads(0)
            seq = hl + [w2_load(i) for i in range(59, 70)]
            for k, x in enumerate(seq):
                st = 2 * k + 1 if (w3 and k < 20) else k
                tail.setdefault(min(st, 39), []).extend(x)
        g1_chunk(p, c, w3, head, body, tail)
        if c < 3:
            for x in regs:
                p.e(f"v_add_u32 {v(x)}, {(L_HBUF[c + 1] - L_HBUF[c]) & 0xffffffff}, {v(x)}")
    stamp(p, 6)
    if w3:
        p.add(g1_stats_out(3))
    p.wait_all(vm=False)
    p.e("s_barrier")
    p.add(signal3(2, ts[2]))
    p.add([x for x in g1_epi(p, 3, w3, ts[3]) if x is not None])
    stamp(p, 7)
    p.add(signal3(3, ts[3]))
    stamp(p, 8)


H_ACC, H_RD, H_SUM, H_B2, H_O = [16, 36], 56, 88, 96, 104
H_VW, H_VR, H_VRES, H_VO = 2, 3, 5, 6


def gemm2(p):
    t0, t1, t2 = H_RD, H_RD + 1, H_RD + 2
    p.e(f"v_and_b32 {v(t0)}, 15, v1")
    p.e(f"v_mul_u32_u24 {v(H_VW)}, 336, {v(t0)}")
    p.e(f"v_lshrrev_b32 {v(t0)}, 4, v1")
    p.e(f"v_lshl_add_u32 {v(H_VW)}, {v(t0)}, 4, {v(H_VW)}")
    p.e(f"s_mul_i32 {s(S_A)}, {s(S_W)}, 5376")
    p.e(f"v_add_u32 {v(H_VW)}, {s(S_A)}, {v(H_VW)}")
    p.e(f"v_min_u32 {v(t2)}, 159, v0")
    p.e(f"v_mul_u32_u24 {v(t0)}, 6554, {v(t2)}")
    p.e(f"v_lshrrev_b32 {v(t0)}, 16, {v(t0)}")
    p.e(f"v_mul_u32_u24 {v(t1)}, 10, {v(t0)}")
    p.e(f"v_sub_u32 {v(t1)}, {v(t2)}, {v(t1)}")
    p.e(f"v_mul_u32_u24 {v(H_VR)}, 336, {v(t0)}")
    p.e(f"v_lshl_add_u32 {v(H_VR)}, {v(t1)}, 5, {v(H_VR)}")
    p.e(f"v_lshlrev_b32 {v(H_VRES)}, 4, {v(t2)}")
    p.e(f"v_add_u32 {v(H_VRES)}, {L_RES}, {v(H_VRES)}")
    p.e(f"v_lshlrev_b32 {v(t1)}, 4, {v(t1)}")
    p.e(f"s_mul_i32 {s(S_A)}, {s(S_DS)}, 160")
    p.e(f"buffer_load_dwordx4 {v(H_O, 4)}, {v(t1)}, {srd(R_B2)}, {s(S_A)} offen")
    p.e(f"v_bfe_u32 {v(t2)}, {v(t0)}, 2, 1")
    p.e(f"v_lshlrev_b32 {v(H_VO)}, 8, {v(t2)}")
    p.e(f"v_lshrrev_b32 {v(t2)}, 3, {v(t0)}")
    p.e(f"v_lshl_add_u32 {v(H_VO)}, {v(t2)}, 4, {v(H_VO)}")
    p.e(f"v_and_b32 {v(t2)}, 3, {v(t0)}")
    p.e(f"v_add_u32 {v(H_VO)}, {v(t2)}, {v(H_VO)}")
    p.e(f"v_mul_u32_u24 {v(H_VO)}, 1280, {v(H_VO)}")
    p.e(f"v_add_u32 {v(H_VO)}, {v(H_VO)}, {v(t1)}")
    p.e(f"v_mov_b32 {v(t2)}, 0x40000000")
    p.e(f"v_cmp_gt_u32 vcc, 160, v0")
    p.e(f"v_cndmask_b32 {v(H_VO)}, {v(t2)}, {v(H_VO)}, vcc")
    p.e(f"s_and_b32 {s(S_B)}, {s(S_G)}, 3")
    p.e(f"s_lshl_b32 {s(S_B)}, {s(S_B)}, 1")
    p.e(f"s_add_u32 {s(S_B)}, {s(S_B)}, {s(S_T)}")
    p.e(f"s_lshl_b32 {s(S_B)}, {s(S_B)}, 5")
    p.e(f"s_and_b32 {s(S_OSO)}, {s(S_G)}, 12")
    p.e(f"s_add_u32 {s(S_OSO)}, {s(S_OSO)}, {s(S_B)}")
    p.e(f"s_mul_i32 {s(S_OSO)}, {s(S_OSO)}, 1280")
    p.e(f"s_add_u32 {s(S_OSO)}, {s(S_OSO)}, {s(S_A)}")
    for k in range(8):
        src = H_O + (k >> 1)
        p.e(f"v_and_b32 {v(H_B2 + k)}, {s(S_HI)}, {v(src)}" if k & 1 else f"v_lshlrev_b32 {v(H_B2 + k)}, 16, {v(src)}")

    def red_write(c):
        return [f"ds_write_b128 {v(H_VW)}, {v(H_ACC[c & 1] + 4 * tl, 4)} offset:{L_RED[c & 1] + 64 * tl}" for tl in range(5)]

    def red_pre(c):
        out = [f"ds_read_b128 {v(H_O, 4)}, {v(H_VRES)} offset:{2560 * c}", None, None, None, None]
        for k in range(8):
            src = H_O + (k >> 1)
            out.append(f"v_and_b32 {v(H_SUM + k)}, {s(S_HI)}, {v(src)}" if k & 1 else f"v_lshlrev_b32 {v(H_SUM + k)}, 16, {v(src)}")
        for k in range(8):
            out.append(f"v_add_f32 {v(H_SUM + k)}, {v(H_SUM + k)}, {v(H_B2 + k)}")
        return out

    def red_post(c):
        out = []
        for w in range(4):
            for h in range(2):
                out.append(f"ds_read_b128 {v(H_RD + 8 * w + 4 * h, 4)}, {v(H_VR)} offset:{L_RED[c & 1] + 5376 * w + 16 * h}")
        out += [None] * 4
        for w in range(4):
            for k in range(8):
                out.append(f"v_add_f32 {v(H_SUM + k)}, {v(H_SUM + k)}, {v(H_RD + 8 * w + k)}")
        for k in range(4):
            out.append(f"v_cvt_pk_bf16_f32 {v(H_O + k)}, {v(H_SUM + 2 * k)}, {v(H_SUM + 2 * k + 1)}")
        out.append(f"s_add_u32 {s(S_A)}, {s(S_OSO)}, {512 * 1280 * c}")
        out.append(f"buffer_store_dwordx4 {v(H_O, 4)}, {v(H_VO)}, {srd(R_OUT)}, {s(S_A)} offen")
        return out

    for c in range(4):
        if c < 3:
            p.e(f"s_add_u32 {s(S_CT)}, {s(S_CT)}, 512")
            poll(p, H_RD, G_VC, s(S_CT), 16)
            p.add(flat(hid_loads(c + 1)))
        stamp(p, 9 + c)
        mf = []
        for st in range(14):
            for tl in range(5):
                acc = v(H_ACC[c & 1] + 4 * tl, 4)
                mf.append(f"v_mfma_f32_16x16x32_bf16 {acc}, {r(W2LOC[5 * st + tl], 4)}, {r(HIDBUF[c & 1] + 4 * st, 4)}, {acc if st else 0}")
        fl = []
        if c:
            fl = [None] * 8 + red_write(c - 1) + [None] * 10 + [wait_all(vm=False), "s_barrier"] + red_post(c - 1)
        fl = fl + red_pre(c)
        p.add([x for x in merge(mf, fl, per=2) if x is not None])
    stamp(p, 13)
    p.add(red_write(3))
    p.wait_all(vm=False)
    p.e("s_barrier")
    p.add([x for x in red_post(3) if x is not None])
    stamp(p, 14)


def kernel_text(label, body):
    return f""".p2align 8
.type {label},@function
{label}:
{body}"""


def kd(label):
    return f""".p2align 6
.amdhsa_kernel {label}
  .amdhsa_next_free_vgpr 512
  .amdhsa_next_free_sgpr 102
  .amdhsa_accum_offset 256
  .amdhsa_group_segment_fixed_size 0
  .amdhsa_kernarg_size 112
  .amdhsa_user_sgpr_count 2
  .amdhsa_user_sgpr_kernarg_segment_ptr 1
  .amdhsa_system_sgpr_workgroup_id_x 1
  .amdhsa_float_denorm_mode_32 3
.end_amdhsa_kernel
"""


def k0():
    p = Prog()
    STAMP_BASE[0] = 0
    prologue(p, "L_k0_end")
    p.e(f"s_cmp_ge_u32 {s(S_IDX)}, 28")
    p.e("s_cbranch_scc1 L_k0_prep")
    p.e(f"s_cmp_ge_u32 {s(S_IDX)}, 20")
    p.e("s_cbranch_scc1 L_k0_stats")
    p0_conv(p)
    p.e("s_branch L_k0_fin")
    p.label("L_k0_stats")
    p.reset()
    p0_stats(p)
    p.e("s_branch L_k0_fin")
    p.label("L_k0_prep")
    p.reset()
    p.e("v_lshlrev_b32 v2, 7, v0")
    p.e("v_mov_b32 v3, 0")
    p.e(f"s_mov_b32 {s(S_A)}, {CTR3}")
    p.e(f"buffer_store_dword v3, v2, {srd(R_WS)}, {s(S_A)} offen sc1")
    p0_prep(p)
    p.label("L_k0_fin")
    p.wait_all()
    stamp(p, 4)
    stamp_flush(p)
    p.label("L_k0_end")
    p.e("s_endpgm")
    return p


def k1():
    p = Prog()
    STAMP_BASE[0] = 0x40000
    prologue(p, "L_k1_end")
    p.e(f"s_cmp_ge_u32 {s(S_IDX)}, 20")
    p.e("s_cbranch_scc1 L_k1_end")
    conv_load_ssm(p, 176)
    conv_addr(p)
    tu, tx = conv_load_u(p)
    conv_build_t(p, 176, 196)
    stamp(p, 1)
    p.wait(tx)
    p.wait_all(vm=False)
    p.e("s_barrier")
    stamp(p, 2)
    th = [p.tok() for _ in range(4)]
    e = [conv_epi(p, c, C_TMP + 28 * (c & 1), th[c]) for c in range(4)]
    fillers = {0: e[0][0] + e[1][0], 1: [None] * 8 + e[0][1] + e[1][1], 2: e[2][0] + e[3][0]}
    conv_main(p, fillers, th)
    stamp(p, 3)
    p.add(e[2][1] + e[3][1])
    stamp(p, 4)
    p.wait_all()
    stamp(p, 5)
    stamp_flush(p)
    p.label("L_k1_end")
    p.e("s_endpgm")
    return p


def k23():
    p = Prog()
    STAMP_BASE[0] = 0x80000
    STAMP_V[0] = 7
    prologue(p, "L_k2_end")
    p.e(f"s_cmp_eq_u32 {s(S_W)}, 3")
    p.e("s_cbranch_scc1 L_k2_w3")
    for w3 in (False, True):
        if w3:
            p.label("L_k2_w3")
            p.reset()
        w1_stage(p, w3)
        stamp(p, 1)
        gemm_addr(p, w3)
        gemm1(p, w3)
        if not w3:
            p.e("s_branch L_k2_g2")
    p.label("L_k2_g2")
    gemm2(p)
    if STAMPS:
        p.wait_all()
        stamp(p, 15)
        stamp_flush(p)
    p.label("L_k2_end")
    p.e("s_endpgm")
    return p


def build(extra_head=""):
    head = open(f"cdna_kernels/{NAME}.s.ref").read().split("; Override launch")[0]
    ks = [("k0_kernel", k0()), ("k1_kernel", k1()), ("k23_kernel", k23())]
    txt = head
    for n, _ in ks:
        txt += f"; @launch kernel={n} grid=(256,1,1) block=(256,1,1) lds={LDS_BYTES}\n"
    txt += '.amdgcn_target "amdgcn-amd-amdhsa--gfx950"\n.text\n'
    for n, pr in ks:
        body, st = finalize(pr)
        print(f"{n}: instr {st.n} waits {st.waits} nop-states {st.nops}", file=sys.stderr)
        txt += f".globl {n}\n" + kernel_text(n, body)
    txt += '.section .rodata,"a"\n'
    for n, _ in ks:
        txt += kd(n)
    return txt


if __name__ == "__main__":
    out = sys.argv[1]
    STAMPS = "stamps" in sys.argv[2:]
    open(out, "w").write(build())
```

```python
import re

REG_RE = re.compile(r"\b([vas])(\d+)\b|\b([vas])\[(\d+):(\d+)\]|\b(vcc|exec|m0|vcc_lo|vcc_hi|exec_lo|exec_hi)\b")


def v(i, n=1):
    return f"v{i}" if n == 1 else f"v[{i}:{i + n - 1}]"


def a(i, n=1):
    return f"a{i}" if n == 1 else f"a[{i}:{i + n - 1}]"


def s(i, n=1):
    return f"s{i}" if n == 1 else f"s[{i}:{i + n - 1}]"


def r(i, n=1):
    if i < 256:
        assert i + n <= 256, (i, n)
        return v(i, n)
    return a(i - 256, n)


def parse_regs(tok):
    out = []
    for m in REG_RE.finditer(tok):
        if m.group(1):
            out.append((m.group(1), int(m.group(2))))
        elif m.group(3):
            out += [(m.group(3), k) for k in range(int(m.group(4)), int(m.group(5)) + 1)]
        else:
            nm = m.group(6)
            out.append(("x", nm.split("_")[0]))
    return out


TRANS = ("v_exp_f32", "v_log_f32", "v_rcp_f32", "v_rsq_f32", "v_sqrt_f32", "v_sin_f32", "v_cos_f32")
S_NODST = ("s_cmp", "s_waitcnt", "s_barrier", "s_nop", "s_branch", "s_cbranch", "s_sleep", "s_setprio",
           "s_endpgm", "s_bitcmp")


class Ins:
    __slots__ = ("text", "op", "kind", "reads", "writes", "tok", "passes", "srcc", "wide_store", "pseudo", "arg",
                 "ab")

    def __init__(self, text, tok=None, pseudo=None, arg=None):
        self.text = text
        self.tok = tok
        self.pseudo = pseudo
        self.arg = arg
        self.reads = set()
        self.writes = set()
        self.kind = "pseudo"
        self.op = ""
        self.passes = 0
        self.srcc = set()
        self.ab = set()
        self.wide_store = set()
        if pseudo is None:
            self._parse()

    def _parse(self):
        t = self.text.split(";")[0].strip()
        parts = t.split(None, 1)
        op = self.op = parts[0]
        rest = parts[1] if len(parts) > 1 else ""
        ops, depth, cur = [], 0, ""
        for ch in rest:
            if ch in "[(":
                depth += 1
            if ch in "])":
                depth -= 1
            if ch == "," and depth == 0:
                ops.append(cur.strip())
                cur = ""
            else:
                cur += ch
        if cur.strip():
            ops.append(cur.strip())
        regs = [parse_regs(o) for o in ops]
        flat = lambda xs: set(x for l in xs for x in l)
        if op.startswith("v_mfma"):
            self.kind = "mfma"
            self.writes = set(regs[0])
            self.ab = flat(regs[1:3])
            self.srcc = set(regs[3])
            self.reads = self.ab | self.srcc
            self.passes = 8 if "32x32" in op else 4
        elif op.startswith("v_"):
            self.kind = "trans" if op.startswith(TRANS) else "valu"
            self.writes = set(regs[0])
            self.reads = flat(regs[1:])
            if op.startswith(("v_fmac", "v_dot2c", "v_writelane")) or "_dpp" in op:
                self.reads |= self.writes
            if "_swap" in op:
                self.reads = self.writes = flat(regs)
            if op.startswith("v_cndmask") and len(ops) == 3:
                self.reads.add(("x", "vcc"))
            if op.startswith(("v_add_co", "v_sub_co", "v_addc_co")):
                self.writes = flat(regs[:2])
                self.reads = flat(regs[2:])
            self.reads.add(("x", "exec"))
        elif op.startswith("ds_"):
            self.kind = "ds"
            if op.startswith(("ds_read", "ds_bpermute", "ds_permute", "ds_swizzle")) or "_rtn" in op:
                self.writes = set(regs[0])
                self.reads = flat(regs[1:])
            else:
                self.reads = flat(regs)
        elif op.startswith(("buffer_", "global_")):
            self.kind = "vmem"
            mods = rest.split()
            is_lds = "lds" in mods or "_lds_" in op
            if is_lds:
                self.reads = flat(regs) | {("x", "m0")}
            elif "_load" in op:
                self.writes = set(regs[0])
                self.reads = flat(regs[1:])
            elif "_atomic" in op and "sc0" in mods:
                self.writes = set(regs[0])
                self.reads = flat(regs) if op.startswith("buffer") else flat(regs[1:])
            else:
                self.reads = flat(regs)
                if op.endswith(("x3", "x4")) and "_store" in op:
                    self.wide_store = set(regs[0] if op.startswith("buffer") else regs[1])
        elif op.startswith(("s_load", "s_memtime", "s_memrealtime", "s_buffer_load")):
            self.kind = "smem"
            self.writes = set(regs[0])
            self.reads = flat(regs[1:])
        elif op.startswith("s_"):
            self.kind = "salu"
            if op.startswith(S_NODST):
                self.reads = flat(regs)
            else:
                self.writes = set(regs[0])
                self.reads = flat(regs[1:])
                if op.startswith(("s_addk", "s_mulk", "s_cmov")):
                    self.reads |= self.writes
                if "saveexec" in op:
                    self.writes.add(("x", "exec"))
                    self.reads.add(("x", "exec"))
            if op.startswith("s_cbranch_vcc"):
                self.reads.add(("x", "vcc"))
        else:
            raise ValueError("unknown op: " + self.text)


class Prog:
    def __init__(self):
        self.ins = []
        self.ntok = 0

    def e(self, text, tok=None):
        i = Ins(text, tok)
        self.ins.append(i)
        return i

    def tok(self):
        self.ntok += 1
        return self.ntok

    def add(self, items):
        for it in items:
            self.ins.append(it if isinstance(it, Ins) else Ins(it))

    def label(self, name, soft=False):
        self.ins.append(Ins(name + ":", pseudo="raw" if soft else "label"))

    def raw(self, text):
        self.ins.append(Ins(text, pseudo="raw"))

    def comment(self, text):
        self.ins.append(Ins("; " + text, pseudo="raw"))

    def wait(self, tok):
        self.ins.append(wait(tok))

    def wait_all(self, vm=True, lgkm=True):
        self.ins.append(wait_all(vm, lgkm))

    def save(self, name):
        self.ins.append(Ins("", pseudo="save", arg=name))

    def restore(self, name):
        self.ins.append(Ins("", pseudo="restore", arg=name))

    def reset(self):
        self.ins.append(Ins("", pseudo="reset"))


def wait(tok):
    return Ins("", pseudo="wait", arg=tok)


def wait_all(vm=True, lgkm=True):
    return Ins("", pseudo="waitall", arg=(vm, lgkm))


LG_AGE = 14


class Stats:
    def __init__(self):
        self.nops = 0
        self.waits = 0
        self.n = 0


def finalize(prog, verbose=False):
    out = []
    vm, lg = [], []
    saved = {}
    hist = []
    slot = [0]
    st = Stats()
    done_toks = set()

    def emit(text, states=1, ins=None):
        out.append(text)
        if ins is not None:
            hist.append((ins, slot[0]))
            if len(hist) > 40:
                del hist[0]
        slot[0] += states

    def do_wait(nvm, nlg):
        parts = []
        if nvm is not None:
            nvm = min(nvm, 63)
            for w in vm[: max(0, len(vm) - nvm)]:
                done_toks.add(w[1])
            del vm[: max(0, len(vm) - nvm)]
            parts.append(f"vmcnt({nvm})")
        if nlg is not None:
            if any(x[2] for x in lg):
                nlg = 0
            nlg = min(nlg, 15)
            for w in lg[: max(0, len(lg) - nlg)]:
                done_toks.add(w[1])
            del lg[: max(0, len(lg) - nlg)]
            parts.append(f"lgkmcnt({nlg})")
        if parts:
            emit("s_waitcnt " + " ".join(parts))
            st.waits += 1

    def need(q, pred):
        n = None
        for k, w in enumerate(q):
            if pred(w):
                n = len(q) - 1 - k
        return n

    def pad(n):
        while n > 0:
            k = min(n, 16)
            emit(f"s_nop {k - 1}", states=k)
            st.nops += k
            n -= k

    def hazard_need(i):
        worst = 0
        for p, ps in hist:
            dist = slot[0] - ps - 1
            req = 0
            if p.kind == "mfma":
                big = p.passes == 8
                if i is None:
                    req = 12 if big else 8
                elif i.kind == "mfma":
                    if p.writes & i.ab:
                        req = 12 if big else 8
                    elif p.writes & i.srcc:
                        if not (p.writes == i.srcc and p.passes == i.passes):
                            req = 10 if big else 6
                    elif p.writes & i.writes:
                        req = 10 if big else 6
                elif i.kind in ("valu", "trans", "ds", "vmem"):
                    if p.writes & (i.reads | i.writes):
                        req = 12 if big else 8
                    if i.kind in ("valu", "trans") and p.srcc & i.writes:
                        req = max(req, 7 if big else 3)
            elif p.kind in ("valu", "trans"):
                pw_v = {x for x in p.writes if x[0] in "va"}
                pw_s = {x for x in p.writes if x[0] == "s" or x == ("x", "vcc")}
                if i is None:
                    req = 5 if pw_s else 3
                else:
                    if i.kind == "mfma" and pw_v & i.reads:
                        req = 2
                    if p.op.startswith("v_dot") and pw_v & (i.reads | i.writes):
                        chain = i.op == p.op and i.writes == p.writes and i.text.count(i.text.split()[1].rstrip(",")) == 2
                        if not chain:
                            req = max(req, 3)
                    if i.kind in ("valu", "trans"):
                        if p.kind == "trans" and i.kind == "valu" and pw_v & i.reads:
                            req = max(req, 1)
                        if ("_dpp" in i.op or "permlane" in i.op) and pw_v & i.reads:
                            req = max(req, 2)
                        if i.op.startswith(("v_readlane", "v_readfirstlane")) and pw_v & i.reads:
                            req = max(req, 1)
                        if pw_s & i.reads:
                            req = max(req, 4 if i.op.startswith(("v_readlane", "v_writelane")) else 2)
                        if ("sdwa" in p.op or "op_sel:" in p.text) and pw_v & (i.reads | i.writes):
                            req = max(req, 1)
                    if i.kind == "vmem" and pw_s & i.reads:
                        req = max(req, 5)
                    if i.kind in ("salu", "smem") and pw_s & i.reads:
                        req = max(req, 1)
                    if ("x", "exec") in p.writes:
                        req = max(req, 5)
            elif p.kind == "salu":
                if ("x", "m0") in p.writes and (i is None or (i.kind == "vmem" and ("x", "m0") in i.reads)):
                    req = 1
            elif p.kind == "vmem":
                if p.wide_store and (i is None or p.wide_store & i.writes):
                    req = 2
            worst = max(worst, req - dist)
        return worst

    for i in prog.ins:
        if i.pseudo == "raw":
            out.append(i.text)
            continue
        if i.pseudo == "label":
            pad(hazard_need(None))
            out.append(i.text)
            continue
        if i.pseudo == "save":
            saved[i.arg] = (list(vm), list(lg), set(done_toks))
            continue
        if i.pseudo == "restore":
            vm[:], lg[:] = list(saved[i.arg][0]), list(saved[i.arg][1])
            done_toks.clear()
            done_toks.update(saved[i.arg][2])
            hist.clear()
            continue
        if i.pseudo == "reset":
            for w in vm + lg:
                done_toks.add(w[1])
            vm.clear()
            lg.clear()
            continue
        if i.pseudo == "wait":
            toks = i.arg if isinstance(i.arg, (list, tuple, set)) else [i.arg]
            for t in toks:
                assert t in done_toks or any(w[1] == t for w in vm + lg), f"wait on unknown token {t}"
            do_wait(need(vm, lambda w: w[1] in toks), need(lg, lambda w: w[1] in toks))
            continue
        if i.pseudo == "waitall":
            do_wait(0 if i.arg[0] else None, 0 if i.arg[1] else None)
            continue
        touched = i.reads | i.writes
        nvm = need(vm, lambda w: w[0] & touched)
        nlg = need(lg, lambda w: w[0] & touched)
        if nlg is not None:
            old = need(lg, lambda w: slot[0] - w[3] >= LG_AGE)
            if old is not None:
                nlg = min(nlg, old)
        do_wait(nvm, nlg)
        if i.op.startswith(("s_branch", "s_cbranch")) and "soft" not in i.text:
            pad(max(hazard_need(None) - 1, hazard_need(i)))
        else:
            pad(hazard_need(i))
        states = 1
        if i.op == "s_nop":
            states = int(i.text.split()[1], 0) + 1
        emit(i.text, states, i)
        st.n += 1
        if i.op == "s_waitcnt":
            raise ValueError("use wait()/wait_all()")
        if i.kind == "vmem" and not i.op.startswith(("buffer_wbl2", "buffer_inv")):
            vm.append((i.writes, i.tok, False, slot[0]))
        elif i.kind == "ds":
            lg.append((i.writes, i.tok, False, slot[0]))
        elif i.kind == "smem":
            lg.append((i.writes, i.tok, True, slot[0]))
    if verbose:
        print(f"; instr {st.n} waits {st.waits} nop-states {st.nops}")
    lines = []
    for t in out:
        lines.append(t if t.endswith(":") or t.startswith((".", ";")) else "    " + t)
    return "\n".join(lines) + "\n", st


def merge(main, fill, start=0, end=None, per=None):
    main = list(main)
    fill = list(fill)
    end = len(main) if end is None else end
    n = end - start
    out = []
    k = 0
    for j, m in enumerate(main):
        out.append(m)
        if start <= j < end:
            if per is None:
                want = (len(fill) * (j - start + 1) + n - 1) // n
            else:
                want = min(len(fill), k + per)
                if j == end - 1:
                    want = len(fill)
            while k < want:
                out.append(fill[k])
                k += 1
    assert k == len(fill)
    return out


def flat(x):
    out = []
    for i in x:
        if isinstance(i, (list, tuple)):
            out += flat(i)
        else:
            out.append(i)
    return out


class Delay:
    def __init__(self, n):
        self.n = n


class Stream:
    def __init__(self, items, start=0, end=None):
        self.items = [x if isinstance(x, (Ins, Delay, list)) else Ins(x) for x in items if x is not None]
        self.items = [[y if isinstance(y, Ins) else Ins(y) for y in x] if isinstance(x, list) else x for x in self.items]
        self.start, self.end, self.pos, self.hold = start, end, 0, 0


def _cost(x):
    if isinstance(x, Delay):
        return 0
    if isinstance(x, list):
        return sum(_cost(y) for y in x)
    if x.pseudo == "raw":
        return 0
    if x.kind in ("trans", "mfma"):
        return 2
    if x.op.startswith("ds_write_b128"):
        return 3
    return 1


def _ismem(x):
    if isinstance(x, list):
        return any(_ismem(y) for y in x)
    return isinstance(x, Ins) and x.kind in ("ds", "vmem")


def _isvalu(x):
    if isinstance(x, list):
        return any(_isvalu(y) for y in x)
    return isinstance(x, Ins) and x.kind in ("valu", "trans")


def sched(p, mfmas, cap, fixed, streams, pre=None):
    n = len(mfmas)
    pre = pre or {}
    for st in streams:
        st.end = n if st.end is None else min(st.end, n)
    toins = lambda l: [y if isinstance(y, Ins) else Ins(y) for y in l]
    fixed = {g: toins(l) for g, l in fixed.items()}
    pre = {g: toins(l) for g, l in pre.items()}
    fcost = [_cost(fixed.get(g, [])) + _cost(pre.get(g + 1, [])) for g in range(n)]
    debt = 0.0
    for g in range(n):
        p.add(pre.get(g, []))
        p.add([mfmas[g]])
        p.add(fixed.get(g, []))
        act = [st for st in streams if st.start <= g and st.pos < len(st.items)]
        budget = cap - fcost[g]
        for e in sorted(set(st.end for st in act)):
            if e <= g:
                continue
            rem = sum(_cost(x) for st in streams if st.end <= e for x in st.items[st.pos:])
            free = sum(max(0, cap - fcost[k]) for k in range(g, e))
            if rem > free:
                budget = max(budget, cap - fcost[g] + (rem - free) / (e - g))
        budget += debt
        used = 0
        valu_seen = _isvalu(fixed.get(g, []))
        for phase in (0, 1):
            for st in act:
                while st.pos < len(st.items):
                    force = g >= st.end - 1
                    x = st.items[st.pos]
                    if isinstance(x, Delay):
                        st.hold = g + x.n
                        st.pos += 1
                        continue
                    if st.hold > g and not force:
                        break
                    if phase == 0 and _isvalu(x) and not _ismem(x):
                        break
                    if phase == 0 and not _ismem(x):
                        nx = st.items[st.pos + 1] if st.pos + 1 < len(st.items) else None
                        if not (nx is not None and _ismem(nx)):
                            break
                    if _ismem(x) and valu_seen and not force:
                        break
                    c = _cost(x)
                    if used + c > budget + 0.5 and not force and not (used == 0 and c > cap and budget > 0):
                        break
                    p.add(x if isinstance(x, list) else [x])
                    used += c
                    valu_seen = valu_seen or _isvalu(x)
                    st.pos += 1
        debt = max(-2.0, min(1.0, budget - used)) if budget > cap - fcost[g] else 0.0
    for st in streams:
        assert st.pos == len(st.items), "stream not finished"
```

```python
import sys, struct
from dsl import *

NAME = "sequential_preLN__ssm_conv_h3__mixer_channel_mlp__prompt"

UT, XT, HB, HID, W2P, ST, CTR = 0, 0x280000, 0x500000, 0x780000, 0xE80000, 0x10B0000, 0x10C0000
STAMP = 0x1100000
WS_BYTES = 0x1200000
CTR3, CTR2, CTR1, CTRS, CTRW = CTR, CTR + 256 * 128, CTR + 768 * 128, CTR + 800 * 128, CTR + 864 * 128
OOB = 0x40000000
L_T, L_U, L_X, L_ST, L_HA, L_MISC = 0, 66560, 84992, 101376, 117760, 158720
L_KT = 66560
L_HBUF = [L_HA, 0, 40960, L_HA]
L_RES = 81920
L_RED = [0, 21504]
LDS_BYTES = 163840
R_Q, R_K, R_V, R_SSM, R_W1, R_W2, R_OUT, R_WS, R_SH, R_D, R_B1, R_B2, R_DBG = range(4, 56, 4)
S_W, S_XCD, S_IDX, S_CW, S_G, S_DS, S_M, S_T = range(56, 64)
S_TO = 64
S_A, S_B, S_C, S_E, S_F, S_H = 65, 66, 67, 68, 69, 70
S_PO, S_P2, S_HI, S_PL, S_PH = 71, 72, 73, 74, 75
S_MK = 76
S_HST, S_HLD, S_WL, S_W2B, S_C3A, S_C3P, S_HIS, S_HIL, S_OSO, S_B2 = range(84, 94)
S_STMP = 96
srd = lambda b: s(b, 4)
SIZES = {R_K: 2621440, R_V: 2621440, R_SH: 5120, R_Q: 2621440, R_SSM: 2621440, R_W1: 2211840, R_W2: 2211840,
         R_OUT: 2621440, R_WS: WS_BYTES, R_D: 1280, R_B1: 3456, R_B2: 1280, R_DBG: 256}
KARG = {R_K: 8, R_V: 16, R_SH: 24, R_Q: 0, R_SSM: 32, R_D: 40, R_W1: 56, R_B1: 64, R_W2: 72, R_B2: 80, R_OUT: 88,
        R_DBG: 96, R_WS: 104}
(G_VA, G_VB, G_VD, G_VSH, G_VST, G_VRR, G_VRW, G_X0, G_X1, G_ONE, H_VW, H_VR, H_VRES, H_VO, V_SIG, V_POL, V_PT,
 V_STAMP) = range(2, 20)
A0 = 256
A_P = 160
W2LOC = ([A0 + 164 + 4 * i for i in range(23)] + [188 + 4 * i for i in range(17)] + [116 + 4 * i for i in range(18)]
         + [A0 + 56 + 4 * i for i in range(12)])
NW2_CONV, NW2_G1 = 40, 58
HIDBUF = [A0 + 0, A0 + 104]
SSM_RAW = 232

OPTS = {}
STAMPS = False
opt = lambda k, d: int(OPTS.get(k, d))


def f32(x):
    return "0x%08x" % struct.unpack("<I", struct.pack("<f", x))[0]


def stamp_l(k):
    if not STAMPS:
        return []
    return [[f"s_memrealtime {s(S_STMP, 2)}", f"s_memtime {s(S_STMP + 2, 2)}",
             f"v_writelane_b32 {v(V_STAMP)}, {s(S_STMP + 2)}, {32 + k}", f"v_writelane_b32 {v(V_STAMP)}, {s(S_STMP)}, {k}"]]


def stamp(p, k):
    p.add(flat(stamp_l(k)))


def stamp_flush(p):
    if not STAMPS:
        return
    p.e(f"s_lshl_b32 {s(S_A)}, s2, 2")
    p.e(f"s_add_u32 {s(S_A)}, {s(S_A)}, {s(S_W)}")
    p.e(f"s_lshl_b32 {s(S_A)}, {s(S_A)}, 8")
    p.e(f"s_add_u32 {s(S_A)}, {s(S_A)}, {STAMP}")
    p.e("v_lshlrev_b32 v2, 2, v1")
    p.e(f"buffer_store_dword {v(V_STAMP)}, v2, {srd(R_WS)}, {s(S_A)} offen")


def prologue(p, end):
    p.e("s_cmp_ge_u32 s2, 256")
    p.e(f"s_cbranch_scc1 {end}")
    for b, o in KARG.items():
        p.e(f"s_load_dwordx2 {s(b, 2)}, s[0:1], {o}")
    if STAMPS:
        p.e(f"v_mov_b32 {v(V_STAMP)}, 0")
    p.e("v_and_b32 v1, 63, v0")
    p.e("v_lshrrev_b32 v2, 6, v0")
    p.e(f"s_mov_b32 {s(R_K + 2)}, 2621440")
    p.e(f"s_mov_b32 {s(R_K + 3)}, 0x20000")
    for b, n in SIZES.items():
        if b == R_K:
            continue
        if n == 2621440:
            p.e(f"s_mov_b64 {s(b + 2, 2)}, {s(R_K + 2, 2)}")
        else:
            p.e(f"s_mov_b32 {s(b + 2)}, {n}")
            p.e(f"s_mov_b32 {s(b + 3)}, {s(R_K + 3)}")
    p.e(f"v_readfirstlane_b32 {s(S_W)}, v2")
    p.e(f"s_and_b32 {s(S_XCD)}, s2, 7")
    p.e(f"s_lshr_b32 {s(S_IDX)}, s2, 3")
    p.e(f"s_mul_i32 {s(S_CW)}, {s(S_XCD)}, 20")
    p.e(f"s_add_u32 {s(S_CW)}, {s(S_CW)}, {s(S_IDX)}")


def prologue2(p):
    p.e(f"s_lshr_b32 {s(S_G)}, {s(S_XCD)}, 1")
    p.e(f"s_lshl_b32 {s(S_G)}, {s(S_G)}, 2")
    p.e(f"s_lshr_b32 {s(S_M)}, {s(S_IDX)}, 3")
    p.e(f"s_add_u32 {s(S_G)}, {s(S_G)}, {s(S_M)}")
    p.e(f"s_and_b32 {s(S_DS)}, {s(S_IDX)}, 7")
    p.e(f"s_and_b32 {s(S_T)}, {s(S_XCD)}, 1")
    p.e(f"s_lshl_b32 {s(S_M)}, {s(S_T)}, 3")
    p.e(f"s_add_u32 {s(S_M)}, {s(S_M)}, {s(S_DS)}")
    p.e(f"s_mov_b32 {s(S_TO)}, 0x20000")
    p.e(f"s_mov_b32 {s(S_HI)}, 0xffff0000")
    p.e(f"s_mov_b32 {s(S_PL)}, 0x05040100")
    p.e(f"s_mov_b32 {s(S_PH)}, 0x07060302")
    p.e(f"v_mov_b32 {v(G_ONE)}, 1")
    p.e(f"v_mov_b32 {v(V_POL)}, 0")
    p.e(f"v_lshlrev_b32 {v(G_VD)}, 4, v1")
    p.e(f"v_lshlrev_b32 {v(G_X0)}, 3, v1")
    p.e(f"v_min_u32 {v(G_X1)}, 1, v1")
    p.e(f"v_lshlrev_b32 {v(G_X1)}, 30, {v(G_X1)}")


def dma(vaddr, rs, soff, tok=None, mods=""):
    return Ins(f"buffer_load_dwordx4 {v(vaddr)}, {srd(rs)}, {soff} offen{mods} lds", tok)


SLOW = []


class Check:
    n = 0

    def __init__(self, rs, voff, sbase, add, target):
        self.rs, self.voff, self.sbase, self.addc, self.target = rs, voff, sbase, add, target

    def _ld(self, sreg):
        so = [f"s_add_u32 {s(sreg)}, {s(self.sbase)}, {self.addc}" if self.sbase is not None
              else f"s_mov_b32 {s(sreg)}, {self.addc}"]
        if self.voff is None:
            return so + [f"buffer_load_dword {v(V_PT)}, off, {srd(self.rs)}, {s(sreg)} sc1"]
        return so + [f"buffer_load_dword {v(V_PT)}, {v(self.voff)}, {srd(self.rs)}, {s(sreg)} offen sc1"]

    def load(self):
        return self._ld(S_P2)

    def test(self):
        Check.n += 1
        k = Check.n
        SLOW.append((k, self))
        return [Ins(f"v_cmp_gt_u32 vcc, {self.target}, {v(V_PT)}"), Ins(f"s_cbranch_vccnz L_slow{k} ; soft"),
                Ins(f"L_ret{k}:", pseudo="raw")]


def emit_slow(p):
    for k, c in SLOW:
        p.label(f"L_slow{k}")
        p.reset()
        p.add(c._ld(S_PO))
        p.e(f"v_cmp_gt_u32 vcc, {c.target}, {v(V_PT)}")
        p.e(f"s_cbranch_vccz L_ret{k} ; soft")
        p.e(f"s_sub_u32 {s(S_TO)}, {s(S_TO)}, 1")
        p.e(f"s_cbranch_scc0 L_slow{k} ; soft")
        p.e(f"s_mov_b32 {s(S_TO)}, 0")
        p.e(f"s_branch L_ret{k} ; soft")


READY = Check(R_DBG, None, None, 0, 1)


def touch_prefetch(p):
    p.e(f"s_getpc_b64 {s(S_MK, 2)}")
    Check.n += 1
    p.raw(f"L_pc{Check.n}:")
    p.e(f"s_sub_u32 {s(S_MK)}, {s(S_MK)}, L_pc{Check.n}-{NAME}_kernel")
    p.e(f"s_subb_u32 {s(S_MK + 1)}, {s(S_MK + 1)}, 0")
    p.e(f"s_and_b32 {s(S_A)}, {s(S_IDX)}, 3")
    p.e(f"s_lshl_b32 {s(S_A)}, {s(S_A)}, 14")
    p.e(f"v_lshl_add_u32 v252, v0, 6, {s(S_A)}")
    p.e(f"v_min_u32 v252, L_code_end-{NAME}_kernel-4, v252")
    p.e(f"v_mov_b32 v253, {s(S_MK + 1)}")
    p.e(f"v_add_co_u32 v252, vcc, {s(S_MK)}, v252")
    p.e(f"v_addc_co_u32 v253, vcc, 0, v253, vcc")
    p.e(f"global_load_dword v254, v[252:253], off")


def touch_w1(p):
    p.e("v_and_b32 v252, 15, v0")
    p.e(f"s_and_b32 {s(S_A)}, {s(S_XCD)}, 1")
    p.e(f"s_mul_i32 {s(S_A)}, {s(S_A)}, 12")
    p.e(f"v_add_u32 v253, {s(S_A)}, v252")
    p.e("v_add_u32 v251, 11, v252")
    p.e("v_cmp_gt_u32 vcc, 12, v252")
    p.e("v_cndmask_b32 v253, v251, v253, vcc")
    p.e("v_lshrrev_b32 v252, 4, v0")
    p.e("v_mul_u32_u24 v252, 3456, v252")
    p.e("v_lshl_add_u32 v252, v253, 7, v252")
    p.e(f"s_sub_u32 {s(S_A)}, {s(S_IDX)}, 20")
    p.e(f"s_mul_i32 {s(S_A)}, {s(S_A)}, {16 * 3456}")
    for i in range(4):
        for h in range(opt("touch2", 1)):
            p.e(f"buffer_load_dword v254, v252, {srd(R_W1)}, {s(S_A)} offen offset:{64 * h}").writes = set()
        p.e(f"s_add_u32 {s(S_A)}, {s(S_A)}, {192 * 3456}")


def p0_conv(p):
    VA, VH, VK, VU, VX, VC = 24, 25, 26, 27, 28, 29
    W, WP, KR, VR, KF, U, VF, OUT = 32, 40, 56, 78, 94, 138, 170, 176
    p.e(f"v_lshrrev_b32 {v(VC)}, 3, v1")
    p.e(f"v_mul_u32_u24 {v(VC)}, 1280, {v(VC)}")
    p.e(f"v_and_b32 {v(VA)}, 7, v1")
    p.e(f"v_lshl_add_u32 {v(VA)}, {v(VA)}, 4, {v(VC)}")
    p.e(f"s_lshr_b32 {s(S_E)}, {s(S_CW)}, 4")
    p.e(f"s_and_b32 {s(S_F)}, {s(S_CW)}, 15")
    p.e(f"s_mul_i32 {s(S_A)}, {s(S_F)}, {128 * 1280}")
    p.e(f"s_lshl_b32 {s(S_B)}, {s(S_E)}, 7")
    p.e(f"s_add_u32 {s(S_A)}, {s(S_A)}, {s(S_B)}")
    p.e(f"s_sub_u32 {s(S_B)}, {s(S_A)}, 10240")
    p.e(f"v_add_u32 {v(VH)}, {s(S_B)}, {v(VA)}")
    p.e(f"s_mul_i32 {s(S_B)}, {s(S_W)}, {4 * 10240}")
    p.e(f"s_add_u32 {s(S_A)}, {s(S_A)}, {s(S_B)}")
    p.e(f"s_mul_i32 {s(S_C)}, {s(S_W)}, {4 * 1040}")
    p.e(f"v_lshrrev_b32 {v(VC)}, 4, v0")
    p.e(f"v_lshlrev_b32 {v(VU)}, 5, {v(VC)}")
    p.e(f"s_lshl_b32 {s(S_H)}, {s(S_E)}, 9")
    p.e(f"s_mov_b32 m0, {L_KT}")
    p.wait_all(vm=False)
    stamp(p, 0)
    p.e(f"s_cmp_lg_u32 {s(S_W)}, 0")
    p.e("s_cbranch_scc1 L_nohalo ; soft")
    p.e("s_mov_b32 exec_lo, 0")
    p.add([dma(VH, R_K, 0)])
    p.e("s_mov_b32 exec_lo, -1")
    p.label("L_nohalo", soft=True)
    p.reset()
    tkv, tx = p.tok(), p.tok()
    p.e(f"buffer_load_dwordx4 {v(W, 4)}, {v(VU)}, {srd(R_SH)}, {s(S_H)} offen")
    p.e(f"buffer_load_dwordx4 {v(W + 4, 4)}, {v(VU)}, {srd(R_SH)}, {s(S_H)} offen offset:16")
    for rs, lb, tk in ((R_K, L_KT + 1040, tkv), (R_V, L_KT + 17680, tkv), (R_Q, L_KT + 34320, tx)):
        for o in range(4):
            p.e(f"s_add_u32 m0, {s(S_C)}, {lb + 1040 * o}")
            p.e(f"s_add_u32 {s(S_B)}, {s(S_A)}, {10240 * o}")
            p.add([dma(VA, rs, s(S_B), tk)])
    prologue2(p)
    p.e(f"s_lshl_b32 {s(S_A)}, {s(S_CW)}, 2")
    p.e(f"s_add_u32 {s(S_A)}, {s(S_A)}, {s(S_W)}")
    p.e(f"s_lshl_b32 {s(S_B)}, {s(S_A)}, 12")
    for q in range(4):
        p.e(f"buffer_load_dwordx4 {v(SSM_RAW + 4 * q, 4)}, {v(G_VD)}, {srd(R_SSM)}, {s(S_B)} offen offset:{1024 * q}")
    p.e(f"s_lshl_b32 {s(S_B)}, {s(S_A)}, 1")
    p.e(f"buffer_load_ushort {v(SSM_RAW + 16)}, off, {srd(R_D)}, {s(S_B)}")
    p.e(f"v_and_b32 {v(VH)}, 15, v1")
    p.e(f"v_mul_u32_u24 {v(VK)}, 1040, {v(VH)}")
    p.e(f"v_lshl_add_u32 {v(VK)}, {v(VC)}, 3, {v(VK)}")
    p.e(f"v_add_u32 {v(VK)}, {L_KT}, {v(VK)}")
    p.e(f"v_lshlrev_b32 {v(VH)}, 4, {v(VH)}")
    p.e(f"v_lshl_add_u32 {v(VX)}, {v(VC)}, 14, {v(VH)}")
    p.e(f"v_sub_u32 {v(VH)}, 240, {v(VH)}")
    p.e(f"v_lshl_add_u32 {v(VU)}, {v(VC)}, 14, {v(VH)}")
    p.e(f"v_min_u32 {v(V_SIG)}, 1, v0")
    p.e(f"s_lshl_b32 {s(S_B)}, {s(S_E)}, 8")
    p.e(f"s_add_u32 {s(S_B)}, {s(S_B)}, {CTR1}")
    p.e(f"v_lshl_add_u32 {v(V_SIG)}, {v(V_SIG)}, 30, {s(S_B)}")
    p.e(f"s_lshl_b32 {s(S_A)}, {s(S_XCD)}, 10")
    p.e(f"s_add_u32 {s(S_A)}, {s(S_A)}, {CTRS}")
    p.e(f"v_and_b32 {v(V_POL)}, 3, v1")
    p.e(f"v_lshl_add_u32 {v(V_POL)}, {v(V_POL)}, 8, {s(S_A)}")
    p.e(f"v_writelane_b32 {v(V_POL)}, {s(S_B)}, 0")
    p.e(f"s_lshl_b32 {s(S_A)}, {s(S_E)}, 18")
    p.e(f"s_lshl_b32 {s(S_B)}, {s(S_F)}, 8")
    p.e(f"s_add_u32 {s(S_H)}, {s(S_A)}, {s(S_B)}")
    p.e(f"s_sub_u32 {s(S_A)}, {s(S_A)}, {s(S_B)}")
    for ch in range(4):
        for j in range(4):
            dst = WP + (ch >> 1) * 8 + j * 2 + (ch & 1)
            src = W + 2 * ch + (j >> 1)
            p.e(f"v_and_b32 {v(dst)}, {s(S_HI)}, {v(src)}" if j & 1 else f"v_lshlrev_b32 {v(dst)}, 16, {v(src)}")
    p.wait(tkv)
    p.e("s_barrier")
    stamp(p, 1)
    for i in range(11):
        off = 640 + 128 * i if i < 3 else 1040 + 128 * (i - 3)
        p.e(f"ds_read_b64 {v(KR + 2 * i, 2)}, {v(VK)} offset:{off}")
        if i >= 3:
            p.e(f"ds_read_b64 {v(VR + 2 * (i - 3), 2)}, {v(VK)} offset:{17680 + 128 * (i - 3)}")
    p.add(READY.load())
    def unpack(dst, src):
        p.e(f"v_lshlrev_b32 {v(dst)}, 16, {v(src)}")
        p.e(f"v_and_b32 {v(dst + 1)}, {s(S_HI)}, {v(src)}")
    for i in range(3):
        for pr in range(2):
            unpack(KF + 4 * i + 2 * pr, KR + 2 * i + pr)
    for pr in range(2):
        for t in range(8):
            unpack(KF + 4 * (t + 3) + 2 * pr, KR + 2 * (t + 3) + pr)
            unpack(VF + 2 * (t & 1), VR + 2 * t + pr)
            d = v(U + 4 * t + 2 * pr, 2)
            for j in (3, 2, 1, 0):
                kf, w = v(KF + 4 * (t + 3 - j) + 2 * pr, 2), v(WP + 8 * pr + 2 * j, 2)
                p.e(f"v_pk_mul_f32 {d}, {kf}, {w}" if j == 3 else f"v_pk_fma_f32 {d}, {kf}, {w}, {d}")
            p.e(f"v_pk_mul_f32 {d}, {d}, {v(VF + 2 * (t & 1), 2)}")
        for ch in (2 * pr, 2 * pr + 1):
            for i in range(4):
                p.e(f"v_cvt_pk_bf16_f32 {v(OUT + 4 * ch + i)}, {v(U + 4 * (7 - 2 * i) + ch)}, {v(U + 4 * (6 - 2 * i) + ch)}")
        for ch in (2 * pr, 2 * pr + 1):
            p.e(f"s_add_u32 {s(S_B)}, {s(S_A)}, {UT + 3840 + 4096 * ch}")
            p.e(f"buffer_store_dwordx4 {v(OUT + 4 * ch, 4)}, {v(VU)}, {srd(R_WS)}, {s(S_B)} offen sc1")
        if pr == 0:
            p.wait(tx)
            p.e("s_barrier")
            for t in range(8):
                p.e(f"ds_read_b64 {v(192 + 2 * t, 2)}, {v(VK)} offset:{34320 + 128 * t}")
    stamp(p, 2)
    for ch in range(4):
        for i in range(4):
            p.e(f"v_perm_b32 {v(U + 4 * ch + i)}, {v(192 + 2 * (2 * i + 1) + (ch >> 1))}, {v(192 + 2 * (2 * i) + (ch >> 1))}, {s(S_PH if ch & 1 else S_PL)}")
    tok = p.tok()
    for ch in range(4):
        p.e(f"s_add_u32 {s(S_B)}, {s(S_H)}, {XT + 4096 * ch}")
        p.e(f"buffer_store_dwordx4 {v(U + 4 * ch, 4)}, {v(VX)}, {srd(R_WS)}, {s(S_B)} offen sc1", tok)
    stamp(p, 3)
    return tok


def p0_stats(p):
    X, SU, SQ = 32, 72, 74
    p.e(f"s_sub_u32 {s(S_C)}, {s(S_IDX)}, 20")
    p.e(f"s_lshr_b32 {s(S_E)}, {s(S_C)}, 1")
    p.e(f"s_and_b32 {s(S_F)}, {s(S_C)}, 1")
    p.e(f"s_lshl_b32 {s(S_A)}, {s(S_XCD)}, 8")
    p.e(f"s_lshl_b32 {s(S_B)}, {s(S_F)}, 7")
    p.e(f"s_add_u32 {s(S_A)}, {s(S_A)}, {s(S_B)}")
    p.e(f"s_lshl_b32 {s(S_B)}, {s(S_E)}, 2")
    p.e(f"s_add_u32 {s(S_A)}, {s(S_A)}, {s(S_B)}")
    p.e(f"s_lshl_b32 {s(S_B)}, {s(S_W)}, 5")
    p.e(f"s_add_u32 {s(S_A)}, {s(S_A)}, {s(S_B)}")
    p.e(f"s_mul_i32 {s(S_H)}, {s(S_A)}, 1280")
    p.e("v_lshrrev_b32 v24, 5, v1")
    p.e("v_bfe_u32 v25, v1, 3, 2")
    p.e("v_lshl_add_u32 v24, v24, 4, v25")
    p.e("v_mul_u32_u24 v24, 1280, v24")
    p.e("v_and_b32 v25, 7, v1")
    p.e("v_lshl_add_u32 v24, v25, 4, v24")
    touch_prefetch(p)
    p.wait_all(vm=False)
    stamp(p, 0)
    for i in range(10):
        p.e(f"buffer_load_dwordx4 {v(X + 4 * i, 4)}, v24, {srd(R_Q)}, {s(S_H)} offen offset:{128 * i}")
    touch_w1(p)
    prologue2(p)
    p.e(f"s_mov_b32 {s(S_B)}, 0x3f803f80")
    for k in range(4):
        p.e(f"v_mov_b32 {v(SU + k)}, 0")
    p.e("v_lshrrev_b32 v26, 3, v0")
    p.e("v_lshlrev_b32 v26, 2, v26")
    p.e("v_bfe_u32 v27, v1, 2, 1")
    p.e("v_lshl_add_u32 v26, v27, 7, v26")
    p.e(f"v_add_u32 v26, {L_KT}, v26")
    p.e(f"v_cmp_eq_u32 {s(S_MK, 2)}, 0, v27")
    p.e(f"s_and_b32 {s(S_A)}, {s(S_C)}, 3")
    p.e(f"s_lshl_b32 {s(S_A)}, {s(S_A)}, 8")
    p.e(f"s_add_u32 {s(S_A)}, {s(S_A)}, {CTRS}")
    p.e(f"v_lshl_add_u32 {v(V_SIG)}, v0, 10, {s(S_A)}")
    p.e(f"v_mov_b32 v28, {OOB}")
    p.e("v_cmp_gt_u32 vcc, 8, v0")
    p.e(f"v_cndmask_b32 {v(V_SIG)}, v28, {v(V_SIG)}, vcc")
    for i in range(40):
        p.e(f"v_dot2_f32_bf16 {v(SU + (i & 1))}, {v(X + i)}, {s(S_B)}, {v(SU + (i & 1))}")
        p.e(f"v_dot2_f32_bf16 {v(SQ + (i & 1))}, {v(X + i)}, {v(X + i)}, {v(SQ + (i & 1))}")
        if i == 36:
            stamp(p, 1)
            p.add(READY.load())
    p.e(f"v_add_f32 {v(SU)}, {v(SU)}, {v(SU + 1)}")
    p.e(f"v_add_f32 {v(SQ)}, {v(SQ)}, {v(SQ + 1)}")
    for ctl in ("quad_perm:[1,0,3,2]", "quad_perm:[2,3,0,1]", "row_half_mirror"):
        for x in (SU, SQ):
            p.e(f"v_add_f32_dpp {v(x)}, {v(x)}, {v(x)} {ctl} row_mask:0xf bank_mask:0xf")
    p.e(f"v_mul_f32 {v(SU)}, {f32(1 / 640)}, {v(SU)}")
    p.e(f"v_mul_f32 {v(SQ)}, {f32(1 / 640)}, {v(SQ)}")
    p.e(f"v_fma_f32 {v(SQ)}, -{v(SU)}, {v(SU)}, {v(SQ)}")
    p.e(f"v_max_f32 {v(SQ)}, 0, {v(SQ)}")
    p.e(f"v_add_f32 {v(SQ)}, {f32(1e-5)}, {v(SQ)}")
    p.e(f"v_rsq_f32 {v(SQ)}, {v(SQ)}")
    p.e(f"v_mul_f32_e64 {v(SU)}, -{v(SU)}, {v(SQ)}")
    p.e(f"v_cndmask_b32 {v(SU)}, {v(SU)}, {v(SQ)}, {s(S_MK, 2)}")
    p.e(f"ds_write_b32 v26, {v(SU)}")
    p.e("v_lshlrev_b32 v26, 2, v1")
    p.e("v_lshrrev_b32 v27, 5, v1")
    p.e("v_and_b32 v29, 127, v26")
    p.e("v_lshl_add_u32 v29, v27, 10, v29")
    p.e("v_cmp_gt_u32 vcc, 64, v0")
    p.e("v_cndmask_b32 v29, v28, v29, vcc")
    p.e(f"v_add_u32 v26, {L_KT}, v26")
    p.e(f"s_lshl_b32 {s(S_A)}, {s(S_XCD)}, 11")
    p.e(f"s_lshl_b32 {s(S_B)}, {s(S_E)}, 8")
    p.e(f"s_add_u32 {s(S_A)}, {s(S_A)}, {s(S_B)}")
    p.e(f"s_lshl_b32 {s(S_B)}, {s(S_F)}, 7")
    p.e(f"s_add_u32 {s(S_A)}, {s(S_A)}, {s(S_B)}")
    p.e(f"s_add_u32 {s(S_A)}, {s(S_A)}, {ST}")
    p.wait_all(vm=False)
    p.e("s_barrier")
    p.e(f"ds_read_b32 {v(SU)}, v26")
    p.e(f"buffer_store_dword {v(SU)}, v29, {srd(R_WS)}, {s(S_A)} offen sc1")
    stamp(p, 3)


def p0_prep(p):
    VO, VT, VZ, VZ1, FR = 24, 30, 31, 32, 40
    p.e(f"s_sub_u32 {s(S_E)}, {s(S_IDX)}, 28")
    for i in range(5):
        p.e(f"v_add_u32 v34, {64 * i}, v1")
        p.e("v_mul_u32_u24 v35, 6554, v34")
        p.e("v_lshrrev_b32 v35, 16, v35")
        p.e("v_mul_u32_u24 v36, 10, v35")
        p.e("v_sub_u32 v36, v34, v36")
        p.e("v_mul_u32_u24 v35, 1280, v35")
        p.e(f"v_lshl_add_u32 {v(VO + i)}, v36, 4, v35")
    p.e(f"s_mul_i32 {s(S_C)}, {s(S_W)}, 21504")
    p.e(f"s_mul_i32 {s(S_F)}, {s(S_XCD)}, 160")
    touch_prefetch(p)
    p.wait_all(vm=False)
    stamp(p, 0)
    p.e("s_cmp_lg_u32 s2, 224")
    p.e("s_cbranch_scc1 L_noinit")
    p.e("v_mov_b32 v34, 0")
    p.e("v_lshlrev_b32 v35, 7, v0")
    p.e("v_lshlrev_b32 v36, 8, v0")
    p.e(f"s_mov_b32 {s(S_A)}, {CTR3}")
    p.e(f"buffer_store_dword v34, v35, {srd(R_WS)}, {s(S_A)} offen sc1")
    p.e(f"s_mov_b32 {s(S_A)}, {CTR2}")
    p.e(f"buffer_store_dword v34, v36, {srd(R_WS)}, {s(S_A)} offen sc1")
    p.e(f"s_mov_b32 {s(S_A)}, {CTR1}")
    p.e(f"buffer_store_dword v34, v36, {srd(R_WS)}, {s(S_A)} offen sc1")
    p.e("v_mov_b32 v34, 1")
    p.e("v_min_u32 v35, 1, v0")
    p.e("v_lshlrev_b32 v35, 30, v35")
    p.wait_all()
    p.e("s_barrier")
    p.e(f"buffer_store_dword v34, v35, {srd(R_DBG)}, 0 offen sc1")
    p.label("L_noinit")
    p.reset()
    p.e(f"s_mul_i32 {s(S_A)}, {s(S_E)}, 12")
    p.e(f"s_add_u32 {s(S_A)}, {s(S_A)}, {s(S_W)}")
    p.e(f"s_mul_i32 {s(S_A)}, {s(S_A)}, {32 * 1280}")
    p.e(f"s_add_u32 {s(S_A)}, {s(S_A)}, {s(S_F)}")
    toks = []
    for k in range(3):
        toks.append(p.tok())
        p.e(f"s_add_u32 {s(S_B)}, {s(S_A)}, {k * 4 * 32 * 1280}")
        for i in range(5):
            p.e(f"s_add_u32 m0, {s(S_C)}, {5120 * k + 1024 * i}")
            p.add([dma(VO + i, R_W2, s(S_B), toks[k])])
    toks.append(p.tok())
    p.e(f"s_and_b32 {s(S_H)}, {s(S_W)}, 1")
    p.e(f"s_lshl_b32 {s(S_A)}, {s(S_E)}, 1")
    p.e(f"s_add_u32 {s(S_PO)}, {s(S_A)}, {s(S_H)}")
    p.e(f"s_mul_i32 {s(S_A)}, {s(S_PO)}, {24 * 1280}")
    p.e(f"s_add_u32 {s(S_A)}, {s(S_A)}, {s(S_F)}")
    p.e(f"s_add_u32 {s(S_A)}, {s(S_A)}, {1536 * 1280}")
    for i in range(4):
        p.e(f"s_add_u32 m0, {s(S_C)}, {5120 * 3 + 1024 * i}")
        p.add([dma(VO + i, R_W2, s(S_A), toks[3])])
    prologue2(p)
    p.e(f"s_add_u32 m0, {s(S_C)}, {5120 * 4}")
    p.add([dma(G_VD, R_B2, s(S_F), toks[3])])
    touch_w1(p)
    for k in range(4):
        p.e(f"v_mov_b32 {v(FR + k)}, 0")
    p.e(f"v_add_u32 v34, {s(S_C)}, {v(G_VD)}")
    p.e(f"ds_write_b128 v34, {v(FR, 4)} offset:{5120 * 3 + 4096}")
    p.e("v_lshrrev_b32 v34, 5, v1")
    p.e("v_bfe_u32 v35, v1, 2, 3")
    p.e("v_lshl_add_u32 v35, v34, 4, v35")
    p.e("v_mul_u32_u24 v35, 160, v35")
    p.e("v_and_b32 v36, 3, v1")
    p.e(f"v_lshl_add_u32 v36, v36, 3, {s(S_C)}")
    p.e(f"v_add_u32 {v(VT)}, v35, v36")
    p.e("v_lshrrev_b32 v34, 2, v1")
    p.e("v_mul_u32_u24 v35, 160, v34")
    p.e("v_add_u32 v37, 1920, v35")
    p.e("v_mov_b32 v38, 4096")
    p.e("v_cmp_gt_u32 vcc, 48, v1")
    p.e("v_cndmask_b32 v35, v38, v35, vcc")
    p.e("v_cndmask_b32 v37, v38, v37, vcc")
    p.e(f"s_cmp_eq_u32 {s(S_PO)}, 0")
    p.e(f"s_cselect_b32 {s(S_A)}, 5, 4")
    p.e(f"s_lshl_b32 {s(S_A)}, {s(S_A)}, 10")
    p.e(f"v_mov_b32 v38, {s(S_A)}")
    p.e("v_cmp_eq_u32 vcc, 12, v34")
    p.e("v_cndmask_b32 v35, v35, v38, vcc")
    p.e(f"v_add_u32 {v(VZ)}, v35, v36")
    p.e(f"v_add_u32 {v(VZ1)}, v37, v36")
    p.e(f"s_lshl_b32 {s(S_A)}, {s(S_XCD)}, 2")
    p.e(f"s_add_u32 {s(S_A)}, {s(S_A)}, {s(S_E)}")
    p.e(f"s_lshl_b32 {s(S_B)}, {s(S_A)}, 8")
    p.e(f"s_add_u32 {s(S_B)}, {s(S_B)}, {CTRW}")
    p.e(f"v_min_u32 {v(V_SIG)}, 1, v0")
    p.e(f"v_lshl_add_u32 {v(V_SIG)}, {v(V_SIG)}, 30, {s(S_B)}")
    p.e(f"s_mul_i32 {s(S_A)}, {s(S_A)}, {70 * 1024}")
    p.e(f"s_add_u32 {s(S_A)}, {s(S_A)}, {W2P}")
    p.e(f"s_mul_i32 {s(S_F)}, {s(S_W)}, 5120")
    p.e(f"s_mul_i32 {s(S_H)}, {s(S_H)}, 5120")
    p.e(f"s_add_u32 {s(S_F)}, {s(S_F)}, {s(S_A)}")
    p.e(f"s_add_u32 {s(S_H)}, {s(S_H)}, {s(S_A)}")
    for k in range(4):
        p.wait(toks[k])
        if k == 0:
            stamp(p, 1)
        if k == 3:
            stamp(p, 2)
            p.add(READY.load())
        fr = FR + 20 * k
        for tl in range(5):
            for aa in range(2):
                if k < 3:
                    p.e(f"ds_read_b64_tr_b16 {v(fr + 4 * tl + 2 * aa, 2)}, {v(VT)} offset:{5120 * k + 1280 * aa + 32 * tl}")
                else:
                    p.e(f"ds_read_b64_tr_b16 {v(fr + 4 * tl + 2 * aa, 2)}, {v(VZ1 if aa else VZ)} offset:{5120 * 3 + 32 * tl}")
        for tl in range(5):
            if k < 3:
                p.e(f"s_add_u32 {s(S_B)}, {s(S_F)}, {(20 * k + tl) * 1024}")
            else:
                p.e(f"s_add_u32 {s(S_B)}, {s(S_H)}, {(60 + tl) * 1024}")
            p.e(f"buffer_store_dwordx4 {v(fr + 4 * tl, 4)}, {v(G_VD)}, {srd(R_WS)}, {s(S_B)} offen sc1")
    p.e("s_barrier")
    stamp(p, 3)


def w1_stage(p, w3, tok_st):
    t0, t1, vo, vt, vt2, vf, vf2, bb, fx, on, CS = 24, 25, 26, 27, 28, 29, 30, 31, 32, 36, 40
    n = 20 if w3 else 40
    NS = 26
    p.e(f"s_mul_i32 {s(S_C)}, {s(S_W)}, 16640")
    p.e(f"s_mul_i32 {s(S_WL)}, {s(S_W)}, 10240")
    if not w3:
        p.e(f"v_lshrrev_b32 {v(t0)}, 2, v1")
        p.e(f"v_and_b32 {v(t1)}, 3, v1")
        p.e(f"s_mul_i32 {s(S_A)}, {s(S_M)}, 3")
        p.e(f"s_add_u32 {s(S_A)}, {s(S_A)}, {s(S_W)}")
        p.e(f"s_lshl_b32 {s(S_A)}, {s(S_A)}, 6")
        rows = 16
    else:
        p.e(f"v_lshrrev_b32 {v(t0)}, 1, v1")
        p.e(f"v_and_b32 {v(t1)}, 1, v1")
        p.e(f"s_mul_i32 {s(S_A)}, {s(S_M)}, 24")
        p.e(f"s_add_u32 {s(S_A)}, {s(S_A)}, 3072")
        rows = 32
    p.e(f"v_mul_u32_u24 {v(t0)}, 3456, {v(t0)}")
    p.e(f"v_lshl_add_u32 {v(vo)}, {v(t1)}, 4, {v(t0)}")
    toks = [p.tok() for _ in range(n)]
    def issue(i):
        sl = i % NS
        m = f"s_add_u32 m0, {s(S_C)}, {1024 * sl}" if sl < 16 else f"s_add_u32 m0, {s(S_WL)}, {L_HA + 1024 * (sl - 16)}"
        return [m, f"s_add_u32 {s(S_B)}, {s(S_A)}, {rows * 3456 * i}", dma(vo, R_W1, s(S_B), toks[i])]
    NA = opt("na", 14) // (2 if w3 else 1)
    for i in range(NA):
        p.add(issue(i))
    p.e(f"v_and_b32 {v(t0)}, {15 if w3 else 31}, v1")
    p.e(f"v_lshlrev_b32 {v(t0)}, 1, {v(t0)}")
    p.e(f"buffer_load_ushort {v(bb)}, {v(t0)}, {srd(R_B1)}, {s(S_A)} offen")
    if not w3:
        p.e(f"v_lshrrev_b32 {v(t0)}, 5, v1")
        p.e(f"v_bfe_u32 {v(t1)}, v1, 2, 2")
        p.e(f"v_lshl_add_u32 {v(t1)}, {v(t0)}, 3, {v(t1)}")
        p.e(f"v_lshlrev_b32 {v(vt)}, 6, {v(t1)}")
        p.e(f"v_bfe_u32 {v(t1)}, v1, 4, 1")
        p.e(f"v_lshl_add_u32 {v(vt)}, {v(t1)}, 5, {v(vt)}")
        astep = 256
    else:
        p.e(f"v_lshrrev_b32 {v(t1)}, 2, v1")
        p.e(f"v_lshlrev_b32 {v(vt)}, 5, {v(t1)}")
        p.e(f"v_lshlrev_b32 {v(vf)}, 5, v1")
        p.e(f"v_mov_b32 {v(fx)}, 0x3f80")
        p.e(f"v_mov_b32 {v(fx + 1)}, 0")
        astep = 512
    p.e(f"v_and_b32 {v(t1)}, 3, v1")
    p.e(f"v_lshl_add_u32 {v(vt)}, {v(t1)}, 3, {v(vt)}")
    p.e(f"s_add_u32 {s(S_B)}, {s(S_WL)}, {L_HA}")
    p.e(f"v_add_u32 {v(vt2)}, {s(S_B)}, {v(vt)}")
    p.e(f"v_add_u32 {v(vt)}, {s(S_C)}, {v(vt)}")
    if w3:
        p.e(f"v_add_u32 {v(vf2)}, {s(S_B)}, {v(vf)}")
        p.e(f"v_add_u32 {v(vf)}, {s(S_C)}, {v(vf)}")
    for k in range(4):
        p.e(f"v_mov_b32 {v(on + k)}, 0x3f803f80")
    gemm_addr(p, w3)
    p.wait(tok_st)
    p.add(READY.test())
    p.e("s_barrier")
    p.e(f"buffer_atomic_add {v(G_ONE)}, {v(V_SIG)}, {srd(R_WS)}, 0 offen sc1")
    stamp(p, 4)
    nxt = NA
    rtok = [p.tok() for _ in range(n // 2)]
    for b in range(n // 2 + 1):
        while nxt < min(n, NS, 2 * b + NA + 4 * (b + 1)):
            p.add(issue(nxt))
            nxt += 1
        if b < n // 2:
            p.wait(toks[2 * b + 1])
            sl = (2 * b) % NS
            va, vw, off = (vt, vf, 1024 * sl) if sl < 16 else (vt2, vf2, 1024 * (sl - 16))
            if w3:
                p.e(f"ds_write_b64 {v(vw)}, {v(fx, 2)} offset:{off + 24}")
            for i in range(2):
                for aa in range(2):
                    p.e(f"ds_read_b64_tr_b16 {a(4 * (2 * b + i) + 2 * aa, 2)}, {v(va)} offset:{off + 1024 * i + astep * aa}", rtok[b])
        if b >= 1:
            p.wait(rtok[b - 1])
            for k in (2 * b - 2, 2 * b - 1):
                if nxt >= NS and nxt < n and nxt - NS <= k:
                    p.add(issue(nxt))
                    nxt += 1
                if w3:
                    p.e(f"v_mfma_f32_16x16x32_bf16 {v(CS, 4)}, {v(on, 4)}, {a(4 * k, 4)}, {v(CS, 4) if k else 0}")
                else:
                    p.e(f"v_mfma_f32_32x32x16_bf16 {v(CS, 16)}, {v(on, 4)}, {a(4 * k, 4)}, {v(CS, 16) if k else 0}")
    assert nxt == n
    p.e(f"v_cmp_gt_u32 vcc, {16 if w3 else 32}, v1")
    p.e(f"v_lshl_or_b32 {v(bb)}, {v(bb)}, 16, {v(bb)}")
    p.e(f"v_cndmask_b32 {v(bb)}, 0, {v(bb)}, vcc")
    p.e(f"v_accvgpr_write_b32 {a(A_P + 2)}, {v(bb)}")
    p.e(f"v_accvgpr_write_b32 {a(A_P + 3)}, 0")
    p.e(f"v_cndmask_b32 {v(CS)}, 0, {v(CS)}, vcc")
    p.e(f"v_and_b32 {v(t0)}, {s(S_HI)}, {v(CS)}")
    p.e(f"v_sub_f32 {v(t1)}, {v(CS)}, {v(t0)}")
    p.e(f"v_cvt_pk_bf16_f32 {v(t0)}, {v(t0)}, {v(t0)}")
    p.e(f"v_cvt_pk_bf16_f32 {v(t1)}, {v(t1)}, {v(t1)}")
    p.e(f"v_accvgpr_write_b32 {a(A_P)}, {v(t0)}")
    p.e(f"v_accvgpr_write_b32 {a(A_P + 1)}, {v(t1)}")
    stamp(p, 5)


def gemm_addr(p, w3):
    t0, t1, t2 = 56, 57, 58
    X, Y = S_E, S_F
    p.e(f"s_lshl_b32 {s(S_W2B)}, {s(S_DS)}, 2")
    p.e(f"s_add_u32 {s(S_W2B)}, {s(S_W2B)}, {s(S_W)}")
    p.e(f"s_lshl_b32 {s(S_B2)}, {s(S_W2B)}, 8")
    p.e(f"s_mul_i32 {s(S_W2B)}, {s(S_W2B)}, {70 * 1024}")
    p.e(f"s_add_u32 {s(S_W2B)}, {s(S_W2B)}, {W2P}")
    p.e(f"v_and_b32 {v(t2)}, 3, v1")
    p.e(f"v_lshlrev_b32 {v(t2)}, 3, {v(t2)}")
    p.e(f"v_bfe_u32 {v(t1)}, v1, 4, 1")
    p.e(f"s_mul_i32 {s(S_HIL)}, {s(S_G)}, {4 * 114688}")
    p.e(f"s_add_u32 {s(S_HIL)}, {s(S_HIL)}, {HID}")
    p.e(f"s_lshr_b32 {s(X)}, {s(S_M)}, 2")
    p.e(f"s_lshl_b32 {s(S_C3P)}, {s(S_G)}, 11")
    p.e(f"s_add_u32 {s(S_C3P)}, {s(S_C3P)}, {CTR3}")
    p.e(f"s_lshl_b32 {s(Y)}, {s(X)}, 7")
    p.e(f"s_add_u32 {s(S_C3A)}, {s(S_C3P)}, {s(Y)}")
    p.e(f"s_lshl_b32 {s(Y)}, {s(S_W)}, 7")
    p.e(f"s_add_u32 {s(S_C3P)}, {s(S_C3P)}, {s(Y)}")
    p.e(f"s_mul_i32 {s(X)}, {s(X)}, 14336")
    p.e(f"s_add_u32 {s(S_HIS)}, {s(S_HIL)}, {s(X)}")
    p.e(f"s_and_b32 {s(X)}, {s(S_M)}, 3")
    if not w3:
        p.e(f"s_mul_i32 {s(X)}, {s(X)}, 3")
        p.e(f"s_add_u32 {s(X)}, {s(X)}, {s(S_W)}")
        p.e(f"s_lshl_b32 {s(X)}, {s(X)}, 10")
        p.e(f"s_add_u32 {s(S_HIS)}, {s(S_HIS)}, {s(X)}")
        p.e(f"v_lshrrev_b32 {v(t0)}, 5, v1")
        p.e(f"v_bfe_u32 {v(G_VA)}, v1, 2, 2")
        p.e(f"v_lshl_add_u32 {v(G_VA)}, {v(t0)}, 3, {v(G_VA)}")
        p.e(f"v_lshl_add_u32 {v(G_VA)}, {v(G_VA)}, 6, {v(t2)}")
        p.e(f"v_lshl_add_u32 {v(G_VA)}, {v(t1)}, 5, {v(G_VA)}")
        p.e(f"v_xor_b32 {v(G_VB)}, 0x120, {v(G_VA)}")
        p.e(f"v_mul_u32_u24 {v(G_VSH)}, 57344, {v(t1)}")
        p.e(f"v_lshl_add_u32 {v(G_VSH)}, {v(t0)}, 8, {v(G_VSH)}")
        p.e(f"v_and_b32 {v(t0)}, 15, v1")
        p.e(f"v_lshl_add_u32 {v(G_VSH)}, {v(t0)}, 4, {v(G_VSH)}")
        p.e(f"v_and_b32 {v(G_VST)}, 31, v1")
        p.e(f"v_lshlrev_b32 {v(G_VST)}, 3, {v(G_VST)}")
        p.e(f"v_add_u32 {v(G_VST)}, {L_MISC}, {v(G_VST)}")
        p.e(f"s_mul_i32 {s(X)}, {s(S_DS)}, 5")
        p.e(f"s_add_u32 {s(X)}, {s(X)}, {s(S_W)}")
        p.e(f"s_lshl_b32 {s(X)}, {s(X)}, 10")
        p.e(f"v_lshrrev_b32 {v(G_VRR)}, 2, v1")
        p.e(f"v_lshl_add_u32 {v(G_VRR)}, {v(G_VRR)}, 6, {v(t2)}")
        p.e(f"v_xor_b32 {v(t1)}, {s(S_T)}, {v(t1)}")
        p.e(f"v_lshl_add_u32 {v(G_VRR)}, {v(t1)}, 5, {v(G_VRR)}")
        p.e(f"v_add_u32 {v(G_VRR)}, {s(X)}, {v(G_VRR)}")
        p.e(f"v_mul_u32_u24 {v(G_VRW)}, 160, {v(t0)}")
        p.e(f"v_lshrrev_b32 {v(t1)}, 4, v1")
        p.e(f"v_lshl_add_u32 {v(G_VRW)}, {v(t1)}, 3, {v(G_VRW)}")
        p.e(f"s_lshl_b32 {s(X)}, {s(S_W)}, 5")
        p.e(f"s_add_u32 {s(X)}, {s(X)}, {L_RES}")
        p.e(f"v_add_u32 {v(G_VRW)}, {s(X)}, {v(G_VRW)}")
        regs = (G_VA, G_VB, G_VRR)
    else:
        p.e(f"s_lshl_b32 {s(X)}, {s(X)}, 9")
        p.e(f"s_add_u32 {s(X)}, {s(X)}, 12288")
        p.e(f"s_add_u32 {s(S_HIS)}, {s(S_HIS)}, {s(X)}")
        p.e(f"v_lshrrev_b32 {v(G_VA)}, 2, v1")
        p.e(f"v_lshl_add_u32 {v(G_VA)}, {v(G_VA)}, 6, {v(t2)}")
        p.e(f"v_lshl_add_u32 {v(G_VA)}, {v(t1)}, 5, {v(G_VA)}")
        p.e(f"v_xor_b32 {v(G_VB)}, 32, {v(G_VA)}")
        p.e(f"v_mov_b32 {v(G_VSH)}, 0x3f80")
        p.e(f"v_and_b32 {v(t0)}, 15, v1")
        p.e(f"v_lshlrev_b32 {v(G_VST)}, 3, {v(t0)}")
        p.e(f"v_add_u32 {v(G_VST)}, {L_MISC}, {v(G_VST)}")
        p.e(f"v_mov_b32 {v(t2)}, {L_MISC + 1024}")
        p.e(f"v_cmp_le_u32 {s(S_MK + 6, 2)}, 48, v1")
        p.e(f"v_cndmask_b32 {v(G_VRR)}, {v(t2)}, {v(G_VST)}, {s(S_MK + 6, 2)}")
        p.e(f"v_lshrrev_b32 {v(t1)}, 4, v1")
        p.e(f"v_lshrrev_b32 {v(t0)}, 2, {v(t0)}")
        p.e(f"v_cmp_eq_u32 vcc, {v(t0)}, {v(t1)}")
        p.e(f"v_cndmask_b32 {v(G_VRW)}, {v(t2)}, {v(G_VST)}, vcc")
        p.e(f"v_and_b32 {v(t0)}, 3, v1")
        for k in range(1, 4):
            p.e(f"v_cmp_eq_u32 {s(S_MK + 2 * (k - 1), 2)}, {k}, {v(t0)}")
        regs = (G_VA, G_VB)
    for x in regs:
        p.e(f"v_add_u32 {v(x)}, {L_HBUF[0]}, {v(x)}")
    p.e(f"s_lshl_b32 {s(X)}, {s(S_T)}, 2")
    p.e(f"s_add_u32 {s(X)}, {s(X)}, {s(S_W)}")
    p.e(f"s_mul_i32 {s(X)}, {s(X)}, 14336")
    p.e(f"s_add_u32 {s(S_HIL)}, {s(S_HIL)}, {s(X)}")
    p.e(f"s_mul_i32 {s(S_HLD)}, {s(S_G)}, 163840")
    p.e(f"s_add_u32 {s(S_HLD)}, {s(S_HLD)}, {s(S_WL)}")
    p.e(f"s_add_u32 {s(S_HLD)}, {s(S_HLD)}, {HB}")
    p.e(f"v_and_b32 {v(t0)}, 15, v1")
    p.e(f"v_mul_u32_u24 {v(H_VW)}, 336, {v(t0)}")
    p.e(f"v_lshrrev_b32 {v(t0)}, 4, v1")
    p.e(f"v_lshl_add_u32 {v(H_VW)}, {v(t0)}, 4, {v(H_VW)}")
    p.e(f"s_mul_i32 {s(X)}, {s(S_W)}, 5376")
    p.e(f"v_add_u32 {v(H_VW)}, {s(X)}, {v(H_VW)}")
    p.e(f"v_min_u32 {v(t2)}, 159, v0")
    p.e(f"v_mul_u32_u24 {v(t0)}, 6554, {v(t2)}")
    p.e(f"v_lshrrev_b32 {v(t0)}, 16, {v(t0)}")
    p.e(f"v_mul_u32_u24 {v(t1)}, 10, {v(t0)}")
    p.e(f"v_sub_u32 {v(t1)}, {v(t2)}, {v(t1)}")
    p.e(f"v_mul_u32_u24 {v(H_VR)}, 336, {v(t0)}")
    p.e(f"v_lshl_add_u32 {v(H_VR)}, {v(t1)}, 5, {v(H_VR)}")
    p.e(f"v_lshlrev_b32 {v(H_VRES)}, 4, {v(t2)}")
    p.e(f"v_add_u32 {v(H_VRES)}, {L_RES}, {v(H_VRES)}")
    p.e(f"v_bfe_u32 {v(t2)}, {v(t0)}, 2, 1")
    p.e(f"v_lshlrev_b32 {v(H_VO)}, 8, {v(t2)}")
    p.e(f"v_lshrrev_b32 {v(t2)}, 3, {v(t0)}")
    p.e(f"v_lshl_add_u32 {v(H_VO)}, {v(t2)}, 4, {v(H_VO)}")
    p.e(f"v_and_b32 {v(t2)}, 3, {v(t0)}")
    p.e(f"v_add_u32 {v(H_VO)}, {v(t2)}, {v(H_VO)}")
    p.e(f"v_mul_u32_u24 {v(H_VO)}, 1280, {v(H_VO)}")
    p.e(f"v_lshl_add_u32 {v(H_VO)}, {v(t1)}, 4, {v(H_VO)}")
    p.e(f"v_mov_b32 {v(t2)}, {OOB}")
    p.e(f"v_cmp_gt_u32 vcc, 160, v0")
    p.e(f"v_cndmask_b32 {v(H_VO)}, {v(t2)}, {v(H_VO)}, vcc")
    p.e(f"s_and_b32 {s(Y)}, {s(S_G)}, 3")
    p.e(f"s_lshl_b32 {s(Y)}, {s(Y)}, 1")
    p.e(f"s_add_u32 {s(Y)}, {s(Y)}, {s(S_T)}")
    p.e(f"s_lshl_b32 {s(Y)}, {s(Y)}, 5")
    p.e(f"s_and_b32 {s(S_OSO)}, {s(S_G)}, 12")
    p.e(f"s_add_u32 {s(S_OSO)}, {s(S_OSO)}, {s(Y)}")
    p.e(f"s_mul_i32 {s(S_OSO)}, {s(S_OSO)}, 1280")
    p.e(f"s_mul_i32 {s(X)}, {s(S_DS)}, 160")
    p.e(f"s_add_u32 {s(S_OSO)}, {s(S_OSO)}, {s(X)}")


def pol2_addr(p):
    p.e(f"s_lshl_b32 {s(S_A)}, {s(S_XCD)}, 11")
    p.e(f"v_and_b32 {v(V_POL)}, 7, v1")
    p.e(f"v_lshl_add_u32 {v(V_POL)}, {v(V_POL)}, 8, {s(S_A)}")


CK2 = lambda c: Check(R_WS, V_POL, None, CTR2 + 16384 * c, 20)
CK3 = lambda c: Check(R_WS, None, S_C3P, 512 * c, 16)
CKW = lambda: Check(R_WS, None, S_B2, CTRW, 1)


def signal2(c, tok):
    return [[wait(tok), Ins("s_barrier"), Ins(f"s_mov_b32 {s(S_A)}, {CTR2 + 16384 * c}"),
             Ins(f"buffer_atomic_add {v(G_ONE)}, {v(V_SIG)}, {srd(R_WS)}, {s(S_A)} offen sc1")]]


def signal3(c, tok):
    return [[wait(tok), Ins(f"buffer_atomic_add {v(G_ONE)}, {v(G_X1)}, {srd(R_WS)}, {s(S_C3A)} offen offset:{512 * c} sc1")]]


def w2_loads(lo, hi, gap=0, each=False):
    out = []
    for i in range(lo, hi):
        x = []
        if i == lo or i % 4 == 0 or each:
            x.append(f"s_add_u32 {s(S_F)}, {s(S_W2B)}, {(i & ~3) * 1024}")
        x.append(f"buffer_load_dwordx4 {r(W2LOC[i], 4)}, {v(G_VD)}, {srd(R_WS)}, {s(S_F)} offen offset:{(i & 3) * 1024} sc1")
        out.append(x)
        if gap:
            out.append(Delay(gap))
    return out


def h_dma(c, tok, gap=0):
    out = []
    for i in range(10):
        x = []
        if i % 4 == 0:
            x.append(f"s_add_u32 m0, {s(S_WL)}, {L_HBUF[c] + 1024 * i}")
            x.append(f"s_add_u32 {s(S_B)}, {s(S_HLD)}, {40960 * c + 1024 * i}")
        x.append(dma(G_VD, R_WS, s(S_B), tok, f" offset:{1024 * (i % 4)} sc1"))
        out.append(x)
        if gap:
            out.append(Delay(gap))
    return out


def hid_loads(c, gap=0, toks=None):
    b = HIDBUF[c & 1]
    out = []
    for st in range(14):
        x = []
        if st % 4 == 0:
            x.append(f"s_add_u32 {s(S_B)}, {s(S_HIL)}, {114688 * c + 1024 * st}")
        tk = toks[st] if toks else None
        if st < 12:
            x.append(Ins(f"buffer_load_dwordx4 {r(b + 4 * st, 4)}, {v(G_VD)}, {srd(R_WS)}, {s(S_B)} offen offset:{1024 * (st & 3)} sc1", tk))
        else:
            for h in range(2):
                x.append(Ins(f"buffer_load_dwordx2 {r(b + 4 * st + 2 * h, 2)}, {v(G_X0)}, {srd(R_WS)}, {s(S_B)} offen offset:{512 * (2 * (st - 12) + h)} sc1", tk))
        out.append(x)
        if gap:
            out.append(Delay(gap))
    return out


C_VT, C_VP, C_VX, C_VS, C_VH = 21, 22, 23, 24, 25
C_AD, C_ACC, C_FR, C_TMP = 28, 32, 64, 160


def conv_build_t(p):
    raw, tmp = SSM_RAW, 192
    va = tmp
    p.e(f"s_mul_i32 {s(S_A)}, {s(S_W)}, 16640")
    p.e(f"v_add_u32 {v(va)}, {s(S_A)}, {v(G_VD)}")
    z = tmp + 2
    for k in range(4):
        p.e(f"v_mov_b32 {v(z + k)}, 0")
    p.e(f"v_bfe_u32 {v(tmp + 1)}, v1, 1, 2")
    p.e(f"v_mul_u32_u24 {v(tmp + 1)}, 4160, {v(tmp + 1)}")
    p.e(f"v_and_b32 {v(tmp + 6)}, 1, v1")
    p.e(f"v_lshl_add_u32 {v(tmp + 1)}, {v(tmp + 6)}, 4, {v(tmp + 1)}")
    p.e(f"v_add_u32 {v(tmp + 1)}, {s(S_A)}, {v(tmp + 1)}")
    p.e(f"ds_write_b128 {v(tmp + 1)}, {v(z, 4)} offset:{L_T}")
    for q in range(4):
        d = raw + 4 * q
        b = tmp + 8 + 14 * (q & 1)
        Q1, Q2, Q3, DM2 = b, b + 4, b + 8, b + 12
        p.e(f"ds_write_b128 {v(va)}, {v(d, 4)} offset:{L_T + 32 + 1024 * q}")
        if q == 0:
            p.e(f"v_mov_b32 {v(Q2)}, 0")
            p.e(f"v_mov_b32 {v(DM2)}, 0")
        else:
            p.e(f"v_mov_b32_dpp {v(Q2)}, {v(d - 1)} wave_ror:1 row_mask:0xf bank_mask:0xf")
            p.e(f"v_mov_b32_dpp {v(DM2)}, {v(d - 2)} wave_ror:1 row_mask:0xf bank_mask:0xf")
        for k in range(3):
            p.e(f"v_mov_b32 {v(Q2 + 1 + k)}, {v(d + k)}")
        p.e(f"v_mov_b32_dpp {v(Q2)}, {v(d + 3)} wave_shr:1 row_mask:0xf bank_mask:0xf")
        p.e(f"v_mov_b32_dpp {v(DM2)}, {v(d + 2)} wave_shr:1 row_mask:0xf bank_mask:0xf")
        for k in range(1, 4):
            p.e(f"v_alignbit_b32 {v(Q1 + k)}, {v(d + k)}, {v(d + k - 1)}, 16")
        p.e(f"v_alignbit_b32 {v(Q1)}, {v(d)}, {v(Q2)}, 16")
        p.e(f"v_alignbit_b32 {v(Q3)}, {v(Q2)}, {v(DM2)}, 16")
        for k in range(3):
            p.e(f"v_mov_b32 {v(Q3 + 1 + k)}, {v(Q1 + k)}")
        p.e(f"ds_write_b128 {v(va)}, {v(Q2, 4)} offset:{L_T + 2 * 4160 + 32 + 1024 * q}")
        p.e(f"ds_write_b128 {v(va)}, {v(Q1, 4)} offset:{L_T + 4160 + 32 + 1024 * q}")
        p.e(f"ds_write_b128 {v(va)}, {v(Q3, 4)} offset:{L_T + 3 * 4160 + 32 + 1024 * q}")


def conv_addr(p):
    t0, t1, t2 = C_TMP, C_TMP + 1, C_TMP + 2
    p.e(f"v_and_b32 {v(t0)}, 15, v1")
    p.e(f"v_lshrrev_b32 {v(t1)}, 4, v1")
    p.e(f"v_sub_u32 {v(t2)}, 15, {v(t0)}")
    p.e(f"v_and_b32 {v(C_VT)}, 3, {v(t2)}")
    p.e(f"v_mul_u32_u24 {v(C_VT)}, 4160, {v(C_VT)}")
    p.e(f"v_lshl_add_u32 {v(C_VT)}, {v(t1)}, 4, {v(C_VT)}")
    p.e(f"v_lshrrev_b32 {v(t2)}, 2, {v(t2)}")
    p.e(f"v_lshlrev_b32 {v(t2)}, 3, {v(t2)}")
    p.e(f"v_sub_u32 {v(C_VT)}, {v(C_VT)}, {v(t2)}")
    p.e(f"s_mul_i32 {s(S_A)}, {s(S_W)}, 16640")
    p.e(f"s_add_u32 {s(S_A)}, {s(S_A)}, {L_T + 32}")
    p.e(f"v_add_u32 {v(C_VT)}, {s(S_A)}, {v(C_VT)}")
    p.e(f"s_mul_i32 {s(S_C)}, {s(S_W)}, 4608")
    p.e(f"s_add_u32 {s(S_A)}, {s(S_C)}, {L_U + 480}")
    p.e(f"v_lshl_add_u32 {v(C_VP)}, {v(t1)}, 4, {s(S_A)}")
    p.e(f"v_lshlrev_b32 {v(t2)}, 5, {v(t0)}")
    p.e(f"v_sub_u32 {v(C_VP)}, {v(C_VP)}, {v(t2)}")
    p.e(f"s_lshl_b32 {s(S_E)}, {s(S_W)}, 12")
    p.e(f"s_add_u32 {s(S_A)}, {s(S_E)}, {L_X}")
    p.e(f"v_lshl_add_u32 {v(C_VX)}, {v(t1)}, 3, {v(t2)}")
    p.e(f"v_add_u32 {v(C_VX)}, {s(S_A)}, {v(C_VX)}")
    p.e(f"v_add_u32 {v(C_VS)}, {L_ST}, {v(G_VD)}")
    p.e(f"s_and_b32 {s(S_A)}, {s(S_CW)}, 1")
    p.e(f"s_lshl_b32 {s(S_A)}, {s(S_A)}, 1")
    p.e(f"v_and_b32 {v(t2)}, 3, v1")
    p.e(f"v_xor_b32 {v(t2)}, {s(S_A)}, {v(t2)}")
    p.e(f"v_lshrrev_b32 {v(C_VH)}, 2, v1")
    p.e(f"v_mul_u32_u24 {v(C_VH)}, 163840, {v(C_VH)}")
    p.e(f"v_lshl_add_u32 {v(C_VH)}, {v(t2)}, 4, {v(C_VH)}")
    p.e(f"s_lshl_b32 {s(S_H)}, {s(S_CW)}, 2")
    p.e(f"s_add_u32 {s(S_H)}, {s(S_H)}, {s(S_W)}")
    p.e(f"s_lshl_b32 {s(S_HST)}, {s(S_H)}, 6")
    p.e(f"s_add_u32 {s(S_HST)}, {s(S_HST)}, {HB}")
    p.e(f"s_lshl_b32 {s(S_H)}, {s(S_H)}, 12")
    p.e(f"v_lshl_add_u32 {v(t0)}, {v(t1)}, 3, {v(t0)}")
    p.e(f"v_sub_u32 {v(t0)}, 15, {v(t0)}")
    p.e(f"v_and_b32 {v(t1)}, 1, {v(t0)}")
    p.e(f"v_lshlrev_b32 {v(t1)}, 4, {v(t1)}")
    p.e(f"v_lshlrev_b32 {v(t2)}, {v(t1)}, {v(SSM_RAW + 16)}")
    p.e(f"v_ashrrev_i32 {v(t0)}, 1, {v(t0)}")
    for k in range(4):
        p.e(f"v_cmp_eq_u32 vcc, {k}, {v(t0)}")
        p.e(f"v_cndmask_b32 {v(C_AD + k)}, 0, {v(t2)}, vcc")
    for k in range(2):
        p.e(f"v_mov_b32 {v(C_TMP + 4 + k)}, 0")
    p.e(f"s_add_u32 {s(S_A)}, {s(S_C)}, {L_U + 4096}")
    p.e(f"v_add_u32 {v(t0)}, {s(S_A)}, {v(G_X0)}")
    p.e(f"ds_write_b64 {v(t0)}, {v(C_TMP + 4, 2)}")
    p.e(f"s_and_b32 {s(S_A)}, {s(S_CW)}, 7")
    p.e(f"s_lshl_b32 {s(S_A)}, {s(S_A)}, 8")
    p.e(f"v_lshl_add_u32 {v(V_SIG)}, v0, 11, {s(S_A)}")
    p.e(f"v_mov_b32 {v(t1)}, {OOB}")
    p.e("v_cmp_gt_u32 vcc, 8, v0")
    p.e(f"v_cndmask_b32 {v(V_SIG)}, {v(t1)}, {v(V_SIG)}, vcc")


def conv_load_u(p):
    tu, tx = p.tok(), p.tok()
    p.e(f"s_add_u32 m0, {s(S_C)}, {L_U}")
    p.e(f"s_add_u32 {s(S_A)}, {s(S_H)}, {XT}")
    for q in (3, 2, 1, 0):
        p.add([dma(G_VD, R_WS, s(S_H), tu, f" offset:{1024 * q} sc1")])
    p.e(f"s_add_u32 m0, {s(S_E)}, {L_ST}")
    p.e(f"s_add_u32 {s(S_B)}, {s(S_E)}, {ST}")
    for q in range(4):
        p.add([dma(G_VD, R_WS, s(S_B), tx, f" offset:{1024 * q} sc1")])
    p.e(f"s_add_u32 m0, {s(S_E)}, {L_X}")
    for q in range(4):
        p.add([dma(G_VD, R_WS, s(S_A), tx, f" offset:{1024 * q} sc1")])
    return tu, tx


def conv_epi(c, tok):
    pre, post = [], []
    tmp = C_TMP
    XR, RR, Q, XF, O = tmp, tmp + 4, tmp + 8, tmp + 16, tmp + 24
    for jj in range(2):
        j = 2 * c + jj
        pre.append(f"ds_read_b64 {v(XR, 2)}, {v(C_VX)} offset:{512 * j}")
        pre.append(f"ds_read_b128 {v(RR, 4)}, {v(C_VS)} offset:{2048 * j}")
        pre.append(f"ds_read_b128 {v(Q + 4 * jj, 4)}, {v(C_VS)} offset:{2048 * j + 1024}")
        pre.append(Delay(7))
        for k in range(4):
            pre.append(f"v_and_b32 {v(XF + 4 * jj + k)}, {s(S_HI)}, {v(XR + (k >> 1))}" if k & 1 else
                       f"v_lshlrev_b32 {v(XF + 4 * jj + k)}, 16, {v(XR + (k >> 1))}")
        for k in range(4):
            pre.append(f"v_fmac_f32 {v(Q + 4 * jj + k)}, {v(XF + 4 * jj + k)}, {v(RR + k)}")
        for k in range(4):
            post.append(f"v_fmac_f32 {v(XF + 4 * jj + k)}, {v(Q + 4 * jj + k)}, {v(C_ACC + 4 * j + k)}")
        for k in range(2):
            post.append(f"v_cvt_pk_bf16_f32 {v(O + 2 * jj + k)}, {v(XF + 4 * jj + 2 * k)}, {v(XF + 4 * jj + 2 * k + 1)}")
    post.append([f"s_add_u32 {s(S_A)}, {s(S_HST)}, {40960 * c}",
                 Ins(f"buffer_store_dwordx4 {v(O, 4)}, {v(C_VH)}, {srd(R_WS)}, {s(S_A)} offen sc1", tok)])
    return pre, post


def conv_stages():
    lim = [1, 3, 5, 7]
    st, seen = [], set()
    for L in lim:
        x = [(m, j) for m in range(L + 1) for j in range(L + 1) if m + j <= 7 and (m, j) not in seen]
        seen.update(x)
        st.append(x)
    return st


def conv_main(p, tx, th0):
    stages = conv_stages()
    steps, inited, k = [], set(), 0
    for si, pairs in enumerate(stages):
        cs = [[0, 1], [2, 3], [4, 5], [6, 7]] if si == 0 else [[c] for c in range(8)]
        for cl in cs:
            base = C_FR + 48 * (k & 1)
            loc, loads, mf, need = {}, [], [], []
            def get(kind, i, c):
                if (kind, i, c) not in loc:
                    rg = base + 4 * len(loc)
                    loc[(kind, i, c)] = rg
                    if kind == "T":
                        loads.append(Ins(f"ds_read_b64 {v(rg, 2)}, {v(C_VT)} offset:{512 * i + 64 * c}", p.tok()))
                        loads.append(Ins(f"ds_read_b64 {v(rg + 2, 2)}, {v(C_VT)} offset:{512 * i + 64 * c + 8}", p.tok()))
                    else:
                        loads.append(Ins(f"ds_read_b128 {v(rg, 4)}, {v(C_VP)} offset:{512 * (7 - i) + 64 * c}", p.tok()))
                return loc[(kind, i, c)]
            for c in cl:
                rest, have = list(pairs), set()
                while rest:
                    rest.sort(key=lambda x: ((("T", x[0]) not in have) + (("P", x[1]) not in have), -max(x), x))
                    m, j = rest.pop(0)
                    have.update({("T", m), ("P", j)})
                    pj, tm = get("P", j, c), get("T", m, c)
                    acc = v(C_ACC + 4 * (m + j), 4)
                    if c == 0 and m == 0:
                        mf.append(f"v_mfma_f32_16x16x32_bf16 {acc}, {v(C_AD, 4)}, {v(pj, 4)}, {acc if j in inited else 0}")
                        need.append(len(loads))
                        inited.add(j)
                    mf.append(f"v_mfma_f32_16x16x32_bf16 {acc}, {v(tm, 4)}, {v(pj, 4)}, {acc if m + j in inited else 0}")
                    need.append(len(loads))
                    inited.add(m + j)
            assert len(loc) <= 12
            steps.append((si, loads, mf, need))
            k += 1
    mfs, fixed, pre, sstart = [], {}, {}, {}
    for k, (si, loads, mf, need) in enumerate(steps):
        g0 = len(mfs)
        sstart.setdefault(si, g0)
        nxt = steps[k + 1][1] if k + 1 < len(steps) else []
        for i, x in enumerate(nxt):
            fixed.setdefault(g0 + i * len(mf) // len(nxt), []).append(x)
        half = len(mf) // 2
        pre[g0] = [wait(loads[need[half - 1] - 1].tok)]
        if need[-1] > need[half - 1]:
            pre[g0 + half] = [wait(loads[-1].tok)]
        mfs += mf
    N = len(mfs)
    th = [p.tok() for _ in range(4)]
    e = [conv_epi(c, th[c]) for c in range(4)]
    SD = opt("sigd", 52)
    ckw, ck0, ck1 = CKW(), CK2(0), CK2(1)
    s0, s1, s2, s3 = sstart[0], sstart[1], sstart[2], sstart[3]
    streams = [
        Stream([[wait(tx), Ins("s_barrier")]] + e[0][0], 2, s1),
        Stream(stamp_l(8) + e[0][1] + [Delay(2)] + e[1][0], s1 + 3, s1 + 50),
        Stream(signal2(0, th[0]), s1 + 12 + SD, s1 + 13 + SD),
        Stream(stamp_l(9) + e[1][1] + [Delay(2)] + e[2][0], s2 + 3, s2 + 50),
        Stream(signal2(1, th[1]), s2 + 12 + SD, s2 + 13 + SD),
        Stream(stamp_l(10) + e[2][1] + [Delay(2)] + e[3][0], s3 + 3, N),
        Stream([ckw.load(), Delay(opt("ckwd", 30)), ckw.test()] + w2_loads(0, NW2_CONV, opt("w2gap", 4)), s1 - 10, N - opt("c0at", 70) - 30),
        Stream([ck0.load(), Delay(28), ck0.test()] + stamp_l(11) + h_dma(0, th0, 2) + [Delay(opt("c0at", 70) - 50), ck1.load()], N - opt("c0at", 70) - 28, N),
    ]
    p.add(steps[0][1])
    sched(p, mfs, 2, fixed, streams, pre)
    stamp(p, 12)
    p.add(flat(e[3][1]))
    return th[2], th[3], ck1


G_ACC, G_BF, G_BP, G_SV, G_TMP, G_RT = [24, 40], 56, 88, 96, 104, 112
KK0, KK1 = -2.302208198, 0.044715


def ln_consts(sv, bp):
    sm, sq, t, u = sv, sv + 1, sv + 2, sv + 3
    return [f"v_mul_f32 {v(sm)}, {f32(-1 / 640)}, {v(sm)}",
            f"v_mul_f32 {v(t)}, {v(sm)}, {v(sm)}",
            f"v_fma_f32 {v(sq)}, {v(sq)}, {s(S_PL)}, -{v(t)}",
            f"v_and_b32 {v(u)}, {s(S_HI)}, {v(sm)}",
            f"v_max_f32 {v(sq)}, 0, {v(sq)}",
            f"v_sub_f32 {v(sm)}, {v(sm)}, {v(u)}",
            f"v_fma_f32 {v(sq)}, {v(sq)}, {s(S_PH)}, v20",
            f"v_cvt_pk_bf16_f32 {v(bp)}, {v(u)}, {v(sm)}",
            f"v_rsq_f32 {v(t)}, {v(sq)}",
            f"v_mov_b32 {v(bp + 1)}, {v(bp)}",
            f"v_mul_f32 {v(sm)}, {v(sq)}, {v(t)}",
            f"v_mul_f32 {v(sq)}, {f32(KK0)}, {v(t)}",
            f"v_and_b32 {v(u)}, {s(S_HI)}, {v(sm)}",
            f"v_mul_f32 {v(t)}, {v(t)}, {v(t)}",
            f"v_sub_f32 {v(bp + 2)}, {v(sm)}, {v(u)}",
            f"v_mul_f32 {v(t)}, {v(t)}, {v(sq)}",
            f"v_cvt_pk_bf16_f32 {v(bp + 2)}, {v(u)}, {v(bp + 2)}",
            f"v_mul_f32 {v(t)}, {f32(KK1)}, {v(t)}"]


def gelu_ops(acc, n, sv, pk=False):
    out = []
    if pk:
        for k0 in range(0, n, 8):
            m = min(8, n - k0)
            t = lambda j, w=1: v(G_TMP + j, w)
            x = lambda j, w=1: v(acc + k0 + j, w)
            for j in range(0, m, 2):
                out.append(f"v_pk_mul_f32 {t(j, 2)}, {x(j, 2)}, {x(j, 2)}")
            for j in range(0, m, 2):
                out.append(f"v_pk_fma_f32 {t(j, 2)}, {t(j, 2)}, {v(sv + 2, 2)}, {v(sv, 2)} op_sel:[0,0,1] op_sel_hi:[1,0,1]")
            for j in range(0, m, 2):
                out.append(f"v_pk_mul_f32 {t(j, 2)}, {t(j, 2)}, {x(j, 2)}")
            for j in range(m):
                out.append(f"v_exp_f32 {t(j)}, {t(j)}")
            for j in range(0, m, 2):
                out.append(f"v_pk_fma_f32 {t(j, 2)}, {t(j, 2)}, {v(sv, 2)}, {v(sv, 2)} op_sel_hi:[1,0,0]")
            for j in range(m):
                out.append(f"v_rcp_f32 {t(j)}, {t(j)}")
            for j in range(0, m, 2):
                out.append(f"v_pk_mul_f32 {t(j, 2)}, {t(j, 2)}, {x(j, 2)}")
            for j in range(0, m, 2):
                out.append(f"v_cvt_pk_bf16_f32 {x(j // 2)}, {t(j)}, {t(j + 1)}")
            out.append(("store", k0 // 8))
        return out
    def stages(k):
        t = lambda j: v(G_TMP + (k + j) % 6)
        x = lambda j: v(acc + k + j)
        A = [f"v_mul_f32 {t(j)}, {x(j)}, {x(j)}" for j in (0, 1)] + \
            [f"v_fma_f32 {t(j)}, {t(j)}, {v(sv + 2)}, {v(sv + 1)}" for j in (0, 1)] + \
            [f"v_mul_f32 {t(j)}, {t(j)}, {x(j)}" for j in (0, 1)]
        E = [f"v_exp_f32 {t(j)}, {t(j)}" for j in (0, 1)]
        Bv = [f"v_fma_f32 {t(j)}, {t(j)}, {v(sv)}, {v(sv)}" for j in (0, 1)]
        Rr = [f"v_rcp_f32 {t(j)}, {t(j)}" for j in (0, 1)]
        C = [f"v_mul_f32 {t(j)}, {t(j)}, {x(j)}" for j in (0, 1)] + \
            [f"v_cvt_pk_bf16_f32 {v(acc + (k & ~7) + (k & 7) // 2)}, {t(0)}, {t(1)}"]
        return A, E, Bv, Rr, C
    sts = [stages(k) for k in range(0, n, 2)]
    out += sts[0][0]
    for i, (A, E, Bv, Rr, C) in enumerate(sts):
        nA = sts[i + 1][0] if i + 1 < len(sts) else []
        pC = sts[i - 1][4] if i else []
        out += [E[0]] + pC[:2] + [E[1]] + pC[2:]
        if i and (2 * i) % 8 == 0:
            out.append(("store", (2 * i) // 8 - 1))
        out += nA[:1] + Bv[:1] + nA[1:2] + Bv[1:] + [Rr[0]] + nA[2:4] + [Rr[1]] + nA[4:]
    out += sts[-1][4]
    out.append(("store", (n - 1) // 8))
    return out


def g1_epi(c, w3, tok, pk=False):
    acc = G_ACC[c & 1]
    so = 256 * (c & 1)
    out = []
    if not w3:
        out += [f"ds_read_b64 {v(G_SV, 2)}, {v(G_VST)} offset:{so}", Delay(3)]
        out += ln_consts(G_SV, G_BP)
        out += [f"v_mfma_f32_32x32x16_bf16 {v(acc, 16)}, {a(A_P, 4)}, {v(G_BP, 4)}, {v(acc, 16)}", Delay(2)]
        for x in gelu_ops(acc, 16, G_SV, pk):
            if isinstance(x, tuple):
                q = x[1]
                x = [f"s_add_u32 {s(S_A)}, {s(S_HIS)}, {114688 * c}",
                     Ins(f"buffer_store_dwordx4 {v(acc + 8 * q, 4)}, {v(G_VSH)}, {srd(R_WS)}, {s(S_A)} offen offset:{512 * q} sc1", tok)]
            out.append(x)
    else:
        for t in range(2):
            out.append(f"ds_read_b64 {v(G_SV + 4 * t, 2)}, {v(G_VST)} offset:{so + 128 * t}")
        out.append(Delay(6))
        for t in range(2):
            out += ln_consts(G_SV + 4 * t, G_BP + 4 * t)
            out.append(f"v_mfma_f32_16x16x32_bf16 {v(acc + 8 * t, 4)}, {a(A_P, 4)}, {v(G_BP + 4 * t, 4)}, {v(acc + 8 * t, 4)}")
        for t in range(2):
            for x in gelu_ops(acc + 8 * t, 4, G_SV + 4 * t, pk):
                if isinstance(x, tuple):
                    out.append(f"v_cndmask_b32 {v(acc + 8 * t)}, {v(acc + 8 * t)}, {v(G_VSH)}, {s(S_MK + 6, 2)}")
                    out.append(f"v_cndmask_b32 {v(acc + 8 * t + 1)}, {v(acc + 8 * t + 1)}, 0, {s(S_MK + 6, 2)}")
                    x = [f"s_add_u32 {s(S_A)}, {s(S_HIS)}, {114688 * c + 57344 * t}",
                         Ins(f"buffer_store_dwordx2 {v(acc + 8 * t, 2)}, {v(G_X0)}, {srd(R_WS)}, {s(S_A)} offen sc1", tok)]
                out.append(x)
    return out


def g1_stats_out(c, tok):
    acc = G_ACC[c & 1]
    out = []
    for k in range(1, 4):
        for t in range(2):
            g = acc + 8 * t + 4
            out.append(f"v_cndmask_b32 {v(g)}, {v(g)}, {v(g + k)}, {s(S_MK + 2 * (k - 1), 2)}")
    for t in range(2):
        out.append(Ins(f"ds_write_b32 {v(G_VRR)}, {v(acc + 8 * t)} offset:{256 * (c & 1) + 128 * t}", tok))
        out.append(Ins(f"ds_write_b32 {v(G_VRW)}, {v(acc + 8 * t + 4)} offset:{256 * (c & 1) + 128 * t + 4}", tok))
    return out


def res_stash(c):
    return [f"ds_read_b64_tr_b16 {v(G_RT, 2)}, {v(G_VRR)} offset:0",
            f"ds_read_b64_tr_b16 {v(G_RT + 2, 2)}, {v(G_VRR)} offset:2048", Delay(4),
            f"ds_write_b64 {v(G_VRW)}, {v(G_RT, 2)} offset:{2560 * c}",
            f"ds_write_b64 {v(G_VRW)}, {v(G_RT + 2, 2)} offset:{2560 * c + 64}"]


def gemm1(p, w3, th0, tc2, tc3, ck1):
    th = [th0] + [p.tok() for _ in range(3)]
    ts = [p.tok() for _ in range(4)]
    u = 2 if w3 else 1
    LEAD = 7
    p.e(f"s_mov_b32 {s(S_PL)}, {f32(1 / 640)}")
    p.e(f"s_mov_b32 {s(S_PH)}, {f32(1 + 1e-5)}")
    p.e(f"v_mov_b32 v20, {f32(1e-10)}")
    p.e(f"v_mov_b32 {v(G_BP + 3)}, 0")
    p.e(f"v_mov_b32 {v(G_BP + 7)}, 0")
    regs = (G_VA, G_VB) if w3 else (G_VA, G_VB, G_VRR)
    ck = [None, ck1, CK2(2), CK2(3)]
    ck30, ck31 = CK3(0), CK3(1)
    for c in range(4):
        acc = G_ACC[c & 1]
        rtok = [p.tok() for _ in range(40)]
        def reads(st):
            b = G_BF + 4 * (st % 8)
            if not w3:
                return [Ins(f"ds_read_b64_tr_b16 {v(b, 2)}, {v(G_VA)} offset:{1024 * st}", rtok[st]),
                        Ins(f"ds_read_b64_tr_b16 {v(b + 2, 2)}, {v(G_VB)} offset:{1024 * st}", rtok[st])]
            va = G_VB if st & 1 else G_VA
            return [Ins(f"ds_read_b64_tr_b16 {v(b, 2)}, {v(va)} offset:{2048 * (st >> 1)}", rtok[st]),
                    Ins(f"ds_read_b64_tr_b16 {v(b + 2, 2)}, {v(va)} offset:{2048 * (st >> 1) + 1024}", rtok[st])]
        p.wait(th[c])
        p.e("s_barrier")
        stamp(p, 14 + c)
        for st in range(LEAD):
            p.add(reads(st))
        mfs, fixed, pre = [], {}, {}
        for st in range(40):
            b = v(G_BF + 4 * (st % 8), 4)
            rd = reads(st + LEAD) if st + LEAD < 40 else []
            g = len(mfs)
            if st % 4 == 0 and st:
                pre[g] = [wait(rtok[st + 3])]
            if not w3:
                mfs.append(f"v_mfma_f32_32x32x16_bf16 {v(acc, 16)}, {a(4 * st, 4)}, {b}, {v(acc, 16) if st else 0}")
                fixed[g] = rd
            else:
                ks, t = st >> 1, st & 1
                x, gr = v(acc + 8 * t, 4), v(acc + 8 * t + 4, 4)
                mfs.append(f"v_mfma_f32_16x16x32_bf16 {x}, {a(4 * ks, 4)}, {b}, {x if ks else 0}")
                mfs.append(f"v_mfma_f32_16x16x32_bf16 {gr}, {b}, {b}, {gr if ks else 0}")
                fixed[g], fixed[g + 1] = rd[:1], rd[1:]
        streams = []
        SB = 4
        if c:
            if w3:
                tk = p.tok()
                streams.append(Stream(g1_stats_out(c - 1, tk), 0, u * SB - 2))
                streams.append(Stream([[wait(tk), Ins("s_barrier")]] + g1_epi(c - 1, w3, ts[c - 1]), u * SB, u * 40))
            else:
                streams.append(Stream(["s_barrier"] + g1_epi(c - 1, w3, ts[c - 1]), SB, 40))
        mem = []
        if c < 3:
            mem += [ck[c + 1].test()] + h_dma(c + 1, th[c + 1], u)
        if c == 0:
            streams.append(Stream(signal2(2, tc2), 1 * u, 2 * u))
            streams.append(Stream(signal2(3, tc3), opt("sig3at", 24) * u, opt("sig3at", 24) * u + 1))
            mem += w2_loads(NW2_CONV, NW2_G1, u)
        if c < 2:
            streams.append(Stream([ck[c + 2].load()], 30 * u, 31 * u))
        if c >= 2:
            streams.append(Stream(signal3(c - 2, ts[c - 2]), opt("s3at", 16) * u, opt("s3at", 16) * u + 1))
        if c == 3:
            streams.append(Stream([ck30.load()], 4 * u, 5 * u))
            hs = opt("hidat", 14)
            seq = hid_loads(0) + w2_loads(NW2_G1, 70, each=w3)
            for k, x in enumerate(seq):
                dead = (4 * k + 2 if k < 20 else 0) if w3 else k
                g = min(max(dead, (hs + k) * u), 40 * u - 1)
                if k == 0:
                    pre[g] = pre.get(g, []) + ck30.test()
                fixed[g] = fixed.get(g, []) + x
        if mem:
            streams.append(Stream(mem, 0 if c else 2 * u, 30 * u))
        if not w3:
            streams.append(Stream(res_stash(c), 0, 12))
        if c < 3:
            streams.append(Stream([f"v_add_u32 {v(x)}, {(L_HBUF[c + 1] - L_HBUF[c]) & 0xffffffff}, {v(x)}" for x in regs],
                                  34 * u, 40 * u))
        sched(p, mfs, 2 if w3 else 6, fixed, streams, pre)
    stamp(p, 18)
    p.add(ck31.load())
    if w3:
        p.add(g1_stats_out(3, None))
    p.wait_all(vm=False)
    p.e("s_barrier")
    ep = [x for x in g1_epi(3, w3, ts[3], pk=True) if not isinstance(x, Delay)]
    k = next(i for i, x in enumerate(ep) if isinstance(x, list))
    p.add(flat(ep[:k] + signal3(2, ts[2]) + ep[k:]))
    stamp(p, 19)
    p.add(ck31.test())
    return ts[3], ck31


H_ACC, H_RD, H_SUM, H_O = [24, 44], 64, 96, 104


def gemm2(p, ts3, ck31):
    def red_write(c):
        return [f"ds_write_b128 {v(H_VW)}, {v(H_ACC[c & 1] + 4 * tl, 4)} offset:{L_RED[c & 1] + 64 * tl}" for tl in range(5)]

    def red_pre(c):
        out = [f"ds_read_b128 {v(H_O, 4)}, {v(H_VRES)} offset:{2560 * c}", Delay(6)]
        for k in range(8):
            src = H_O + (k >> 1)
            out.append(f"v_and_b32 {v(H_SUM + k)}, {s(S_HI)}, {v(src)}" if k & 1 else f"v_lshlrev_b32 {v(H_SUM + k)}, 16, {v(src)}")
        return out

    def red_post(c, pk=False):
        out = []
        for w in range(4):
            for h in range(2):
                out.append(f"ds_read_b128 {v(H_RD + 8 * w + 4 * h, 4)}, {v(H_VR)} offset:{L_RED[c & 1] + 5376 * w + 16 * h}")
        out.append(Delay(6))
        for w in range(4):
            if pk:
                for k in range(0, 8, 2):
                    out.append(f"v_pk_add_f32 {v(H_SUM + k, 2)}, {v(H_SUM + k, 2)}, {v(H_RD + 8 * w + k, 2)}")
            else:
                for k in range(8):
                    out.append(f"v_add_f32 {v(H_SUM + k)}, {v(H_SUM + k)}, {v(H_RD + 8 * w + k)}")
        for k in range(4):
            out.append(f"v_cvt_pk_bf16_f32 {v(H_O + k)}, {v(H_SUM + 2 * k)}, {v(H_SUM + 2 * k + 1)}")
        out.append([f"s_add_u32 {s(S_A)}, {s(S_OSO)}, {512 * 1280 * c}",
                    f"buffer_store_dwordx4 {v(H_O, 4)}, {v(H_VO)}, {srd(R_OUT)}, {s(S_A)} offen{OPTS.get('outmod', '')}"])
        return out

    ck = [None, ck31, CK3(2), CK3(3)]
    toks = None
    for c in range(4):
        stamp(p, 20 + c)
        mf, pre = [], {}
        for st in range(14):
            if toks and st % 2 == 0:
                pre[len(mf)] = [wait(toks[st + 1])]
            for tl in range(5):
                acc = v(H_ACC[c & 1] + 4 * tl, 4)
                mf.append(f"v_mfma_f32_16x16x32_bf16 {acc}, {r(W2LOC[5 * st + tl], 4)}, {r(HIDBUF[c & 1] + 4 * st, 4)}, {acc if st else 0}")
        streams = []
        if c < 3:
            toks = [p.tok() for _ in range(14)]
            streams.append(Stream(([ck[c + 1].test()] if c else []) + hid_loads(c + 1, opt("hgap", 3), toks), opt("h2at", 0) if c else 0, 66))
        if c < 2:
            streams.append(Stream([ck[c + 2].load()], opt("ck3at", 50), opt("ck3at", 50) + 1))
        if c == 0:
            streams.append(Stream(signal3(3, ts3), opt("s33at", 45), opt("s33at", 45) + 1))
        fl = []
        if c:
            for x in red_write(c - 1):
                fl += [x, Delay(2)]
            fl += [Delay(3), [wait_all(vm=False), Ins("s_barrier")]] + red_post(c - 1) + [Delay(1)]
        streams.append(Stream(fl + red_pre(c), 4, 70))
        sched(p, mf, 2, {}, streams, pre)
    stamp(p, 24)
    p.add(red_write(3))
    p.wait_all(vm=False)
    p.e("s_barrier")
    p.add(flat([x for x in red_post(3, pk=True) if not isinstance(x, Delay)]))
    stamp(p, 25)


def kernel():
    p = Prog()
    prologue(p, "L_end")
    p.e(f"s_cmp_ge_u32 {s(S_IDX)}, 20")
    p.e("s_cbranch_scc1 L_other")
    p.save("entry")
    tok_st = p0_conv(p)
    p.label("L_stage")
    p.e(f"s_cmp_eq_u32 {s(S_W)}, 3")
    p.e("s_cbranch_scc1 L_stage3")
    p.save("stage")
    w1_stage(p, False, tok_st)
    p.label("L_staged")
    p.wait_all()
    p.e(f"s_cmp_ge_u32 {s(S_IDX)}, 20")
    p.e("s_cbranch_scc1 L_noconv")
    conv_addr(p)
    p.e(f"s_cmp_lg_u32 {s(S_W)}, 0")
    p.e("s_cbranch_scc1 L_nopoll")
    c1 = Check(R_WS, V_POL, None, 0, 16)
    p.add(c1.load())
    p.add(c1.test())
    p.label("L_nopoll")
    p.e("s_barrier")
    stamp(p, 6)
    tu, tx = conv_load_u(p)
    pol2_addr(p)
    conv_build_t(p)
    p.wait(tu)
    stamp(p, 7)
    th0 = p.tok()
    tc2, tc3, ck1 = conv_main(p, tx, th0)
    stamp(p, 13)
    p.label("L_g1")
    p.e(f"s_cmp_eq_u32 {s(S_W)}, 3")
    p.e("s_cbranch_scc1 L_g1w3")
    p.save("g1")
    ts3, ck31 = gemm1(p, False, th0, tc2, tc3, ck1)
    p.label("L_g2")
    gemm2(p, ts3, ck31)
    if STAMPS:
        p.wait_all()
        stamp(p, 26)
        stamp_flush(p)
    p.label("L_end")
    p.e("s_endpgm")
    p.label("L_g1w3")
    p.restore("g1")
    gemm1(p, True, th0, tc2, tc3, ck1)
    p.e("s_branch L_g2")
    p.label("L_stage3")
    p.restore("stage")
    w1_stage(p, True, tok_st)
    p.e("s_branch L_staged")
    p.label("L_noconv")
    p.reset()
    pol2_addr(p)
    p.e(f"v_mov_b32 {v(V_SIG)}, {OOB}")
    ckw, ck0 = CKW(), CK2(0)
    p.add(ckw.load())
    p.add(ckw.test())
    stamp(p, 6)
    p.add(flat(w2_loads(0, NW2_CONV)))
    p.wait_all()
    stamp(p, 7)
    p.e(f"s_cmp_lg_u32 {s(S_W)}, 0")
    p.e("s_cbranch_scc1 L_nopoll2")
    p.add(ck0.load())
    p.add(ck0.test())
    p.label("L_nopoll2")
    p.e("s_barrier")
    stamp(p, 11)
    p.add(flat(h_dma(0, None)))
    p.add(CK2(1).load())
    p.wait_all()
    p.e("s_branch L_g1")
    p.label("L_other")
    p.restore("entry")
    p.e(f"s_cmp_ge_u32 {s(S_IDX)}, 28")
    p.e("s_cbranch_scc1 L_prep")
    p0_stats(p)
    p.e("s_branch L_stage")
    p.label("L_prep")
    p.restore("entry")
    p0_prep(p)
    p.e("s_branch L_stage")
    emit_slow(p)
    return p


def build():
    head = open(f"cdna_kernels/{NAME}.s.ref").read().split("; Override launch")[0]
    label = NAME + "_kernel"
    body, st = finalize(kernel())
    print(f"instr {st.n} waits {st.waits} nop-states {st.nops}", file=sys.stderr)
    body = body.replace(" ; soft", "")
    return head + f"""; Generated by gen2.py: one persistent launch, one workgroup per CU.
; @launch grid=(256,1,1) block=(256,1,1) lds={LDS_BYTES}
.amdgcn_target "amdgcn-amd-amdhsa--gfx950"
.text
.globl {label}
.p2align 8
.type {label},@function
{label}:
{body}L_code_end:
.section .rodata,"a"
.p2align 6
.amdhsa_kernel {label}
  .amdhsa_next_free_vgpr 512
  .amdhsa_next_free_sgpr 102
  .amdhsa_accum_offset 256
  .amdhsa_group_segment_fixed_size 0
  .amdhsa_kernarg_size 112
  .amdhsa_user_sgpr_count 2
  .amdhsa_user_sgpr_kernarg_segment_ptr 1
  .amdhsa_system_sgpr_workgroup_id_x 1
  .amdhsa_float_denorm_mode_32 3
.end_amdhsa_kernel
"""


if __name__ == "__main__":
    for o in sys.argv[2:]:
        k, _, val = o.partition("=")
        OPTS[k] = val.replace("_", " ") if val else "1"
    STAMPS = "stamps" in OPTS
    open(sys.argv[1], "w").write(build())
```

```python
import re

REG_RE = re.compile(r"\b([vas])(\d+)\b|\b([vas])\[(\d+):(\d+)\]|\b(vcc|exec|m0|vcc_lo|vcc_hi|exec_lo|exec_hi)\b")


def v(i, n=1):
    return f"v{i}" if n == 1 else f"v[{i}:{i + n - 1}]"


def a(i, n=1):
    return f"a{i}" if n == 1 else f"a[{i}:{i + n - 1}]"


def s(i, n=1):
    return f"s{i}" if n == 1 else f"s[{i}:{i + n - 1}]"


def r(i, n=1):
    if i < 256:
        assert i + n <= 256, (i, n)
        return v(i, n)
    return a(i - 256, n)


def parse_regs(tok):
    out = []
    for m in REG_RE.finditer(tok):
        if m.group(1):
            out.append((m.group(1), int(m.group(2))))
        elif m.group(3):
            out += [(m.group(3), k) for k in range(int(m.group(4)), int(m.group(5)) + 1)]
        else:
            nm = m.group(6)
            out.append(("x", nm.split("_")[0]))
    return out


TRANS = ("v_exp_f32", "v_log_f32", "v_rcp_f32", "v_rsq_f32", "v_sqrt_f32", "v_sin_f32", "v_cos_f32")
S_NODST = ("s_cmp", "s_waitcnt", "s_barrier", "s_nop", "s_branch", "s_cbranch", "s_sleep", "s_setprio",
           "s_endpgm", "s_bitcmp")


class Ins:
    __slots__ = ("text", "op", "kind", "reads", "writes", "tok", "passes", "srcc", "wide_store", "pseudo", "arg",
                 "ab")

    def __init__(self, text, tok=None, pseudo=None, arg=None):
        self.text = text
        self.tok = tok
        self.pseudo = pseudo
        self.arg = arg
        self.reads = set()
        self.writes = set()
        self.kind = "pseudo"
        self.op = ""
        self.passes = 0
        self.srcc = set()
        self.ab = set()
        self.wide_store = set()
        if pseudo is None:
            self._parse()

    def _parse(self):
        t = self.text.split(";")[0].strip()
        parts = t.split(None, 1)
        op = self.op = parts[0]
        rest = parts[1] if len(parts) > 1 else ""
        ops, depth, cur = [], 0, ""
        for ch in rest:
            if ch in "[(":
                depth += 1
            if ch in "])":
                depth -= 1
            if ch == "," and depth == 0:
                ops.append(cur.strip())
                cur = ""
            else:
                cur += ch
        if cur.strip():
            ops.append(cur.strip())
        regs = [parse_regs(o) for o in ops]
        flat = lambda xs: set(x for l in xs for x in l)
        if op.startswith("v_mfma"):
            self.kind = "mfma"
            self.writes = set(regs[0])
            self.ab = flat(regs[1:3])
            self.srcc = set(regs[3])
            self.reads = self.ab | self.srcc
            self.passes = 8 if "32x32" in op else 4
        elif op.startswith("v_"):
            self.kind = "trans" if op.startswith(TRANS) else "valu"
            self.writes = set(regs[0])
            self.reads = flat(regs[1:])
            if op.startswith(("v_fmac", "v_dot2c", "v_writelane")) or "_dpp" in op:
                self.reads |= self.writes
            if "_swap" in op:
                self.reads = self.writes = flat(regs)
            if op.startswith("v_cndmask") and len(ops) == 3:
                self.reads.add(("x", "vcc"))
            if op.startswith(("v_add_co", "v_sub_co", "v_addc_co", "v_mad_u64")):
                self.writes = flat(regs[:2])
                self.reads = flat(regs[2:])
            self.reads.add(("x", "exec"))
        elif op.startswith("ds_"):
            self.kind = "ds"
            if op.startswith(("ds_read", "ds_bpermute", "ds_permute", "ds_swizzle")) or "_rtn" in op:
                self.writes = set(regs[0])
                self.reads = flat(regs[1:])
            else:
                self.reads = flat(regs)
        elif op.startswith(("buffer_", "global_")):
            self.kind = "vmem"
            mods = rest.split()
            is_lds = "lds" in mods or "_lds_" in op
            if is_lds:
                self.reads = flat(regs) | {("x", "m0")}
            elif "_load" in op:
                self.writes = set(regs[0])
                self.reads = flat(regs[1:])
            elif "_atomic" in op and "sc0" in mods:
                self.writes = set(regs[0])
                self.reads = flat(regs) if op.startswith("buffer") else flat(regs[1:])
            else:
                self.reads = flat(regs)
                if op.endswith(("x3", "x4")) and "_store" in op:
                    self.wide_store = set(regs[0] if op.startswith("buffer") else regs[1])
        elif op.startswith("s_atomic") or "async" in self.text:
            self.kind = "salu"
            self.reads = flat(regs if op.startswith("s_atomic") else regs[1:])
        elif op.startswith(("s_load", "s_memtime", "s_memrealtime", "s_buffer_load")):
            self.kind = "smem"
            self.writes = set(regs[0])
            self.reads = flat(regs[1:])
        elif op.startswith("s_"):
            self.kind = "salu"
            if op.startswith(S_NODST):
                self.reads = flat(regs)
            else:
                self.writes = set(regs[0])
                self.reads = flat(regs[1:])
                if op.startswith(("s_addk", "s_mulk", "s_cmov")):
                    self.reads |= self.writes
                if "saveexec" in op:
                    self.writes.add(("x", "exec"))
                    self.reads.add(("x", "exec"))
            if op.startswith("s_cbranch_vcc"):
                self.reads.add(("x", "vcc"))
        else:
            raise ValueError("unknown op: " + self.text)


class Prog:
    def __init__(self):
        self.ins = []
        self.ntok = 0

    def e(self, text, tok=None):
        i = Ins(text, tok)
        self.ins.append(i)
        return i

    def tok(self):
        self.ntok += 1
        return self.ntok

    def add(self, items):
        for it in items:
            self.ins.append(it if isinstance(it, Ins) else Ins(it))

    def label(self, name, soft=False):
        self.ins.append(Ins(name + ":", pseudo="raw" if soft else "label"))

    def raw(self, text):
        self.ins.append(Ins(text, pseudo="raw"))

    def comment(self, text):
        self.ins.append(Ins("; " + text, pseudo="raw"))

    def wait(self, tok):
        self.ins.append(wait(tok))

    def wait_all(self, vm=True, lgkm=True):
        self.ins.append(wait_all(vm, lgkm))

    def save(self, name):
        self.ins.append(Ins("", pseudo="save", arg=name))

    def restore(self, name):
        self.ins.append(Ins("", pseudo="restore", arg=name))

    def reset(self):
        self.ins.append(Ins("", pseudo="reset"))


def wait(tok):
    return Ins("", pseudo="wait", arg=tok)


def wait_all(vm=True, lgkm=True):
    return Ins("", pseudo="waitall", arg=(vm, lgkm))


LG_AGE = 14
SM_WINDOW = 1100
DUMMY_DS = "ds_read_b32 v16, v9"


class Stats:
    def __init__(self):
        self.nops = 0
        self.waits = 0
        self.smblock = 0
        self.dummies = 0
        self.n = 0


def finalize(prog, verbose=False):
    out = []
    vm, lg = [], []
    saved = {}
    hist = []
    slot = [0]
    st = Stats()
    done_toks = set()
    smq, cyc, pipe, last_ds = [], [0], [0], [None]

    def emit(text, states=1, ins=None):
        if ins is not None and ins.kind == "mfma":
            cyc[0] = max(cyc[0], pipe[0])
            pipe[0] = cyc[0] + 4 * ins.passes
            cyc[0] += 4
        cyc[0] += 4 * states
        if ins is not None and (ins.op.startswith("s_atomic") or "async" in ins.text):
            smq.append(cyc[0] + (0.5 if "async" in ins.text else 0))
        if ins is not None and ins.op == "s_cbranch_scc1" and "L_slow" in ins.text:
            smq[:] = [q for q in smq if q == int(q)]
        out.append(text)
        if ins is not None:
            hist.append((ins, slot[0]))
            if len(hist) > 40:
                del hist[0]
        slot[0] += states

    def do_wait(nvm, nlg):
        parts = []
        if nvm is not None:
            nvm = min(nvm, 63)
            for w in vm[: max(0, len(vm) - nvm)]:
                done_toks.add(w[1])
            del vm[: max(0, len(vm) - nvm)]
            parts.append(f"vmcnt({nvm})")
        if nlg is not None:
            if any(x[2] for x in lg):
                nlg = 0
            nlg = min(nlg, 15)
            pend = [q for q in smq if cyc[0] - q < SM_WINDOW]
            if nlg < len(pend) and lg and nvm != 0 and not any(x[2] for x in lg) and last_ds[0] is not None:
                for _ in range(len(pend) - nlg):
                    out.insert(last_ds[0] + 1, DUMMY_DS)
                    lg.append((set(), "dummy", False, lg[-1][3]))
                    st.dummies += 1
                nlg = len(pend)
            if nlg < len(pend):
                out.append(f"; NOTE: this wait may block on {len(pend)} scalar ops, youngest {cyc[0] - pend[-1]} cycles old")
                st.smblock += 1
                smq.clear()
            for w in lg[: max(0, len(lg) - nlg)]:
                done_toks.add(w[1])
            del lg[: max(0, len(lg) - nlg)]
            parts.append(f"lgkmcnt({nlg})")
        if parts:
            emit("s_waitcnt " + " ".join(parts))
            st.waits += 1

    def need(q, pred):
        n = None
        for k, w in enumerate(q):
            if pred(w):
                n = len(q) - 1 - k
        return n

    def pad(n):
        while n > 0:
            k = min(n, 16)
            emit(f"s_nop {k - 1}", states=k)
            st.nops += k
            n -= k

    def hazard_need(i):
        worst = 0
        for p, ps in hist:
            dist = slot[0] - ps - 1
            req = 0
            if p.kind == "mfma":
                big = p.passes == 8
                if i is None:
                    req = 12 if big else 8
                elif i.kind == "mfma":
                    if p.writes & i.ab:
                        req = 12 if big else 8
                    elif p.writes & i.srcc:
                        if not (p.writes == i.srcc and p.passes == i.passes):
                            req = 10 if big else 6
                    elif p.writes & i.writes:
                        req = 10 if big else 6
                elif i.kind in ("valu", "trans", "ds", "vmem"):
                    if p.writes & (i.reads | i.writes):
                        req = 12 if big else 8
                    if i.kind in ("valu", "trans") and p.srcc & i.writes:
                        req = max(req, 7 if big else 3)
            elif p.kind in ("valu", "trans"):
                pw_v = {x for x in p.writes if x[0] in "va"}
                pw_s = {x for x in p.writes if x[0] == "s" or x == ("x", "vcc")}
                if i is None:
                    req = 5 if pw_s else 3
                else:
                    if i.kind == "mfma" and pw_v & i.reads:
                        req = 2
                    if p.op.startswith("v_dot") and pw_v & (i.reads | i.writes):
                        chain = i.op == p.op and i.writes == p.writes and i.text.count(i.text.split()[1].rstrip(",")) == 2
                        if not chain:
                            req = max(req, 3)
                    if i.kind in ("valu", "trans"):
                        if p.kind == "trans" and i.kind == "valu" and pw_v & i.reads:
                            req = max(req, 1)
                        if ("_dpp" in i.op or "permlane" in i.op) and pw_v & i.reads:
                            req = max(req, 2)
                        if i.op.startswith(("v_readlane", "v_readfirstlane")) and pw_v & i.reads:
                            req = max(req, 1)
                        if pw_s & i.reads:
                            req = max(req, 4 if i.op.startswith(("v_readlane", "v_writelane")) else 2)
                        if ("sdwa" in p.op or "op_sel:" in p.text) and pw_v & (i.reads | i.writes):
                            req = max(req, 1)
                    if i.kind == "vmem" and pw_s & i.reads:
                        req = max(req, 5)
                    if i.kind in ("salu", "smem") and pw_s & i.reads:
                        req = max(req, 1)
                    if ("x", "exec") in p.writes:
                        req = max(req, 5)
            elif p.kind == "salu":
                if ("x", "m0") in p.writes and (i is None or (i.kind == "vmem" and ("x", "m0") in i.reads)):
                    req = 1
            elif p.kind == "vmem":
                if p.wide_store and (i is None or p.wide_store & i.writes):
                    req = 2
            worst = max(worst, req - dist)
        return worst

    for i in prog.ins:
        if i.pseudo == "raw":
            out.append(i.text)
            continue
        if i.pseudo == "label":
            last_ds[0] = None
            pad(hazard_need(None))
            out.append(i.text)
            continue
        if i.pseudo == "save":
            saved[i.arg] = (list(vm), list(lg), set(done_toks))
            continue
        if i.pseudo == "restore":
            vm[:], lg[:] = list(saved[i.arg][0]), list(saved[i.arg][1])
            done_toks.clear()
            done_toks.update(saved[i.arg][2])
            hist.clear()
            smq.clear()
            continue
        if i.pseudo == "reset":
            for w in vm + lg:
                done_toks.add(w[1])
            vm.clear()
            lg.clear()
            continue
        if i.pseudo == "wait":
            toks = i.arg if isinstance(i.arg, (list, tuple, set)) else [i.arg]
            for t in toks:
                assert t in done_toks or any(w[1] == t for w in vm + lg), f"wait on unknown token {t}"
            do_wait(need(vm, lambda w: w[1] in toks), need(lg, lambda w: w[1] in toks))
            continue
        if i.pseudo == "waitall":
            do_wait(0 if i.arg[0] else None, 0 if (i.arg[1] and (i.arg[0] or any(w[0] or w[1] != "dummy" for w in lg))) else None)
            continue
        touched = i.reads | i.writes
        nvm = need(vm, lambda w: w[0] & touched)
        nlg = need(lg, lambda w: w[0] & touched)
        if nlg is not None:
            old = need(lg, lambda w: slot[0] - w[3] >= LG_AGE)
            if old is not None:
                nlg = min(nlg, max(old, len([q for q in smq if cyc[0] - q < SM_WINDOW])))
        do_wait(nvm, nlg)
        if i.op.startswith(("s_branch", "s_cbranch")) and "soft" not in i.text:
            pad(max(hazard_need(None) - 1, hazard_need(i)))
        else:
            pad(hazard_need(i))
        states = 1
        if i.op == "s_nop":
            states = int(i.text.split()[1], 0) + 1
        emit(i.text, states, i)
        st.n += 1
        if i.op == "s_waitcnt":
            raise ValueError("use wait()/wait_all()")
        if i.kind == "vmem" and not i.op.startswith(("buffer_wbl2", "buffer_inv")):
            vm.append((i.writes, i.tok, False, slot[0]))
        elif i.kind == "ds":
            lg.append((i.writes, i.tok, False, slot[0]))
            last_ds[0] = len(out) - 1
        elif i.kind == "smem":
            lg.append((i.writes, i.tok, True, slot[0]))
    if verbose:
        print(f"; instr {st.n} waits {st.waits} nop-states {st.nops}")
    lines = []
    for t in out:
        lines.append(t if t.endswith(":") or t.startswith((".", ";")) else "    " + t)
    return "\n".join(lines) + "\n", st


def merge(main, fill, start=0, end=None, per=None):
    main = list(main)
    fill = list(fill)
    end = len(main) if end is None else end
    n = end - start
    out = []
    k = 0
    for j, m in enumerate(main):
        out.append(m)
        if start <= j < end:
            if per is None:
                want = (len(fill) * (j - start + 1) + n - 1) // n
            else:
                want = min(len(fill), k + per)
                if j == end - 1:
                    want = len(fill)
            while k < want:
                out.append(fill[k])
                k += 1
    assert k == len(fill)
    return out


def flat(x):
    out = []
    for i in x:
        if isinstance(i, (list, tuple)):
            out += flat(i)
        else:
            out.append(i)
    return out


class Delay:
    def __init__(self, n):
        self.n = n


class Stream:
    def __init__(self, items, start=0, end=None):
        self.items = [x if isinstance(x, (Ins, Delay, list)) else Ins(x) for x in items if x is not None]
        self.items = [[y if isinstance(y, Ins) else Ins(y) for y in x] if isinstance(x, list) else x for x in self.items]
        self.start, self.end, self.pos, self.hold = start, end, 0, 0


def _cost(x):
    if isinstance(x, Delay):
        return 0
    if isinstance(x, list):
        return sum(_cost(y) for y in x)
    if x.pseudo == "raw":
        return 0
    if x.kind in ("trans", "mfma"):
        return 2
    if x.op.startswith("ds_write_b128"):
        return 3
    return 1


def _ismem(x):
    if isinstance(x, list):
        return any(_ismem(y) for y in x)
    return isinstance(x, Ins) and x.kind in ("ds", "vmem")


def _isvalu(x):
    if isinstance(x, list):
        return any(_isvalu(y) for y in x)
    return isinstance(x, Ins) and x.kind in ("valu", "trans")


def sched(p, mfmas, cap, fixed, streams, pre=None):
    n = len(mfmas)
    pre = pre or {}
    for st in streams:
        st.end = n if st.end is None else min(st.end, n)
    toins = lambda l: [y if isinstance(y, Ins) else Ins(y) for y in l]
    fixed = {g: toins(l) for g, l in fixed.items()}
    pre = {g: toins(l) for g, l in pre.items()}
    fcost = [_cost(fixed.get(g, [])) + _cost(pre.get(g + 1, [])) for g in range(n)]
    debt = 0.0
    for g in range(n):
        p.add(pre.get(g, []))
        p.add([mfmas[g]])
        p.add(fixed.get(g, []))
        act = [st for st in streams if st.start <= g and st.pos < len(st.items)]
        budget = cap - fcost[g]
        for e in sorted(set(st.end for st in act)):
            if e <= g:
                continue
            rem = sum(_cost(x) for st in streams if st.end <= e for x in st.items[st.pos:])
            free = sum(max(0, cap - fcost[k]) for k in range(g, e))
            if rem > free:
                budget = max(budget, cap - fcost[g] + (rem - free) / (e - g))
        budget += debt
        used = 0
        valu_seen = _isvalu(fixed.get(g, []))
        for phase in (0, 1):
            for st in act:
                while st.pos < len(st.items):
                    force = g >= st.end - 1
                    x = st.items[st.pos]
                    if isinstance(x, Delay):
                        st.hold = g + x.n
                        st.pos += 1
                        continue
                    if st.hold > g and not force:
                        break
                    if phase == 0 and _isvalu(x) and not _ismem(x):
                        break
                    if phase == 0 and not _ismem(x):
                        nx = st.items[st.pos + 1] if st.pos + 1 < len(st.items) else None
                        if not (nx is not None and _ismem(nx)):
                            break
                    if _ismem(x) and valu_seen and not force:
                        break
                    c = _cost(x)
                    if used + c > budget + 0.5 and not force and not (used == 0 and c > cap and budget > 0):
                        break
                    p.add(x if isinstance(x, list) else [x])
                    used += c
                    valu_seen = valu_seen or _isvalu(x)
                    st.pos += 1
        debt = max(-2.0, min(1.0, budget - used)) if budget > cap - fcost[g] else 0.0
    for st in streams:
        assert st.pos == len(st.items), "stream not finished"
```

```python
import sys, struct
from dsl import *

NAME = "sequential_preLN__ssm_conv_h3__mixer_channel_mlp__prompt"

UT, XT, HB, HID, W2P, ST, CTR = 0, 0x280000, 0x500000, 0x780000, 0xE80000, 0x10B0000, 0x10C0000
STAMP = 0x1100000
W1P = 0x1180000
W1R = W1P + 48 * 40 * 1024
CSP = 0x10B4000
WS_BYTES = 0x1400000
CTR3, CTR2, CTR1, CTR1X, CTRS, CTRW, CTRA = (CTR + k * 128 for k in (0, 256, 768, 788, 808, 872, 936))
OOB = 0x40000000
L_T, L_U, L_X, L_ST, L_HA, L_MISC = 0, 66560, 84992, 101376, 117760, 158720
L_KT = 66560
L_HBUF = [L_HA, 0, 40960, L_HA]
L_RES = 81920
L_RED = [0, 21504]
LDS_BYTES = 163840
R_Q, R_K, R_V, R_SSM, R_W1, R_W2, R_OUT, R_WS, R_SH, R_D, R_B1, R_B2, R_DBG = range(4, 56, 4)
S_W, S_XCD, S_IDX, S_CW, S_G, S_DS, S_M, S_T = range(56, 64)
S_TO = 64
S_A, S_B, S_C, S_E, S_F, S_H = 65, 66, 67, 68, 69, 70
S_PO, S_P2, S_HI, S_PL, S_PH = 71, 72, 73, 74, 75
S_MK = 76
S_HST, S_HLD, S_WL, S_W2B, S_C3A, S_C3P, S_HIS, S_HIL, S_OSO, S_CKW, S_W1B, S_CKA = range(84, 96)
S_STMP = 96
S_ROLE, S_RT, S_RO = 3, 100, 101
S_ONE, S_SG2, S_PL2, S_SG1, S_Q0, S_Q1, S_CV = 12, 13, 14, 15, 16, 17, 18
S_CK1 = R_W2
srd = lambda b: s(b, 4)
SIZES = {R_K: 2621440, R_V: 2621440, R_SH: 5120, R_Q: 2621440, R_SSM: 2621440, R_W1: 2211840, R_W2: 2211840,
         R_OUT: 2621440, R_WS: WS_BYTES, R_D: 1280, R_B1: 3456, R_B2: 1280, R_DBG: 256}
KARG = {R_K: 8, R_V: 16, R_SH: 24, R_Q: 0, R_SSM: 32, R_D: 40, R_W1: 56, R_B1: 64, R_W2: 72, R_B2: 80, R_OUT: 88,
        R_DBG: 96, R_WS: 104}
(G_VA, G_VB, G_VD, G_VSH, G_VST, G_VRR, G_VRW, G_X0, G_X1, G_ONE, H_VW, H_VR, H_VRES, H_VO, V_SIG, V_POL, V_PT,
 V_STAMP) = range(2, 20)
A0 = 256
A_P = 160
W2LOC = ([A0 + 228 + 4 * i for i in range(7)] + [128 + 4 * i for i in range(8)] + [A0 + 164 + 4 * i for i in range(16)]
         + [160 + 4 * i for i in range(24)] + [A0 + 4 * i for i in range(15)])
NW2_G1 = 55
HIDBUF = [[A0 + 60 + 4 * i for i in range(14)], [A0 + 116 + 4 * i for i in range(11)] + [112, 116, 120]]
V_W1, V_SIG1, V_POL1, V_PA = 20, 26, 27, 254
SSM_RAW = 232

OPTS = {}
STAMPS = False
opt = lambda k, d: int(OPTS.get(k, d))


def f32(x):
    return "0x%08x" % struct.unpack("<I", struct.pack("<f", x))[0]


def stamp_l(k, force=False):
    if force:
        pass
    elif not STAMPS or ("entry" in OPTS and k in (12, 13)) or (OPTS["stamps"] != "1" and k not in (0, 26) and str(k) not in OPTS["stamps"].split(",")):
        return []
    return [[f"s_memrealtime {s(S_STMP, 2)}", f"s_memtime {s(S_STMP + 2, 2)}" if "spin" not in OPTS else f"s_sub_u32 {s(S_STMP + 2)}, 0x40000, {s(S_TO)}",
             f"v_writelane_b32 {v(V_STAMP)}, {s(S_STMP + 2)}, {32 + k}", f"v_writelane_b32 {v(V_STAMP)}, {s(S_STMP)}, {k}"]]


def stamp(p, k):
    p.add(flat(stamp_l(k)))
    if STAMPS and k == 0:
        p.e(f"v_writelane_b32 {v(V_STAMP)}, s84, 31")
        if "entry" in OPTS:
            p.e(f"v_writelane_b32 {v(V_STAMP)}, s86, 12")
            p.e(f"v_writelane_b32 {v(V_STAMP)}, s88, 13")


def stamp_flush(p):
    if not STAMPS:
        return
    p.e(f"s_lshl_b32 {s(S_A)}, s2, 2")
    p.e(f"s_add_u32 {s(S_A)}, {s(S_A)}, {s(S_W)}")
    p.e(f"s_lshl_b32 {s(S_A)}, {s(S_A)}, 8")
    p.e(f"s_add_u32 {s(S_A)}, {s(S_A)}, {STAMP}")
    p.e("v_lshlrev_b32 v2, 2, v1")
    p.e(f"buffer_store_dword {v(V_STAMP)}, v2, {srd(R_WS)}, {s(S_A)} offen")


def prologue(p, first):
    order = list(first) + [b for b in KARG if b not in first]
    if STAMPS:
        p.e("s_memrealtime s[86:87]")
    for b in [x for x in first if x not in (R_Q, R_WS)]:
        p.e(f"s_load_dwordx2 {s(b, 2)}, s[0:1], {KARG[b]}")
    if STAMPS:
        p.e(f"v_mov_b32 {v(V_STAMP)}, 0")
    p.e("v_and_b32 v1, 63, v0")
    p.e("v_lshrrev_b32 v2, 6, v0")
    p.e(f"s_mov_b32 {s(R_K + 2)}, 2621440")
    p.e(f"s_mov_b32 {s(R_K + 3)}, 0x20000")
    descs(p, first)
    p.e(f"v_readfirstlane_b32 {s(S_W)}, v2")
    p.e(f"s_and_b32 {s(S_XCD)}, s2, 7")
    if STAMPS:
        p.e("s_memrealtime s[88:89]")


def descs(p, which):
    for b in which:
        if b == R_K:
            continue
        if SIZES[b] == 2621440:
            p.e(f"s_mov_b64 {s(b + 2, 2)}, {s(R_K + 2, 2)}")
        else:
            p.e(f"s_mov_b32 {s(b + 2)}, {SIZES[b]}")
            p.e(f"s_mov_b32 {s(b + 3)}, {s(R_K + 3)}")


def prologue2(p):
    for b in (R_OUT, R_DBG, R_B1):
        p.e(f"s_load_dwordx2 {s(b, 2)}, s[0:1], {KARG[b]}")
    descs(p, (R_WS, R_OUT, R_DBG, R_B1))
    p.e(f"s_cmp_eq_u32 {s(S_W)}, 0")
    p.e(f"s_cselect_b32 {s(S_RT)}, 1, 0")
    p.e(f"s_cselect_b32 {s(S_RO)}, 0, 4096")
    p.e(f"s_lshr_b32 {s(S_G)}, {s(S_XCD)}, 1")
    p.e(f"s_lshl_b32 {s(S_G)}, {s(S_G)}, 2")
    p.e(f"s_lshr_b32 {s(S_M)}, {s(S_IDX)}, 3")
    p.e(f"s_add_u32 {s(S_G)}, {s(S_G)}, {s(S_M)}")
    p.e(f"s_and_b32 {s(S_DS)}, {s(S_IDX)}, 7")
    p.e(f"s_and_b32 {s(S_T)}, {s(S_XCD)}, 1")
    p.e(f"s_lshl_b32 {s(S_M)}, {s(S_T)}, 3")
    p.e(f"s_add_u32 {s(S_M)}, {s(S_M)}, {s(S_DS)}")
    if opt("map42", 1):
        p.e(f"s_lshl_b32 {s(S_A)}, {s(S_T)}, 2")
        p.e(f"s_lshr_b32 {s(S_T)}, {s(S_DS)}, 2")
        p.e(f"s_and_b32 {s(S_DS)}, {s(S_DS)}, 3")
        p.e(f"s_add_u32 {s(S_DS)}, {s(S_DS)}, {s(S_A)}")
    p.e(f"s_mov_b32 {s(S_TO)}, 0x20000")
    p.e(f"s_mov_b32 {s(S_HI)}, 0xffff0000")
    p.e(f"s_mov_b32 {s(S_PL)}, 0x05040100")
    p.e(f"s_mov_b32 {s(S_PH)}, 0x07060302")
    p.e(f"v_mov_b32 {v(G_ONE)}, 1")
    p.e(f"v_lshlrev_b32 {v(G_VD)}, 4, v1")
    p.e(f"v_lshlrev_b32 {v(G_X0)}, 3, v1")
    p.e(f"v_min_u32 {v(G_X1)}, 1, v1")
    p.e(f"v_lshlrev_b32 {v(G_X1)}, 30, {v(G_X1)}")


def dma(vaddr, rs, soff, tok=None, mods=""):
    return Ins(f"buffer_load_dwordx4 {v(vaddr)}, {srd(rs)}, {soff} offen{mods} lds", tok)


SLOW = []


class Check:
    n = 0

    def __init__(self, rs, voff, sbase, add, target):
        self.rs, self.voff, self.sbase, self.addc, self.target = rs, voff, sbase, add, target
        if "nosync" in OPTS:
            self.target = 0

    def _ld(self, sreg):
        so = [f"s_add_u32 {s(sreg)}, {s(self.sbase)}, {self.addc}" if self.sbase is not None
              else f"s_mov_b32 {s(sreg)}, {self.addc}"]
        if self.voff is None:
            return so + [f"buffer_load_dword {v(V_PT)}, off, {srd(self.rs)}, {s(sreg)} sc1"]
        return so + [f"buffer_load_dword {v(V_PT)}, {v(self.voff)}, {srd(self.rs)}, {s(sreg)} offen sc1"]

    def load(self):
        return self._ld(S_P2)

    def test(self):
        Check.n += 1
        k = Check.n
        SLOW.append((k, self))
        return [Ins(f"v_cmp_gt_u32 vcc, {self.target}, {v(V_PT)}"), Ins(f"s_cbranch_vccnz L_slow{k} ; soft"),
                Ins(f"L_ret{k}:", pseudo="raw")]


class SCheck(Check):
    def __init__(self, ssamp, offs, *args):
        super().__init__(*args)
        self.ssamp, self.offs = ssamp, offs

    def load(self):
        out = [f"s_mov_b64 {s(S_Q0, 2)}, 0"]
        for k, o in enumerate(self.offs):
            out.append(f"s_load_dword {s(S_Q0 + k)}, {s(R_WS, 2)}, {s(self.ssamp)} offset:{o} ; async")
        return out

    def test(self):
        Check.n += 1
        k = Check.n
        SLOW.append((k, self))
        out = []
        q = S_Q0
        if len(self.offs) == 2:
            out.append(Ins(f"s_min_u32 {s(S_P2)}, {s(S_Q0)}, {s(S_Q1)}"))
            q = S_P2
        return out + [Ins(f"s_cmp_lt_u32 {s(q)}, {self.target}"), Ins(f"s_cbranch_scc1 L_slow{k} ; soft"),
                      Ins(f"L_ret{k}:", pseudo="raw")]


def emit_slow(p):
    for k, c in SLOW:
        p.label(f"L_slow{k}")
        p.reset()
        p.add(c._ld(S_PO))
        if isinstance(c, SCheck):
            p.wait_all()
        if "spin" in OPTS:
            p.e(f"s_sub_u32 {s(S_TO)}, {s(S_TO)}, 1")
        if "cnt" in OPTS:
            print("check", SLOW.index((k, c)), type(c).__name__, hex(c.addc), c.target, file=sys.stderr)
            p.e(f"v_readlane_b32 {s(S_STMP)}, {v(V_STAMP)}, {33 + SLOW.index((k, c))}")
            p.e(f"s_add_u32 {s(S_STMP)}, {s(S_STMP)}, 1")
            p.e(f"v_writelane_b32 {v(V_STAMP)}, {s(S_STMP)}, {33 + SLOW.index((k, c))}")
        p.e(f"v_cmp_gt_u32 vcc, {c.target}, {v(V_PT)}")
        p.e(f"s_cbranch_vccz L_ret{k} ; soft")
        p.e(f"s_sub_u32 {s(S_TO)}, {s(S_TO)}, 1")
        p.e(f"s_cbranch_scc0 L_slow{k} ; soft")
        p.e(f"s_mov_b32 {s(S_TO)}, 0")
        p.e(f"s_branch L_ret{k} ; soft")


READY = Check(R_DBG, None, S_RO, 0, s(S_RT))


def touch_code(p):
    p.e(f"s_getpc_b64 {s(S_MK, 2)}")
    p.raw("L_pc:")
    p.e(f"s_lshl_b32 {s(S_A)}, {s(S_IDX)}, 12")
    p.e(f"v_lshl_add_u32 v251, v0, 4, {s(S_A)}")
    p.e(f"v_min_u32 v251, L_code_end-L_pc-16, v251")
    p.e(f"v_mad_u64_u32 v[252:253], vcc, v251, 1, {s(S_MK, 2)}")
    p.e(f"global_load_dwordx4 a[252:255], v[252:253], off")


def sig_rep8(p, sbase):
    p.e(f"s_lshl_b32 {s(S_SG1)}, {s(S_W)}, 11")
    p.e(f"s_add_u32 {s(S_SG1)}, {s(S_SG1)}, {s(sbase)}")


def atom(so, off=0):
    return f"s_atomic_add {s(S_ONE)}, {s(R_WS, 2)}, {s(so)} offset:{off}"


def signal(p, tok=None, ready=False, single=False):
    if tok is None:
        p.wait_all()
    else:
        p.wait(tok)
    if ready:
        p.add(READY.test())
    p.e("s_barrier")
    if single:
        Check.n += 1
        p.e(f"s_cmp_lg_u32 {s(S_W)}, 0")
        p.e(f"s_cbranch_scc1 L_nosig{Check.n} ; soft")
        p.e(atom(S_SG1))
        p.label(f"L_nosig{Check.n}", soft=True)
    else:
        p.e(atom(S_SG1))
        p.e(atom(S_SG1, 1024))


def common_addr(p, role):
    p.e(f"s_mov_b32 {s(S_ROLE)}, {role}")
    if role:
        p.e("s_branch L_addr")
    else:
        p.save("addr")
        p.label("L_addr")
        prologue2(p)
        p.e(f"s_cmp_eq_u32 {s(S_W)}, 3")
        p.e("s_cbranch_scc1 L_addr3")
        gemm_addr(p, False)
        p.label("L_addr_c")
        gemm_addr_common(p)
        p.wait_all(vm=False)
        p.e(f"s_cmp_eq_u32 {s(S_ROLE)}, 1")
        p.e("s_cbranch_scc1 L_addr_r1")
        p.e(f"s_cmp_eq_u32 {s(S_ROLE)}, 2")
        p.e("s_cbranch_scc1 L_addr_r2")
    if role:
        p.label(f"L_addr_r{role}")


def p0_conv(p):
    VA, VH, VK, VU, VX, VC = 208, 209, 210, 211, 212, 213
    W, WP, KR, VR, KF, U, VF, OUT = 32, 40, 56, 78, 94, 138, 170, 176
    prologue(p, (R_K, R_V, R_SH))
    p.e(f"s_mul_i32 {s(S_CW)}, {s(S_XCD)}, 20")
    p.e(f"s_add_u32 {s(S_CW)}, {s(S_CW)}, {s(S_IDX)}")
    p.e(f"v_lshrrev_b32 {v(VC)}, 3, v1")
    p.e(f"v_mul_u32_u24 {v(VC)}, 1280, {v(VC)}")
    p.e(f"v_and_b32 {v(VA)}, 7, v1")
    p.e(f"v_lshl_add_u32 {v(VA)}, {v(VA)}, 4, {v(VC)}")
    p.e(f"s_lshr_b32 {s(S_E)}, {s(S_CW)}, 4")
    p.e(f"s_and_b32 {s(S_F)}, {s(S_CW)}, 15")
    p.e(f"s_mul_i32 {s(S_A)}, {s(S_F)}, {128 * 1280}")
    p.e(f"s_lshl_b32 {s(S_B)}, {s(S_E)}, 7")
    p.e(f"s_add_u32 {s(S_A)}, {s(S_A)}, {s(S_B)}")
    p.e(f"s_sub_u32 {s(S_B)}, {s(S_A)}, 10240")
    p.e(f"v_add_u32 {v(VH)}, {s(S_B)}, {v(VA)}")
    p.e(f"s_mul_i32 {s(S_B)}, {s(S_W)}, {4 * 10240}")
    p.e(f"s_add_u32 {s(S_A)}, {s(S_A)}, {s(S_B)}")
    p.e(f"s_mul_i32 {s(S_C)}, {s(S_W)}, {4 * 1040}")
    p.e(f"v_lshrrev_b32 {v(VC)}, 4, v0")
    p.e(f"v_lshlrev_b32 {v(VU)}, 5, {v(VC)}")
    p.e(f"s_lshl_b32 {s(S_H)}, {s(S_E)}, 9")
    p.e(f"s_mov_b32 m0, {L_KT}")
    p.wait_all(vm=False)
    stamp(p, 0)
    p.e(f"s_cmp_lg_u32 {s(S_W)}, 0")
    p.e("s_cbranch_scc1 L_nohalo ; soft")
    p.e("s_mov_b32 exec_lo, 0")
    p.add([dma(VH, R_K, 0)])
    p.e("s_mov_b32 exec_lo, -1")
    p.label("L_nohalo", soft=True)
    p.reset()
    tkv, tx, tu = p.tok(), p.tok(), p.tok()
    p.e(f"buffer_load_dwordx4 {v(W, 4)}, {v(VU)}, {srd(R_SH)}, {s(S_H)} offen")
    p.e(f"buffer_load_dwordx4 {v(W + 4, 4)}, {v(VU)}, {srd(R_SH)}, {s(S_H)} offen offset:16")
    for rs, lb, tk in ((R_K, L_KT + 1040, tkv), (R_V, L_KT + 17680, tkv)):
        for o in range(4):
            p.e(f"s_add_u32 m0, {s(S_C)}, {lb + 1040 * o}")
            p.e(f"s_add_u32 {s(S_B)}, {s(S_A)}, {10240 * o}")
            p.add([dma(VA, rs, s(S_B), tk)])
    for b in (R_SSM, R_D):
        p.e(f"s_load_dwordx2 {s(b, 2)}, s[0:1], {KARG[b]}")
    descs(p, (R_SSM, R_D))
    def ssm_loads():
        p.e(f"s_lshl_b32 {s(S_C)}, {s(S_CW)}, 2")
        p.e(f"s_add_u32 {s(S_C)}, {s(S_C)}, {s(S_W)}")
        p.e(f"s_lshl_b32 {s(S_B)}, {s(S_C)}, 12")
        for q in range(4):
            p.e(f"buffer_load_dwordx4 {v(SSM_RAW + 4 * q, 4)}, {v(G_VD)}, {srd(R_SSM)}, {s(S_B)} offen offset:{1024 * q}")
        p.e(f"s_lshl_b32 {s(S_B)}, {s(S_C)}, 1")
        p.e(f"buffer_load_ushort {v(SSM_RAW + 16)}, off, {srd(R_D)}, {s(S_B)}")
    p.e(f"v_lshlrev_b32 {v(G_VD)}, 4, v1")
    ssm_loads()
    common_addr(p, 0)
    conv_addr(p)
    p.e(f"s_lshr_b32 {s(S_E)}, {s(S_CW)}, 4")
    p.e(f"s_and_b32 {s(S_F)}, {s(S_CW)}, 15")
    p.e(f"v_and_b32 {v(VH)}, 15, v1")
    p.e(f"v_mul_u32_u24 {v(VK)}, 1040, {v(VH)}")
    p.e(f"v_lshl_add_u32 {v(VK)}, {v(VC)}, 3, {v(VK)}")
    p.e(f"v_add_u32 {v(VK)}, {L_KT}, {v(VK)}")
    p.e(f"v_lshlrev_b32 {v(VH)}, 4, {v(VH)}")
    p.e(f"v_sub_u32 {v(VH)}, 240, {v(VH)}")
    p.e(f"v_lshl_add_u32 {v(VU)}, {v(VC)}, 14, {v(VH)}")
    p.e(f"s_lshl_b32 {s(S_B)}, {s(S_E)}, 8")
    p.e(f"s_add_u32 {s(S_B)}, {s(S_B)}, {CTR1}")
    p.e(f"s_mov_b32 {s(S_SG1)}, {s(S_B)}")
    p.e(f"s_mov_b32 {s(S_CK1)}, {s(S_B)}")
    p.e(f"s_add_u32 {s(S_A)}, {s(S_CKA)}, {CTRS}")
    p.e(f"v_add_u32 {v(V_POL1)}, {s(S_A)}, {v(V_PA)}")
    p.e(f"v_writelane_b32 {v(V_POL1)}, {s(S_B)}, 0")
    p.e(f"s_lshl_b32 {s(S_A)}, {s(S_E)}, 18")
    p.e(f"s_lshl_b32 {s(S_B)}, {s(S_F)}, 8")
    p.e(f"s_sub_u32 {s(S_A)}, {s(S_A)}, {s(S_B)}")
    for ch in range(4):
        for j in range(4):
            dst = WP + (ch >> 1) * 8 + j * 2 + (ch & 1)
            src = W + 2 * ch + (j >> 1)
            p.e(f"v_and_b32 {v(dst)}, {s(S_HI)}, {v(src)}" if j & 1 else f"v_lshlrev_b32 {v(dst)}, 16, {v(src)}")
    p.wait(tkv)
    p.e("s_barrier")
    stamp(p, 1)
    for i in range(11):
        off = 640 + 128 * i if i < 3 else 1040 + 128 * (i - 3)
        p.e(f"ds_read_b64 {v(KR + 2 * i, 2)}, {v(VK)} offset:{off}")
        if i >= 3:
            p.e(f"ds_read_b64 {v(VR + 2 * (i - 3), 2)}, {v(VK)} offset:{17680 + 128 * (i - 3)}")
    p.add(READY.load())
    def unpack(dst, src):
        p.e(f"v_lshlrev_b32 {v(dst)}, 16, {v(src)}")
        p.e(f"v_and_b32 {v(dst + 1)}, {s(S_HI)}, {v(src)}")
    for i in range(3):
        for pr in range(2):
            unpack(KF + 4 * i + 2 * pr, KR + 2 * i + pr)
    for pr in range(2):
        for t in range(8):
            unpack(KF + 4 * (t + 3) + 2 * pr, KR + 2 * (t + 3) + pr)
            unpack(VF + 2 * (t & 1), VR + 2 * t + pr)
            d = v(U + 4 * t + 2 * pr, 2)
            for j in (3, 2, 1, 0):
                kf, w = v(KF + 4 * (t + 3 - j) + 2 * pr, 2), v(WP + 8 * pr + 2 * j, 2)
                p.e(f"v_pk_mul_f32 {d}, {kf}, {w}" if j == 3 else f"v_pk_fma_f32 {d}, {kf}, {w}, {d}")
            p.e(f"v_pk_mul_f32 {d}, {d}, {v(VF + 2 * (t & 1), 2)}")
        for ch in (2 * pr, 2 * pr + 1):
            for i in range(4):
                p.e(f"v_cvt_pk_bf16_f32 {v(OUT + 4 * ch + i)}, {v(U + 4 * (7 - 2 * i) + ch)}, {v(U + 4 * (6 - 2 * i) + ch)}")
        for ch in (2 * pr, 2 * pr + 1):
            p.e(f"s_add_u32 {s(S_B)}, {s(S_A)}, {UT + 3840 + 4096 * ch}")
            p.e(f"buffer_store_dwordx4 {v(OUT + 4 * ch, 4)}, {v(VU)}, {srd(R_WS)}, {s(S_B)} offen sc1", tu)
    stamp(p, 2)
    return tu


def tile_addr(p, t0, t1, hi_shift, hi_mul, nrow, base=0):
    p.e(f"s_mul_i32 {s(S_A)}, {s(S_W)}, 5")
    p.e(f"s_and_b32 {s(S_B)}, {s(S_A)}, 1")
    p.e(f"s_lshr_b32 {s(S_A)}, {s(S_A)}, 1")
    p.e(f"s_lshl_b32 {s(S_A)}, {s(S_A)}, 10")
    p.e(f"s_lshl_b32 {s(S_E)}, {s(S_B)}, 6")
    p.e(f"s_add_u32 {s(S_A)}, {s(S_A)}, {s(S_E)}")
    if base:
        p.e(f"s_add_u32 {s(S_A)}, {s(S_A)}, {base}")
    p.e(f"s_mul_i32 {s(S_B)}, {s(S_B)}, 896")
    p.e(f"s_add_u32 {s(S_B)}, {s(S_B)}, 64")
    p.e(f"v_lshrrev_b32 {v(t0)}, {hi_shift}, v1")
    p.e(f"v_mul_u32_u24 {v(t0)}, {hi_mul}, {v(t0)}")
    p.e(f"v_bfe_u32 {v(t1)}, v1, 2, {nrow}")
    p.e(f"v_lshl_add_u32 {v(t0)}, {v(t1)}, 7, {v(t0)}")
    p.e(f"v_and_b32 {v(t1)}, 3, v1")
    p.e(f"v_lshl_add_u32 {v(t0)}, {v(t1)}, 3, {v(t0)}")
    p.e(f"v_add_u32 {v(t0)}, {s(S_A)}, {v(t0)}")
    p.e(f"v_add_u32 {v(t1)}, {s(S_B)}, {v(t0)}")


def tile_reads(p, fr, t0, t1, astep):
    for i in range(10):
        j = i >> 1
        for aa in range(2):
            p.e(f"ds_read_b64_tr_b16 {v(fr + 4 * i + 2 * aa, 2)}, {v(t1 if j & 1 else t0)} offset:{1024 * (j >> 1) + 32 * (i & 1) + astep * aa}")


def p0_stats(p):
    X, SU, SQ, VX, VW, T0, T1, T2, T3, VS, VO = 32, 72, 74, 76, 77, 78, 79, 80, 81, 82, 83
    FR, TA, TB, VR, B2 = 84, 124, 125, 126, 128
    SJ = S_H
    XB, SB = 49152, 98304
    prologue(p, (R_Q, R_W1))
    p.e(f"s_sub_u32 {s(S_C)}, {s(S_IDX)}, 20")
    p.e(f"s_lshr_b32 {s(S_E)}, {s(S_C)}, 1")
    p.e(f"s_and_b32 {s(S_F)}, {s(S_C)}, 1")
    p.e(f"s_lshl_b32 {s(S_A)}, {s(S_XCD)}, 8")
    p.e(f"s_lshl_b32 {s(S_B)}, {s(S_F)}, 7")
    p.e(f"s_add_u32 {s(S_A)}, {s(S_A)}, {s(S_B)}")
    p.e(f"s_lshl_b32 {s(S_B)}, {s(S_E)}, 2")
    p.e(f"s_add_u32 {s(S_A)}, {s(S_A)}, {s(S_B)}")
    p.e(f"s_lshl_b32 {s(S_B)}, {s(S_W)}, 5")
    p.e(f"s_add_u32 {s(S_A)}, {s(S_A)}, {s(S_B)}")
    p.e(f"s_mul_i32 {s(S_A)}, {s(S_A)}, 1280")
    p.e(f"v_lshrrev_b32 {v(VX)}, 5, v1")
    p.e(f"v_bfe_u32 {v(T0)}, v1, 3, 2")
    p.e(f"v_lshl_add_u32 {v(VX)}, {v(VX)}, 4, {v(T0)}")
    p.e(f"v_mul_u32_u24 {v(VX)}, 1280, {v(VX)}")
    p.e(f"v_and_b32 {v(T3)}, 7, v1")
    p.e(f"v_lshl_add_u32 {v(VX)}, {v(T3)}, 4, {v(VX)}")
    p.e(f"s_mul_i32 {s(S_B)}, {s(S_W)}, 10272")
    p.wait_all(vm=False)
    stamp(p, 0)
    tx = p.tok()
    for i in range(10):
        p.e(f"s_add_u32 m0, {s(S_B)}, {XB + 896 * i}")
        p.add([dma(VX, R_Q, s(S_A), tx, f" offset:{128 * i}")])
    for b in (R_W2, R_B2):
        p.e(f"s_load_dwordx2 {s(b, 2)}, s[0:1], {KARG[b]}")
    descs(p, (R_W2, R_B2))
    p.e(f"s_lshl_b32 {s(SJ)}, {s(S_XCD)}, 3")
    p.e(f"s_add_u32 {s(SJ)}, {s(SJ)}, {s(S_C)}")
    if opt("w1pf", 0):
        p.e(f"s_lshr_b32 {s(S_A)}, {s(SJ)}, 4")
        p.e(f"s_mul_i32 {s(S_A)}, {s(S_A)}, {160 * 3456}")
        p.e(f"s_and_b32 {s(S_B)}, {s(SJ)}, 15")
        p.e(f"s_mul_i32 {s(S_B)}, {s(S_B)}, {3456 * opt('w1pfr', 2)}")
        p.e(f"s_add_u32 {s(S_A)}, {s(S_A)}, {s(S_B)}")
        p.e(f"v_lshlrev_b32 {v(T0)}, 4, v0")
        for k in range(opt('w1pfr', 2)):
            p.e(f"s_add_u32 {s(S_B)}, {s(S_A)}, {(160 - 16 * opt('w1pfr', 2)) * 3456 + 3456 * k}")
            p.e(f"buffer_load_dwordx4 {a(232 + 4 * k, 4)}, {v(T0)}, {srd(R_W1)}, {s(S_B)} offen")
    common_addr(p, 1)
    p.e(f"v_lshrrev_b32 {v(T0)}, 3, v0")
    p.e(f"v_lshl_add_u32 {v(VW)}, {s(SJ)}, 5, {v(T0)}")
    p.e(f"s_cmp_lt_u32 {s(SJ)}, 48")
    p.e("s_cbranch_scc1 L_w2reg")
    p.e(f"s_sub_u32 {s(S_A)}, {s(SJ)}, 48")
    p.e(f"s_lshl_b32 {s(S_A)}, {s(S_A)}, 1")
    p.e(f"s_and_b32 {s(S_B)}, {s(S_W)}, 1")
    p.e(f"s_add_u32 {s(S_A)}, {s(S_A)}, {s(S_B)}")
    p.e(f"s_mul_i32 {s(S_B)}, {s(S_A)}, 13108")
    p.e(f"s_lshr_b32 {s(S_B)}, {s(S_B)}, 16")
    p.e(f"s_lshl_b32 {s(S_B)}, {s(S_B)}, 2")
    p.e(f"s_mul_i32 {s(S_E)}, {s(S_A)}, 12")
    p.e(f"s_add_u32 {s(S_B)}, {s(S_B)}, {s(S_E)}")
    p.e(f"s_add_u32 {s(S_B)}, {s(S_B)}, 1536")
    p.e(f"s_lshr_b32 {s(S_E)}, {s(S_W)}, 1")
    p.e(f"v_lshrrev_b32 {v(T0)}, 3, v1")
    p.e(f"v_lshl_add_u32 {v(T0)}, {s(S_E)}, 3, {v(T0)}")
    p.e(f"v_add_u32 {v(VW)}, {s(S_B)}, {v(T0)}")
    p.e(f"v_lshrrev_b32 {v(T1)}, 2, {v(T0)}")
    p.e(f"v_mul_u32_u24 {v(T1)}, 60, {v(T1)}")
    p.e(f"v_add_u32 {v(T1)}, {v(T1)}, {v(T0)}")
    p.e(f"v_add_u32 {v(T1)}, 1596, {v(T1)}")
    p.e(f"s_cmp_eq_u32 {s(S_A)}, 15")
    p.e("s_cselect_b64 vcc, -1, 0")
    p.e(f"v_cndmask_b32 {v(VW)}, {v(VW)}, {v(T1)}, vcc")
    p.e(f"v_mov_b32 {v(T1)}, 4096")
    p.e(f"v_cmp_gt_u32 vcc, 12, {v(T0)}")
    p.e(f"v_cndmask_b32 {v(VW)}, {v(T1)}, {v(VW)}, vcc")
    p.label("L_w2reg")
    p.e(f"v_mul_u32_u24 {v(VW)}, 1280, {v(VW)}")
    p.e(f"v_lshl_add_u32 {v(VW)}, {v(T3)}, 4, {v(VW)}")
    tile_addr(p, TA, TB, 4, 10272, 2, XB)
    p.e(f"s_mul_i32 {s(S_B)}, {s(S_W)}, 10272")
    p.e(f"s_add_u32 {s(S_B)}, {s(S_B)}, {XB}")
    p.e(f"v_add_u32 {v(VR)}, {s(S_B)}, {v(G_VD)}")
    p.e(f"v_add_u32 {v(T0)}, {s(SJ)}, v1")
    p.e(f"v_and_b32 {v(T0)}, 3, {v(T0)}")
    p.e(f"v_lshrrev_b32 {v(T1)}, 4, v1")
    p.e(f"v_lshl_add_u32 {v(T0)}, {v(T0)}, 2, {v(T1)}")
    p.e(f"v_bfe_u32 {v(T1)}, v1, 2, 2")
    p.e(f"v_lshl_add_u32 {v(T0)}, {v(T1)}, 10, {v(T0)}")
    p.e(f"v_lshlrev_b32 {v(VO)}, 4, {v(T0)}")
    p.e(f"s_sub_u32 {s(S_C)}, {s(S_IDX)}, 20")
    for k in range(4):
        p.e(f"v_mov_b32 {v(SU + k)}, 0")
    p.e(f"v_bfe_u32 {v(T0)}, v1, 2, 2")
    p.e(f"v_lshl_add_u32 {v(T0)}, {s(SJ)}, 2, {v(T0)}")
    p.e(f"v_lshlrev_b32 {v(T1)}, 7, {v(T0)}")
    p.e(f"v_lshlrev_b32 {v(T0)}, 8, {v(T0)}")
    p.e(f"v_add_u32 {v(T0)}, {CTR2 - CTR3}, {v(T0)}")
    p.e("v_cmp_gt_u32 vcc, 16, v0")
    p.e(f"v_cndmask_b32 {v(T0)}, {v(T0)}, {v(T1)}, vcc")
    p.e(f"v_and_b32 {v(T1)}, 3, v1")
    p.e(f"v_lshl_add_u32 {v(T0)}, {v(T1)}, 4, {v(T0)}")
    p.e(f"v_mov_b32 {v(T2)}, {OOB}")
    p.e("v_cmp_gt_u32 vcc, 32, v0")
    p.e(f"v_cndmask_b32 {v(T0)}, {v(T2)}, {v(T0)}, vcc")
    p.e(f"s_mov_b32 {s(S_A)}, {CTR3}")
    p.e(f"buffer_store_dwordx4 {v(SU, 4)}, {v(T0)}, {srd(R_WS)}, {s(S_A)} offen sc1")
    p.e(f"v_lshrrev_b32 {v(T0)}, 3, v0")
    p.e(f"v_lshlrev_b32 {v(T0)}, 2, {v(T0)}")
    p.e(f"v_bfe_u32 {v(T1)}, v1, 2, 1")
    p.e(f"v_lshl_add_u32 {v(T0)}, {v(T1)}, 7, {v(T0)}")
    p.e(f"v_add_u32 {v(T0)}, {SB}, {v(T0)}")
    p.e(f"s_and_b32 {s(S_A)}, {s(S_C)}, 3")
    p.e(f"s_lshl_b32 {s(S_A)}, {s(S_A)}, 8")
    p.e(f"s_add_u32 {s(S_A)}, {s(S_A)}, {CTRS}")
    sig_rep8(p, S_A)
    p.e(f"v_mov_b32 {v(T2)}, {OOB}")
    p.e(f"v_lshlrev_b32 {v(VX)}, 2, v1")
    p.e(f"v_lshrrev_b32 {v(T3)}, 5, v1")
    p.e(f"v_and_b32 {v(VS)}, 127, {v(VX)}")
    p.e(f"v_lshl_add_u32 {v(VS)}, {v(T3)}, 10, {v(VS)}")
    p.e("v_cmp_gt_u32 vcc, 64, v0")
    p.e(f"v_cndmask_b32 {v(VS)}, {v(T2)}, {v(VS)}, vcc")
    p.e(f"v_add_u32 {v(VX)}, {SB}, {v(VX)}")
    p.e(f"s_mul_i32 {s(S_F)}, {s(S_W)}, {10 * 65536}")
    p.e(f"s_lshl_b32 {s(S_E)}, {s(SJ)}, 8")
    p.e(f"s_add_u32 {s(S_F)}, {s(S_F)}, {s(S_E)}")
    p.e(f"s_lshl_b32 {s(S_A)}, {s(S_XCD)}, 11")
    p.e(f"s_lshl_b32 {s(S_E)}, {s(S_C)}, 7")
    p.e(f"s_add_u32 {s(S_A)}, {s(S_A)}, {s(S_E)}")
    p.e(f"s_add_u32 {s(S_A)}, {s(S_A)}, {ST}")
    p.e(f"s_mov_b32 {s(S_E)}, 0x3f803f80")
    p.e(f"v_cmp_eq_u32 vcc, 0, {v(T1)}")
    p.wait(tx)
    p.e("s_barrier")
    stamp(p, 1)
    p.add(READY.load())
    tile_reads(p, FR, TA, TB, 512)
    for i in range(10):
        p.e(f"ds_read_b128 {v(X + 4 * i, 4)}, {v(VR)} offset:{1024 * i}")
    for i in range(10):
        p.e(f"s_add_u32 {s(S_B)}, {s(S_F)}, {XT + 65536 * i}")
        p.e(f"buffer_store_dwordx4 {v(FR + 4 * i, 4)}, {v(VO)}, {srd(R_WS)}, {s(S_B)} offen sc1")
        if i >= 2:
            for k in range(5 * (i - 2), 5 * (i - 1)):
                p.e(f"v_dot2_f32_bf16 {v(SU + (k & 1))}, {v(X + k)}, {s(S_E)}, {v(SU + (k & 1))}")
                p.e(f"v_dot2_f32_bf16 {v(SQ + (k & 1))}, {v(X + k)}, {v(X + k)}, {v(SQ + (k & 1))}")
    p.e(f"v_add_f32 {v(SU)}, {v(SU)}, {v(SU + 1)}")
    p.e(f"v_add_f32 {v(SQ)}, {v(SQ)}, {v(SQ + 1)}")
    for ctl in ("quad_perm:[1,0,3,2]", "quad_perm:[2,3,0,1]", "row_half_mirror"):
        for x in (SU, SQ):
            p.e(f"v_add_f32_dpp {v(x)}, {v(x)}, {v(x)} {ctl} row_mask:0xf bank_mask:0xf")
    p.e(f"v_mul_f32 {v(SU)}, {f32(1 / 640)}, {v(SU)}")
    p.e(f"v_mul_f32 {v(SQ)}, {f32(1 / 640)}, {v(SQ)}")
    p.e(f"v_fma_f32 {v(SQ)}, -{v(SU)}, {v(SU)}, {v(SQ)}")
    p.e(f"v_max_f32 {v(SQ)}, 0, {v(SQ)}")
    p.e(f"v_add_f32 {v(SQ)}, {f32(1e-5)}, {v(SQ)}")
    p.e(f"v_rsq_f32 {v(SQ)}, {v(SQ)}")
    p.e(f"v_mul_f32_e64 {v(SU)}, -{v(SU)}, {v(SQ)}")
    p.e(f"v_cndmask_b32 {v(SU)}, {v(SU)}, {v(SQ)}, vcc")
    p.e(f"ds_write_b32 {v(T0)}, {v(SU)}")
    p.wait_all(vm=False)
    p.e("s_barrier")
    p.e(f"ds_read_b32 {v(SU)}, {v(VX)}")
    p.e(f"buffer_store_dword {v(SU)}, {v(VS)}, {srd(R_WS)}, {s(S_A)} offen sc1")
    stamp(p, 2)
    tile_addr(p, TA, TB, 5, 20480, 3)
    signal(p, ready=True)
    stamp(p, 3)
    if "noprep2" in OPTS:
        p.e("s_branch L_noconv")
    for i in range(10):
        p.e(f"s_add_u32 m0, {s(S_WL)}, {896 * i}")
        p.add([dma(VW, R_W2, 0, None, f" offset:{128 * i}")])
    p.e(f"v_lshlrev_b32 {v(T0)}, 4, v0")
    p.e(f"buffer_load_dwordx4 {v(B2, 4)}, {v(T0)}, {srd(R_B2)}, 0 offen")
    p.e(f"s_mul_i32 {s(S_A)}, {s(SJ)}, 5462")
    p.e(f"s_lshr_b32 {s(S_A)}, {s(S_A)}, 16")
    p.e(f"s_mul_i32 {s(S_B)}, {s(S_A)}, 12")
    p.e(f"s_sub_u32 {s(S_B)}, {s(SJ)}, {s(S_B)}")
    p.e(f"s_bfe_u32 {s(S_E)}, {s(SJ)}, 0x20001")
    p.e(f"s_and_b32 {s(S_F)}, {s(SJ)}, 1")
    p.e(f"s_add_u32 {s(S_F)}, {s(S_F)}, 12")
    p.e(f"s_cmp_lt_u32 {s(SJ)}, 48")
    p.e(f"s_cselect_b32 {s(S_A)}, {s(S_A)}, {s(S_E)}")
    p.e(f"s_cselect_b32 {s(S_B)}, {s(S_B)}, {s(S_F)}")
    p.e(f"s_lshl_b32 {s(S_E)}, {s(S_A)}, 8")
    p.e(f"s_add_u32 {s(S_E)}, {s(S_E)}, {CTRW}")
    sig_rep8(p, S_E)
    p.e(f"v_mov_b32 {v(T2)}, {OOB}")
    p.e(f"s_cmp_ge_u32 {s(SJ)}, 56")
    p.e("s_cbranch_scc1 L_w2sig")
    p.e(f"s_lshl_b32 {s(S_E)}, {s(S_W)}, 3")
    p.e(f"s_add_u32 {s(S_A)}, {s(S_A)}, {s(S_E)}")
    p.e(f"s_mul_i32 {s(S_A)}, {s(S_A)}, 14")
    p.e(f"s_add_u32 {s(S_A)}, {s(S_A)}, {s(S_B)}")
    p.e(f"s_mul_i32 {s(S_A)}, {s(S_A)}, 5120")
    p.wait_all()
    p.e("s_barrier")
    stamp(p, 6)
    p.e(f"s_cmp_lg_u32 {s(SJ)}, 48")
    p.e("s_cbranch_scc1 L_nob2")
    p.e(f"v_lshrrev_b32 {v(T1)}, 3, v0")
    p.e(f"v_and_b32 {v(T2)}, 7, v0")
    p.e(f"v_lshlrev_b32 {v(T2)}, 4, {v(T2)}")
    p.e(f"v_lshl_add_u32 {v(T1)}, {v(T1)}, 10, {v(T2)}")
    p.e(f"v_mov_b32 {v(T2)}, 24576")
    p.e("v_cmp_gt_u32 vcc, 80, v0")
    p.e(f"v_cndmask_b32 {v(T1)}, {v(T2)}, {v(T1)}, vcc")
    p.e(f"ds_write_b128 {v(T1)}, {v(B2, 4)} offset:{20480 + 512}")
    p.wait_all(vm=False)
    p.e("s_barrier")
    p.label("L_nob2")
    tile_reads(p, FR, TA, TB, 10240)
    for i in range(10):
        p.e(f"s_add_u32 {s(S_B)}, {s(S_A)}, {W2P + (i // 5) * 4 * 70 * 1024 + (i % 5) * 1024}")
        p.e(f"buffer_store_dwordx4 {v(FR + 4 * i, 4)}, {v(G_VD)}, {srd(R_WS)}, {s(S_B)} offen sc1")
    p.label("L_w2sig")
    stamp(p, 4)
    signal(p)
    stamp(p, 5)
    p.e("s_branch L_noconv")


def p0_prep(p):
    VO, VT, T0, T1, T2, VZ, ON, CS, FR = 32, 33, 34, 35, 36, 31, 40, 44, 80
    SP = S_H
    RS = 81920
    prologue(p, (R_WS, R_DBG, R_W1))
    p.e("s_cmp_lg_u32 s2, 255")
    p.e("s_cbranch_scc1 L_noinit")
    for k in range(4):
        p.e(f"v_mov_b32 {v(ON + k)}, 0")
    p.e(f"v_lshrrev_b32 {v(T0)}, 2, v0")
    p.e(f"v_and_b32 {v(T1)}, 3, v0")
    p.e(f"v_lshlrev_b32 {v(T1)}, 4, {v(T1)}")
    p.e(f"v_lshl_add_u32 {v(T0)}, {v(T0)}, 8, {v(T1)}")
    for i in range(2):
        p.e(f"s_mov_b32 {s(S_B)}, {CTR1 + 16384 * i}")
        p.e(f"buffer_store_dwordx4 {v(ON, 4)}, {v(T0)}, {srd(R_WS)}, {s(S_B)} offen sc1")
    p.e(f"v_mov_b32 {v(T1)}, 1")
    p.e(f"v_min_u32 {v(T2)}, 1, v0")
    p.e(f"v_lshlrev_b32 {v(T2)}, 30, {v(T2)}")
    p.wait_all()
    p.e("s_barrier")
    p.e(f"buffer_store_dword {v(T1)}, {v(T2)}, {srd(R_DBG)}, 0 offen sc1")
    stamp(p, 27)
    p.label("L_noinit")
    p.e(f"s_lshl_b32 {s(SP)}, {s(S_XCD)}, 2")
    p.e(f"s_add_u32 {s(SP)}, {s(SP)}, {s(S_IDX)}")
    p.e(f"s_sub_u32 {s(SP)}, {s(SP)}, 28")
    def job():
        p.e(f"s_and_b32 {s(S_F)}, {s(SP)}, 1")
        p.e(f"s_sub_u32 {s(S_A)}, 3, {s(S_F)}")
        p.e(f"s_mul_i32 {s(S_A)}, {s(S_A)}, {s(S_W)}")
        p.e(f"s_mul_i32 {s(S_B)}, {s(S_F)}, 12")
        p.e(f"s_add_u32 {s(S_A)}, {s(S_A)}, {s(S_B)}")
        p.e(f"s_lshr_b32 {s(S_E)}, {s(SP)}, 1")
        p.e(f"s_add_u32 {s(S_E)}, {s(S_E)}, 12")
        p.e(f"s_mul_i32 {s(S_C)}, {s(S_W)}, 5")
        p.e(f"s_cmp_lt_u32 {s(SP)}, 24")
        p.e(f"s_cselect_b32 {s(S_E)}, {s(SP)}, {s(S_E)}")
        p.e(f"s_cselect_b32 {s(S_F)}, 0, {s(S_F)}")
        p.e(f"s_cselect_b32 {s(S_C)}, {s(S_C)}, {s(S_A)}")
    job()
    p.e(f"s_cselect_b32 {s(S_PO)}, 0, 0x1000000")
    p.e(f"s_lshl_b32 {s(S_P2)}, {s(S_F)}, 24")
    p.e(f"s_mul_i32 {s(S_A)}, {s(S_C)}, {32 * 3456}")
    p.e(f"s_lshl_b32 {s(S_B)}, {s(S_E)}, 7")
    p.e(f"s_add_u32 {s(S_A)}, {s(S_A)}, {s(S_B)}")
    p.e(f"s_cmp_lt_u32 {s(SP)}, {0 if 'noprep1' in OPTS else 30}")
    p.e(f"s_cselect_b32 {s(S_A)}, {s(S_A)}, 0x1000000")
    p.e(f"v_lshrrev_b32 {v(T0)}, 3, v1")
    p.e(f"v_mul_u32_u24 {v(T0)}, 3456, {v(T0)}")
    p.e(f"v_and_b32 {v(T1)}, 7, v1")
    p.e(f"v_lshl_add_u32 {v(VO)}, {v(T1)}, 4, {v(T0)}")
    p.e(f"s_mul_i32 {s(S_C)}, {s(S_W)}, 20480")
    p.raw("    s_waitcnt lgkmcnt(0)")
    p.reset()
    stamp(p, 0)
    toks = [p.tok() for _ in range(20)]
    for i in range(20):
        if i == 8:
            p.e(f"s_add_u32 {s(S_A)}, {s(S_A)}, {s(S_P2)}")
        if i == 12:
            p.e(f"s_add_u32 {s(S_A)}, {s(S_A)}, {s(S_PO)}")
        p.e(f"s_add_u32 m0, {s(S_C)}, {1024 * i}")
        p.e(f"s_add_u32 {s(S_B)}, {s(S_A)}, {8 * 3456 * i}")
        p.add([dma(VO, R_W1, s(S_B), toks[i])])
    common_addr(p, 2)
    p.e(f"s_and_b32 {s(S_A)}, {s(SP)}, 3")
    p.e(f"s_lshl_b32 {s(S_A)}, {s(S_A)}, 8")
    p.e(f"s_add_u32 {s(S_A)}, {s(S_A)}, {CTRA}")
    sig_rep8(p, S_A)
    p.e(f"v_mov_b32 {v(T2)}, {OOB}")
    p.e(f"s_cmp_ge_u32 {s(SP)}, {0 if 'noprep1' in OPTS else 30}")
    p.e("s_cbranch_scc1 L_w1sig")
    job()
    for k in range(4):
        p.e(f"v_mov_b32 {v(ON + k)}, 0x3f803f80")
    p.e(f"v_lshlrev_b32 {v(VZ)}, 2, v1")
    p.e("v_cmp_gt_u32 vcc, 64, v0")
    p.e(f"v_cndmask_b32 {v(VO)}, {v(T2)}, {v(VZ)}, vcc")
    p.e(f"v_add_u32 {v(VZ)}, {RS}, {v(VZ)}")
    p.e(f"s_lshl_b32 {s(S_P2)}, {s(S_WL)}, 1")
    p.e(f"v_and_b32 {v(T1)}, 3, v1")
    p.e(f"v_lshl_add_u32 {v(T1)}, {v(T1)}, 3, {s(S_P2)}")
    p.e(f"s_lshl_b32 {s(S_B)}, {s(S_W)}, 8")
    p.e(f"s_add_u32 {s(S_PO)}, {s(S_B)}, {RS}")
    p.e(f"s_cmp_ge_u32 {s(SP)}, 24")
    p.e("s_cbranch_scc1 L_w1rem")
    p.save("w1")
    p.e(f"v_lshrrev_b32 {v(T0)}, 5, v1")
    p.e(f"v_lshl_add_u32 {v(VT)}, {v(T0)}, 10, {v(T1)}")
    p.e(f"v_bfe_u32 {v(T0)}, v1, 2, 2")
    p.e(f"v_lshl_add_u32 {v(VT)}, {v(T0)}, 7, {v(VT)}")
    p.e(f"v_bfe_u32 {v(T0)}, v1, 4, 1")
    p.e(f"v_lshl_add_u32 {v(VT)}, {v(T0)}, 5, {v(VT)}")
    p.e(f"v_and_b32 {v(T2)}, 31, v1")
    p.e(f"v_lshl_add_u32 {v(T0)}, {v(T2)}, 2, {s(S_PO)}")
    p.e(f"s_lshl_b32 {s(S_A)}, {s(S_E)}, 3")
    p.e(f"s_add_u32 {s(S_A)}, {s(S_A)}, {s(S_W)}")
    p.e(f"s_mul_i32 {s(S_A)}, {s(S_A)}, 10240")
    for st in range(11):
        if st < 10:
            p.wait(toks[2 * st + 1])
            if st == 0:
                stamp(p, 1)
            for blk in range(2):
                for aa in range(2):
                    p.e(f"ds_read_b64_tr_b16 {v(FR + 8 * st + 4 * blk + 2 * aa, 2)}, {v(VT)} offset:{2048 * st + 512 * aa + 64 * blk}")
        if st:
            for blk in range(2):
                p.e(f"v_mfma_f32_32x32x16_bf16 {v(CS + 16 * blk, 16)}, {v(ON, 4)}, {v(FR + 8 * (st - 1) + 4 * blk, 4)}, {v(CS + 16 * blk, 16) if st > 1 else 0}")
    stamp(p, 2)
    def sums():
        p.wait_all(vm=False)
        p.e("s_barrier")
        for w in range(4):
            p.e(f"ds_read_b32 {v(CS + 1 + w)}, {v(VZ)} offset:{256 * w}")
        p.e(f"s_lshl_b32 {s(S_P2)}, {s(S_F)}, 13")
        p.e(f"s_lshl_b32 {s(S_B)}, {s(S_E)}, 8")
        p.e(f"s_add_u32 {s(S_B)}, {s(S_B)}, {s(S_P2)}")
        p.e(f"s_add_u32 {s(S_B)}, {s(S_B)}, {CSP}")
        p.e(f"v_add_f32 {v(CS + 1)}, {v(CS + 1)}, {v(CS + 2)}")
        p.e(f"v_add_f32 {v(CS + 3)}, {v(CS + 3)}, {v(CS + 4)}")
        p.e(f"v_add_f32 {v(CS + 1)}, {v(CS + 1)}, {v(CS + 3)}")
        p.e(f"buffer_store_dword {v(CS + 1)}, {v(VO)}, {srd(R_WS)}, {s(S_B)} offen sc1")
    for k in range(10):
        for blk in range(2):
            p.e(f"s_add_u32 {s(S_B)}, {s(S_A)}, {W1P + (40 * blk + k) * 1024}")
            p.e(f"buffer_store_dwordx4 {v(FR + 8 * k + 4 * blk, 4)}, {v(G_VD)}, {srd(R_WS)}, {s(S_B)} offen sc1")
        if k == 2:
            for blk in range(2):
                p.e(f"ds_write_b32 {v(T0)}, {v(CS + 16 * blk)} offset:{128 * blk}")
            sums()
    p.label("L_w1sig")
    p.add(READY.load())
    stamp(p, 4)
    signal(p, ready=True)
    stamp(p, 5)
    p.e("s_branch L_noconv")

    p.label("L_w1rem")
    p.restore("w1")
    V5, VC, VM, VW5 = 37, 38, 39, 76
    p.e(f"v_lshrrev_b32 {v(T0)}, 2, v1")
    p.e(f"v_lshl_add_u32 {v(VT)}, {v(T0)}, 7, {v(T1)}")
    p.e(f"v_lshl_add_u32 {v(V5)}, {v(T0)}, 7, {s(S_P2)}")
    p.e(f"s_sub_u32 {s(S_B)}, {s(S_E)}, 24")
    p.e(f"v_and_b32 {v(T2)}, 15, v1")
    p.e(f"v_cmp_eq_u32 vcc, 12, {v(T2)}")
    p.e(f"v_cndmask_b32 {v(VC)}, 0, {v(ON)}, vcc")
    p.e(f"v_lshrrev_b32 {v(T0)}, 2, {v(T2)}")
    p.e(f"v_cmp_eq_u32 vcc, {s(S_B)}, {v(T0)}")
    p.e(f"v_mov_b32 {v(T0)}, {OOB}")
    p.e(f"v_cndmask_b32 {v(VM)}, {v(T0)}, {v(G_VD)}, vcc")
    p.e(f"v_lshl_add_u32 {v(T0)}, {v(T2)}, 2, {s(S_PO)}")
    p.e(f"v_mov_b32 {v(T1)}, {RS + 2048}")
    p.e(f"v_cmp_gt_u32 vcc, 4, {v(T2)}")
    p.e(f"v_cndmask_b32 {v(VW5)}, {v(T1)}, {v(T0)}, vcc")
    p.e(f"v_cmp_le_u32 vcc, 12, {v(T2)}")
    p.e(f"v_cndmask_b32 {v(VM)}, {v(VM)}, {v(G_VD)}, vcc")
    p.e(f"v_cndmask_b32 {v(T0)}, {v(T0)}, {v(T1)}, vcc")
    p.e(f"s_lshl_b32 {s(S_C)}, {s(S_C)}, 10")
    p.e(f"s_mul_i32 {s(S_A)}, {s(S_B)}, {100 * 1024}")
    p.e(f"s_add_u32 {s(S_A)}, {s(S_A)}, {s(S_C)}")
    for k in range(3):
        p.wait(toks[4 * k + 3])
        for i in range(6):
            for aa in range(2):
                p.e(f"ds_read_b64_tr_b16 {v(FR + 24 * k + 4 * i + 2 * aa, 2)}, {v(V5 if i == 5 else VT)} offset:{4096 * k + 2048 * aa + 24 * i}")
    for k in range(3):
        if k == 2:
            p.e(f"s_lshl_b32 {s(S_B)}, {s(S_F)}, 30")
            p.e(f"v_or_b32 {v(VM)}, {s(S_B)}, {v(VM)}")
            p.e(f"v_or_b32 {v(77)}, {s(S_B)}, {v(G_VD)}")
        for i in range(6):
            f = FR + 24 * k + 4 * i
            for q in range(4):
                p.e(f"v_cndmask_b32 {v(f + q)}, {v(f + q)}, {v(VC)}, vcc")
            if i < 5:
                p.e(f"s_add_u32 {s(S_B)}, {s(S_A)}, {W1R + (20 * i + k) * 1024}")
            else:
                p.e(f"s_add_u32 {s(S_B)}, {s(S_C)}, {W1R + (20 * 15 + k) * 1024}")
            p.e(f"buffer_store_dwordx4 {v(f, 4)}, {v(VM if i == 5 else (77 if k == 2 else G_VD))}, {srd(R_WS)}, {s(S_B)} offen sc1")
            p.e(f"v_mfma_f32_16x16x32_bf16 {v(CS + 4 * i, 4)}, {v(ON, 4)}, {v(f, 4)}, {v(CS + 4 * i, 4) if k else 0}")
    for i in range(6):
        p.e(f"ds_write_b32 {v(VW5 if i == 5 else T0)}, {v(CS + 4 * i)} offset:{48 * i}")
    sums()
    p.e("s_branch L_w1sig")


def gemm_addr(p, w3):
    t0, t1, t2 = 28, 29, 30
    X, Y = S_E, S_F
    if w3:
        p.e(f"s_mul_i32 {s(S_W1B)}, {s(S_M)}, {20 * 1024}")
        p.e(f"s_add_u32 {s(S_W1B)}, {s(S_W1B)}, {W1R - 20 * 1024}")
        p.e(f"v_mov_b32 {v(V_W1)}, {OOB}")
    else:
        p.e(f"s_mul_i32 {s(S_W1B)}, {s(S_M)}, 3")
        p.e(f"s_add_u32 {s(S_W1B)}, {s(S_W1B)}, {s(S_W)}")
        p.e(f"s_mul_i32 {s(S_W1B)}, {s(S_W1B)}, {40 * 1024}")
        p.e(f"s_add_u32 {s(S_W1B)}, {s(S_W1B)}, {W1P}")
        p.e(f"v_mov_b32 {v(V_W1)}, {v(G_VD)}")
    p.e(f"v_and_b32 {v(t2)}, 3, v1")
    p.e(f"v_lshlrev_b32 {v(t2)}, 3, {v(t2)}")
    p.e(f"v_bfe_u32 {v(t1)}, v1, 4, 1")
    p.e(f"s_mul_i32 {s(S_HIL)}, {s(S_G)}, {4 * 114688}")
    p.e(f"s_add_u32 {s(S_HIL)}, {s(S_HIL)}, {HID}")
    p.e(f"s_lshr_b32 {s(X)}, {s(S_M)}, 2")
    p.e(f"s_lshl_b32 {s(S_C3P)}, {s(S_G)}, 11")
    p.e(f"s_add_u32 {s(S_C3P)}, {s(S_C3P)}, {CTR3}")
    p.e(f"s_lshl_b32 {s(Y)}, {s(X)}, 7")
    p.e(f"s_add_u32 {s(S_C3A)}, {s(S_C3P)}, {s(Y)}")
    p.e(f"s_lshl_b32 {s(Y)}, {s(S_W)}, 7")
    p.e(f"s_add_u32 {s(S_C3P)}, {s(S_C3P)}, {s(Y)}")
    p.e(f"s_mul_i32 {s(X)}, {s(X)}, 14336")
    p.e(f"s_add_u32 {s(S_HIS)}, {s(S_HIL)}, {s(X)}")
    p.e(f"s_and_b32 {s(X)}, {s(S_M)}, 3")
    if not w3:
        p.e(f"s_mul_i32 {s(X)}, {s(X)}, 3")
        p.e(f"s_add_u32 {s(X)}, {s(X)}, {s(S_W)}")
        p.e(f"s_lshl_b32 {s(X)}, {s(X)}, 10")
        p.e(f"s_add_u32 {s(S_HIS)}, {s(S_HIS)}, {s(X)}")
        p.e(f"v_lshrrev_b32 {v(t0)}, 5, v1")
        p.e(f"v_bfe_u32 {v(G_VA)}, v1, 2, 2")
        p.e(f"v_lshl_add_u32 {v(G_VA)}, {v(t0)}, 3, {v(G_VA)}")
        p.e(f"v_lshl_add_u32 {v(G_VA)}, {v(G_VA)}, 6, {v(t2)}")
        p.e(f"v_lshl_add_u32 {v(G_VA)}, {v(t1)}, 5, {v(G_VA)}")
        p.e(f"v_xor_b32 {v(G_VB)}, 0x120, {v(G_VA)}")
        p.e(f"v_mul_u32_u24 {v(G_VSH)}, 57344, {v(t1)}")
        p.e(f"v_lshl_add_u32 {v(G_VSH)}, {v(t0)}, 8, {v(G_VSH)}")
        p.e(f"v_and_b32 {v(t0)}, 15, v1")
        p.e(f"v_lshl_add_u32 {v(G_VSH)}, {v(t0)}, 4, {v(G_VSH)}")
        p.e(f"v_and_b32 {v(G_VST)}, 31, v1")
        p.e(f"v_lshlrev_b32 {v(G_VST)}, 3, {v(G_VST)}")
        p.e(f"v_add_u32 {v(G_VST)}, {L_MISC}, {v(G_VST)}")
        p.e(f"s_mul_i32 {s(X)}, {s(S_DS)}, 5")
        p.e(f"s_add_u32 {s(X)}, {s(X)}, {s(S_W)}")
        p.e(f"s_lshl_b32 {s(X)}, {s(X)}, 10")
        p.e(f"v_lshrrev_b32 {v(G_VRR)}, 2, v1")
        p.e(f"v_lshl_add_u32 {v(G_VRR)}, {v(G_VRR)}, 6, {v(t2)}")
        p.e(f"v_xor_b32 {v(t1)}, {s(S_T)}, {v(t1)}")
        p.e(f"v_lshl_add_u32 {v(G_VRR)}, {v(t1)}, 5, {v(G_VRR)}")
        p.e(f"v_add_u32 {v(G_VRR)}, {s(X)}, {v(G_VRR)}")
        p.e(f"v_mul_u32_u24 {v(G_VRW)}, 160, {v(t0)}")
        p.e(f"v_lshrrev_b32 {v(t1)}, 4, v1")
        p.e(f"v_lshl_add_u32 {v(G_VRW)}, {v(t1)}, 3, {v(G_VRW)}")
        p.e(f"s_lshl_b32 {s(X)}, {s(S_W)}, 5")
        p.e(f"s_add_u32 {s(X)}, {s(X)}, {L_RES}")
        p.e(f"v_add_u32 {v(G_VRW)}, {s(X)}, {v(G_VRW)}")
        regs = (G_VA, G_VB, G_VRR)
    else:
        p.e(f"s_lshl_b32 {s(X)}, {s(X)}, 9")
        p.e(f"s_add_u32 {s(X)}, {s(X)}, 12288")
        p.e(f"s_add_u32 {s(S_HIS)}, {s(S_HIS)}, {s(X)}")
        p.e(f"v_lshrrev_b32 {v(G_VA)}, 2, v1")
        p.e(f"v_lshl_add_u32 {v(G_VA)}, {v(G_VA)}, 6, {v(t2)}")
        p.e(f"v_lshl_add_u32 {v(G_VA)}, {v(t1)}, 5, {v(G_VA)}")
        p.e(f"v_xor_b32 {v(G_VB)}, 32, {v(G_VA)}")
        p.e(f"v_mov_b32 {v(G_VSH)}, 0x3f80")
        p.e(f"v_and_b32 {v(t0)}, 15, v1")
        p.e(f"v_lshlrev_b32 {v(G_VST)}, 3, {v(t0)}")
        p.e(f"v_add_u32 {v(G_VST)}, {L_MISC}, {v(G_VST)}")
        p.e(f"v_mov_b32 {v(t2)}, {L_MISC + 1024}")
        p.e(f"v_cmp_le_u32 {s(S_MK + 6, 2)}, 48, v1")
        p.e(f"v_cndmask_b32 {v(G_VRR)}, {v(t2)}, {v(G_VST)}, {s(S_MK + 6, 2)}")
        p.e(f"v_lshrrev_b32 {v(t1)}, 4, v1")
        p.e(f"v_lshrrev_b32 {v(t0)}, 2, {v(t0)}")
        p.e(f"v_cmp_eq_u32 vcc, {v(t0)}, {v(t1)}")
        p.e(f"v_cndmask_b32 {v(G_VRW)}, {v(t2)}, {v(G_VST)}, vcc")
        p.e(f"v_and_b32 {v(t0)}, 3, v1")
        for k in range(1, 4):
            p.e(f"v_cmp_eq_u32 {s(S_MK + 2 * (k - 1), 2)}, {k}, {v(t0)}")
        regs = (G_VA, G_VB)
    for x in regs:
        p.e(f"v_add_u32 {v(x)}, {L_HBUF[0]}, {v(x)}")


def gemm_addr_common(p):
    t0, t1, t2 = 28, 29, 30
    X, Y = S_E, S_F
    p.e(f"s_mul_i32 {s(S_WL)}, {s(S_W)}, 10240")
    p.e(f"s_lshl_b32 {s(S_W2B)}, {s(S_DS)}, 2")
    p.e(f"s_add_u32 {s(S_W2B)}, {s(S_W2B)}, {s(S_W)}")
    p.e(f"s_mul_i32 {s(S_W2B)}, {s(S_W2B)}, {70 * 1024}")
    p.e(f"s_add_u32 {s(S_W2B)}, {s(S_W2B)}, {W2P}")
    p.e(f"s_lshl_b32 {s(S_CKA)}, {s(S_XCD)}, 10")
    p.e(f"v_and_b32 {v(V_PA)}, 3, v1")
    p.e(f"v_lshlrev_b32 {v(V_PA)}, 8, {v(V_PA)}")
    p.e(f"s_lshl_b32 {s(S_CKW)}, {s(S_XCD)}, 2")
    p.e(f"s_add_u32 {s(S_CKW)}, {s(S_CKW)}, {s(S_W)}")
    p.e(f"s_lshl_b32 {s(S_CKW)}, {s(S_CKW)}, 8")
    p.e(f"s_lshl_b32 {s(X)}, {s(S_XCD)}, 11")
    p.e(f"v_and_b32 {v(V_POL)}, 7, v1")
    p.e(f"v_lshl_add_u32 {v(V_POL)}, {v(V_POL)}, 8, {s(X)}")
    p.e(f"s_mov_b32 {s(S_ONE)}, 1")
    p.e(f"s_mov_b32 {s(S_SG2)}, {CTR2}")
    p.e(f"s_lshl_b32 {s(S_PL2)}, {s(S_CKW)}, 1")
    p.e(f"s_add_u32 {s(S_PL2)}, {s(S_PL2)}, {CTR2}")
    p.e(f"s_add_u32 {s(S_CV)}, {s(S_CKW)}, {CTR}")
    p.e(f"s_lshl_b32 {s(X)}, {s(S_T)}, 2")
    p.e(f"s_add_u32 {s(X)}, {s(X)}, {s(S_W)}")
    p.e(f"s_mul_i32 {s(X)}, {s(X)}, 14336")
    p.e(f"s_add_u32 {s(S_HIL)}, {s(S_HIL)}, {s(X)}")
    p.e(f"s_mul_i32 {s(S_HLD)}, {s(S_G)}, 163840")
    p.e(f"s_add_u32 {s(S_HLD)}, {s(S_HLD)}, {s(S_WL)}")
    p.e(f"s_add_u32 {s(S_HLD)}, {s(S_HLD)}, {HB}")
    p.e(f"v_and_b32 {v(t0)}, 15, v1")
    p.e(f"v_mul_u32_u24 {v(H_VW)}, 336, {v(t0)}")
    p.e(f"v_lshrrev_b32 {v(t0)}, 4, v1")
    p.e(f"v_lshl_add_u32 {v(H_VW)}, {v(t0)}, 4, {v(H_VW)}")
    p.e(f"s_mul_i32 {s(X)}, {s(S_W)}, 5376")
    p.e(f"v_add_u32 {v(H_VW)}, {s(X)}, {v(H_VW)}")
    p.e(f"v_min_u32 {v(t2)}, 159, v0")
    p.e(f"v_mul_u32_u24 {v(t0)}, 6554, {v(t2)}")
    p.e(f"v_lshrrev_b32 {v(t0)}, 16, {v(t0)}")
    p.e(f"v_mul_u32_u24 {v(t1)}, 10, {v(t0)}")
    p.e(f"v_sub_u32 {v(t1)}, {v(t2)}, {v(t1)}")
    p.e(f"v_mul_u32_u24 {v(H_VR)}, 336, {v(t0)}")
    p.e(f"v_lshl_add_u32 {v(H_VR)}, {v(t1)}, 5, {v(H_VR)}")
    p.e(f"v_lshlrev_b32 {v(H_VRES)}, 4, {v(t2)}")
    p.e(f"v_add_u32 {v(H_VRES)}, {L_RES}, {v(H_VRES)}")
    p.e(f"v_bfe_u32 {v(t2)}, {v(t0)}, 2, 1")
    p.e(f"v_lshlrev_b32 {v(H_VO)}, 8, {v(t2)}")
    p.e(f"v_lshrrev_b32 {v(t2)}, 3, {v(t0)}")
    p.e(f"v_lshl_add_u32 {v(H_VO)}, {v(t2)}, 4, {v(H_VO)}")
    p.e(f"v_and_b32 {v(t2)}, 3, {v(t0)}")
    p.e(f"v_add_u32 {v(H_VO)}, {v(t2)}, {v(H_VO)}")
    p.e(f"v_mul_u32_u24 {v(H_VO)}, 1280, {v(H_VO)}")
    p.e(f"v_lshl_add_u32 {v(H_VO)}, {v(t1)}, 4, {v(H_VO)}")
    p.e(f"v_mov_b32 {v(t2)}, {OOB}")
    p.e(f"v_cmp_gt_u32 vcc, 160, v0")
    p.e(f"v_cndmask_b32 {v(H_VO)}, {v(t2)}, {v(H_VO)}, vcc")
    p.e(f"s_and_b32 {s(Y)}, {s(S_G)}, 3")
    p.e(f"s_lshl_b32 {s(Y)}, {s(Y)}, 1")
    p.e(f"s_add_u32 {s(Y)}, {s(Y)}, {s(S_T)}")
    p.e(f"s_lshl_b32 {s(Y)}, {s(Y)}, 5")
    p.e(f"s_and_b32 {s(S_OSO)}, {s(S_G)}, 12")
    p.e(f"s_add_u32 {s(S_OSO)}, {s(S_OSO)}, {s(Y)}")
    p.e(f"s_mul_i32 {s(S_OSO)}, {s(S_OSO)}, 1280")
    p.e(f"s_mul_i32 {s(X)}, {s(S_DS)}, 160")
    p.e(f"s_add_u32 {s(S_OSO)}, {s(S_OSO)}, {s(X)}")


VK2 = lambda c: Check(R_WS, V_POL, None, CTR2 + 16384 * c, 20)
CK2 = lambda c: SCheck(S_PL2, [16384 * c, 16384 * c + 256], R_WS, V_POL, None, CTR2 + 16384 * c, 20)
CK3 = lambda c: SCheck(S_C3P, [512 * c], R_WS, None, S_C3P, 512 * c, 16)
VKW = lambda: Check(R_WS, None, S_CKW, CTRW, 0 if 'now2' in OPTS else 16)
CKW = lambda: SCheck(S_CV, [CTRW - CTR], R_WS, None, S_CKW, CTRW, 0 if 'now2' in OPTS else 16)
VKA = lambda: Check(R_WS, V_PA, S_CKA, CTRA, 0 if 'now1' in OPTS else 8)
CKA = lambda: SCheck(S_CV, [CTRA - CTR], R_WS, None, S_CKW, CTRA, 0 if 'now1' in OPTS else 8)


def signal2(c, tok, ck=None, guard=False):
    out = [wait(tok)] + (ck.test() if ck else []) + [Ins("s_barrier")]
    if "nosig" in OPTS:
        return [out]
    at = [Ins(atom(S_SG2, 16384 * c)), Ins(atom(S_SG2, 16384 * c + 2048))]
    if guard:
        Check.n += 1
        at = [Ins(f"s_cmp_lg_u32 {s(S_ROLE)}, 0"), Ins(f"s_cbranch_scc1 L_nosig{Check.n} ; soft")] + at + \
             [Ins(f"L_nosig{Check.n}:", pseudo="raw")]
    return [out + at]


def signal3(c, tok):
    if "nosig" in OPTS:
        return []
    return [[wait(tok), Ins(atom(S_C3A, 512 * c))]]


def w2_loads(lo, hi, gap=0, each=False):
    out = []
    if "now2" in OPTS:
        return out
    for i in range(lo, hi):
        x = []
        if i == lo or i % 4 == 0 or each:
            x.append(f"s_add_u32 {s(S_F)}, {s(S_W2B)}, {(i & ~3) * 1024}")
        x.append(f"buffer_load_dwordx4 {r(W2LOC[i], 4)}, {v(G_VD)}, {srd(R_WS)}, {s(S_F)} offen offset:{(i & 3) * 1024} sc1")
        out.append(x)
        if gap:
            out.append(Delay(gap))
    return out


def w1_loads(lo, hi, gap=0):
    out = []
    if "now1" in OPTS:
        return out
    for i in range(lo, hi):
        x = []
        if i % 4 == 0 or i == lo:
            x.append(f"s_add_u32 {s(S_F)}, {s(S_W1B)}, {(i & ~3) * 1024}")
        dst = a(4 * i, 4)
        x.append(f"buffer_load_dwordx4 {dst}, {v(G_VD if i >= 20 else V_W1)}, {srd(R_WS)}, {s(S_F)} offen offset:{(i & 3) * 1024} sc1")
        out.append(x)
        if gap:
            out.append(Delay(gap))
    return out


def h_dma(c, tok, gap=0):
    out = []
    for i in range(10):
        x = []
        if i % 4 == 0:
            x.append(f"s_add_u32 m0, {s(S_WL)}, {L_HBUF[c] + 1024 * i}")
            x.append(f"s_add_u32 {s(S_B)}, {s(S_HLD)}, {40960 * c + 1024 * i}")
        x.append(dma(G_VD, R_WS, s(S_B), tok, f" offset:{1024 * (i % 4)} sc1"))
        out.append(x)
        if gap:
            out.append(Delay(gap))
    return out


def hid_loads(c, gap=0, toks=None):
    b = HIDBUF[c & 1]
    out = []
    for st in range(14):
        x = []
        if st % 4 == 0:
            x.append(f"s_add_u32 {s(S_B)}, {s(S_HIL)}, {114688 * c + 1024 * st}")
        tk = toks[st] if toks else None
        if st < 12:
            x.append(Ins(f"buffer_load_dwordx4 {r(b[st], 4)}, {v(G_VD)}, {srd(R_WS)}, {s(S_B)} offen offset:{1024 * (st & 3)} sc1", tk))
        else:
            for h in range(2):
                x.append(Ins(f"buffer_load_dwordx2 {r(b[st] + 2 * h, 2)}, {v(G_X0)}, {srd(R_WS)}, {s(S_B)} offen offset:{512 * (2 * (st - 12) + h)} sc1", tk))
        out.append(x)
        if gap:
            out.append(Delay(gap))
    return out


class Pacer:
    def __init__(self, fixed, pre, pace, u=1):
        self.fixed, self.pre, self.pace, self.u, self.t, self.rest = fixed, pre, pace, u, 0.0, []
        self.end = 1 << 30

    def put(self, items, at=0, pace=None, w=1.0):
        for x in items:
            self.t = max(self.t, at)
            g = int(self.t * self.u)
            if g >= self.end:
                self.rest += x
            else:
                self.fixed.setdefault(g, []).extend(x)
            self.t += (self.pace if pace is None else pace) * w
        return self

    def test(self, ck, at=0, extra=()):
        self.t = max(self.t, at)
        g = int(self.t * self.u)
        assert g < self.end
        self.pre.setdefault(g, []).extend(ck.test() + flat(list(extra)))
        return self


C_VT, C_VP, C_VX, C_VS, C_VH = 21, 22, 23, 24, 25
C_AD, C_ACC, C_FR, C_TMP = 28, 32, 64, 160


def conv_build_t(p, mid):
    raw, tmp = SSM_RAW, 32
    va = tmp
    p.e(f"s_mul_i32 {s(S_A)}, {s(S_W)}, 16640")
    p.e(f"v_add_u32 {v(va)}, {s(S_A)}, {v(G_VD)}")
    z = tmp + 2
    for k in range(4):
        p.e(f"v_mov_b32 {v(z + k)}, 0")
    p.e(f"v_bfe_u32 {v(tmp + 1)}, v1, 1, 2")
    p.e(f"v_mul_u32_u24 {v(tmp + 1)}, 4160, {v(tmp + 1)}")
    p.e(f"v_and_b32 {v(tmp + 6)}, 1, v1")
    p.e(f"v_lshl_add_u32 {v(tmp + 1)}, {v(tmp + 6)}, 4, {v(tmp + 1)}")
    p.e(f"v_add_u32 {v(tmp + 1)}, {s(S_A)}, {v(tmp + 1)}")
    p.e(f"ds_write_b128 {v(tmp + 1)}, {v(z, 4)} offset:{L_T}")
    for q in range(4):
        d = raw + 4 * q
        b = tmp + 8 + 14 * (q & 1)
        Q1, Q2, Q3, DM2 = b, b + 4, b + 8, b + 12
        p.e(f"ds_write_b128 {v(va)}, {v(d, 4)} offset:{L_T + 32 + 1024 * q}")
        if q == 0:
            p.e(f"v_mov_b32 {v(Q2)}, 0")
            p.e(f"v_mov_b32 {v(DM2)}, 0")
        else:
            p.e(f"v_mov_b32_dpp {v(Q2)}, {v(d - 1)} wave_ror:1 row_mask:0xf bank_mask:0xf")
            p.e(f"v_mov_b32_dpp {v(DM2)}, {v(d - 2)} wave_ror:1 row_mask:0xf bank_mask:0xf")
        for k in range(3):
            p.e(f"v_mov_b32 {v(Q2 + 1 + k)}, {v(d + k)}")
        p.e(f"v_mov_b32_dpp {v(Q2)}, {v(d + 3)} wave_shr:1 row_mask:0xf bank_mask:0xf")
        p.e(f"v_mov_b32_dpp {v(DM2)}, {v(d + 2)} wave_shr:1 row_mask:0xf bank_mask:0xf")
        for k in range(1, 4):
            p.e(f"v_alignbit_b32 {v(Q1 + k)}, {v(d + k)}, {v(d + k - 1)}, 16")
        p.e(f"v_alignbit_b32 {v(Q1)}, {v(d)}, {v(Q2)}, 16")
        p.e(f"v_alignbit_b32 {v(Q3)}, {v(Q2)}, {v(DM2)}, 16")
        for k in range(3):
            p.e(f"v_mov_b32 {v(Q3 + 1 + k)}, {v(Q1 + k)}")
        p.e(f"ds_write_b128 {v(va)}, {v(Q2, 4)} offset:{L_T + 2 * 4160 + 32 + 1024 * q}")
        p.e(f"ds_write_b128 {v(va)}, {v(Q1, 4)} offset:{L_T + 4160 + 32 + 1024 * q}")
        p.e(f"ds_write_b128 {v(va)}, {v(Q3, 4)} offset:{L_T + 3 * 4160 + 32 + 1024 * q}")
        if q == opt("tmid", 2):
            mid()


def conv_addr(p):
    t0, t1, t2 = 28, 29, 30
    p.e(f"v_and_b32 {v(t0)}, 15, v1")
    p.e(f"v_lshrrev_b32 {v(t1)}, 4, v1")
    p.e(f"v_sub_u32 {v(t2)}, 15, {v(t0)}")
    p.e(f"v_and_b32 {v(C_VT)}, 3, {v(t2)}")
    p.e(f"v_mul_u32_u24 {v(C_VT)}, 4160, {v(C_VT)}")
    p.e(f"v_lshl_add_u32 {v(C_VT)}, {v(t1)}, 4, {v(C_VT)}")
    p.e(f"v_lshrrev_b32 {v(t2)}, 2, {v(t2)}")
    p.e(f"v_lshlrev_b32 {v(t2)}, 3, {v(t2)}")
    p.e(f"v_sub_u32 {v(C_VT)}, {v(C_VT)}, {v(t2)}")
    p.e(f"s_mul_i32 {s(S_A)}, {s(S_W)}, 16640")
    p.e(f"s_add_u32 {s(S_A)}, {s(S_A)}, {L_T + 32}")
    p.e(f"v_add_u32 {v(C_VT)}, {s(S_A)}, {v(C_VT)}")
    p.e(f"s_mul_i32 {s(S_C)}, {s(S_W)}, 4608")
    p.e(f"s_add_u32 {s(S_A)}, {s(S_C)}, {L_U + 480}")
    p.e(f"v_lshl_add_u32 {v(C_VP)}, {v(t1)}, 4, {s(S_A)}")
    p.e(f"v_lshlrev_b32 {v(t2)}, 5, {v(t0)}")
    p.e(f"v_sub_u32 {v(C_VP)}, {v(C_VP)}, {v(t2)}")
    p.e(f"v_lshrrev_b32 {v(t2)}, 3, v1")
    p.e(f"v_add_u32 {v(C_VX)}, {s(S_W)}, {v(t2)}")
    p.e(f"v_and_b32 {v(C_VX)}, 3, {v(C_VX)}")
    p.e(f"v_lshl_add_u32 {v(C_VX)}, {v(t2)}, 2, {v(C_VX)}")
    p.e(f"v_and_b32 {v(t2)}, 7, v1")
    p.e(f"v_lshl_add_u32 {v(C_VX)}, {v(C_VX)}, 3, {v(t2)}")
    p.e(f"v_lshlrev_b32 {v(C_VX)}, 3, {v(C_VX)}")
    p.e(f"v_add_u32 {v(C_VX)}, {L_X}, {v(C_VX)}")
    p.e(f"v_add_u32 {v(C_VS)}, {L_ST}, {v(G_VD)}")
    p.e(f"s_and_b32 {s(S_A)}, {s(S_CW)}, 1")
    p.e(f"s_lshl_b32 {s(S_A)}, {s(S_A)}, 1")
    p.e(f"v_and_b32 {v(t2)}, 3, v1")
    p.e(f"v_xor_b32 {v(t2)}, {s(S_A)}, {v(t2)}")
    p.e(f"v_lshrrev_b32 {v(C_VH)}, 2, v1")
    p.e(f"v_mul_u32_u24 {v(C_VH)}, 163840, {v(C_VH)}")
    p.e(f"v_lshl_add_u32 {v(C_VH)}, {v(t2)}, 4, {v(C_VH)}")
    p.e(f"s_lshl_b32 {s(S_H)}, {s(S_CW)}, 2")
    p.e(f"s_add_u32 {s(S_H)}, {s(S_H)}, {s(S_W)}")
    p.e(f"s_lshl_b32 {s(S_HST)}, {s(S_H)}, 6")
    p.e(f"s_add_u32 {s(S_HST)}, {s(S_HST)}, {HB}")
    p.e(f"s_and_b32 {s(S_A)}, {s(S_CW)}, 7")
    p.e(f"s_lshl_b32 {s(S_SG2)}, {s(S_W)}, 4")
    p.e(f"s_add_u32 {s(S_SG2)}, {s(S_SG2)}, {s(S_A)}")
    p.e(f"s_lshl_b32 {s(S_SG2)}, {s(S_SG2)}, 8")
    p.e(f"s_add_u32 {s(S_SG2)}, {s(S_SG2)}, {CTR2}")


def conv_addr2(p):
    t0, t1, t2 = C_TMP, C_TMP + 1, C_TMP + 2
    p.e(f"v_and_b32 {v(t0)}, 15, v1")
    p.e(f"v_lshrrev_b32 {v(t1)}, 4, v1")
    p.e(f"v_lshl_add_u32 {v(t0)}, {v(t1)}, 3, {v(t0)}")
    p.e(f"v_sub_u32 {v(t0)}, 15, {v(t0)}")
    p.e(f"v_and_b32 {v(t1)}, 1, {v(t0)}")
    p.e(f"v_lshlrev_b32 {v(t1)}, 4, {v(t1)}")
    p.e(f"v_lshlrev_b32 {v(t2)}, {v(t1)}, {v(SSM_RAW + 16)}")
    p.e(f"v_ashrrev_i32 {v(t0)}, 1, {v(t0)}")
    for k in range(4):
        p.e(f"v_cmp_eq_u32 vcc, {k}, {v(t0)}")
        p.e(f"v_cndmask_b32 {v(C_AD + k)}, 0, {v(t2)}, vcc")
    p.e(f"s_mul_i32 {s(S_C)}, {s(S_W)}, 4608")
    p.e(f"s_lshl_b32 {s(S_E)}, {s(S_W)}, 12")
    p.e(f"s_lshl_b32 {s(S_H)}, {s(S_CW)}, 14")
    p.e(f"s_add_u32 {s(S_H)}, {s(S_H)}, {s(S_E)}")
    for k in range(2):
        p.e(f"v_mov_b32 {v(C_TMP + 4 + k)}, 0")
    p.e(f"s_add_u32 {s(S_A)}, {s(S_C)}, {L_U + 4096}")
    p.e(f"v_add_u32 {v(t0)}, {s(S_A)}, {v(G_X0)}")
    p.e(f"ds_write_b64 {v(t0)}, {v(C_TMP + 4, 2)}")


def conv_load_u(p):
    tu = p.tok()
    p.e(f"s_add_u32 m0, {s(S_C)}, {L_U}")
    for q in (3, 2, 1, 0):
        p.add([dma(G_VD, R_WS, s(S_H), tu, f" offset:{1024 * q} sc1")])
    return tu


def conv_load_x(p):
    tx = p.tok()
    p.e(f"s_add_u32 m0, {s(S_E)}, {L_ST}")
    p.e(f"s_add_u32 {s(S_B)}, {s(S_E)}, {ST}")
    for q in range(4):
        p.add([dma(G_VD, R_WS, s(S_B), tx, f" offset:{1024 * q} sc1")])
    p.e(f"s_add_u32 m0, {s(S_E)}, {L_X}")
    p.e(f"s_add_u32 {s(S_A)}, {s(S_H)}, {XT}")
    for q in range(4):
        p.add([dma(G_VD, R_WS, s(S_A), tx, f" offset:{1024 * q} sc1")])
    return tx


def conv_epi(c, tok):
    pre, post = [], []
    tmp = C_TMP
    XR, RR, Q, XF, O = tmp, tmp + 4, tmp + 8, tmp + 16, tmp + 24
    for jj in range(2):
        j = 2 * c + jj
        pre.append(f"ds_read_b64 {v(XR, 2)}, {v(C_VX)} offset:{2048 * j}")
        pre.append(f"ds_read_b128 {v(RR, 4)}, {v(C_VS)} offset:{2048 * j}")
        pre.append(f"ds_read_b128 {v(Q + 4 * jj, 4)}, {v(C_VS)} offset:{2048 * j + 1024}")
        pre.append(Delay(7))
        for k in range(4):
            pre.append(f"v_and_b32 {v(XF + 4 * jj + k)}, {s(S_HI)}, {v(XR + (k >> 1))}" if k & 1 else
                       f"v_lshlrev_b32 {v(XF + 4 * jj + k)}, 16, {v(XR + (k >> 1))}")
        for k in range(4):
            pre.append(f"v_fmac_f32 {v(Q + 4 * jj + k)}, {v(XF + 4 * jj + k)}, {v(RR + k)}")
        for k in range(4):
            post.append(f"v_fmac_f32 {v(XF + 4 * jj + k)}, {v(Q + 4 * jj + k)}, {v(C_ACC + 4 * j + k)}")
        for k in range(2):
            post.append(f"v_cvt_pk_bf16_f32 {v(O + 2 * jj + k)}, {v(XF + 4 * jj + 2 * k)}, {v(XF + 4 * jj + 2 * k + 1)}")
    post.append([f"s_add_u32 {s(S_A)}, {s(S_HST)}, {40960 * c}",
                 Ins(f"buffer_store_dwordx4 {v(O, 4)}, {v(C_VH)}, {srd(R_WS)}, {s(S_A)} offen sc1", tok)])
    return pre, post


def conv_stages():
    allp = [(m, j) for m in range(8) for j in range(8) if m + j <= 7]
    return [[x for x in allp if sum(x) <= 3], [x for x in allp if sum(x) > 3 and max(x) <= 5], [x for x in allp if max(x) > 5]]


def conv_main(p, tx):
    stages = conv_stages()
    HOLD = {}
    if opt("hold", 2) >= 1:
        HOLD.update({("T", i, c): A0 + 164 + 4 * (2 * c + i) for i in range(2) for c in range(8)})
    if opt("hold", 2) >= 2:
        HOLD.update({("P", i, c): 188 + 4 * (2 * c + i) for i in range(2) for c in range(8)})
    held = set()
    steps, inited, k = [], set(), 0
    for si, pairs in enumerate(stages):
        cs = [[0, 1], [2, 3], [4, 5], [6, 7]] if si == 2 else [[c] for c in range(8)]
        for cl in cs:
            base = C_FR + 32 * (k & 1)
            loc, loads, mf, need = {}, [], [], []
            def get(kind, i, c):
                key = (kind, i, c)
                if key in held:
                    return HOLD[key]
                if key not in loc:
                    if key in HOLD:
                        rg = HOLD[key]
                    else:
                        rg = base + 4 * len([1 for q in loc if q not in HOLD])
                    loc[key] = rg
                    if kind == "T":
                        loads.append(Ins(f"ds_read_b64 {r(rg, 2)}, {v(C_VT)} offset:{512 * i + 64 * c}", p.tok()))
                        loads.append(Ins(f"ds_read_b64 {r(rg + 2, 2)}, {v(C_VT)} offset:{512 * i + 64 * c + 8}", p.tok()))
                    else:
                        loads.append(Ins(f"ds_read_b128 {r(rg, 4)}, {v(C_VP)} offset:{512 * (7 - i) + 64 * c}", p.tok()))
                return loc[key]
            for c in cl:
                rest, have = list(pairs), set((a_, b_) for a_, b_, c_ in held if c_ == c)
                while rest:
                    rest.sort(key=lambda x: ((("T", x[0]) not in have) + (("P", x[1]) not in have), -max(x), x))
                    m, j = rest.pop(0)
                    have.update({("T", m), ("P", j)})
                    pj, tm = get("P", j, c), get("T", m, c)
                    acc = v(C_ACC + 4 * (m + j), 4)
                    if c == 0 and m == 0:
                        mf.append(f"v_mfma_f32_16x16x32_bf16 {acc}, {v(C_AD, 4)}, {r(pj, 4)}, {acc if j in inited else 0}")
                        need.append(len(loads))
                        inited.add(j)
                    mf.append(f"v_mfma_f32_16x16x32_bf16 {acc}, {r(tm, 4)}, {r(pj, 4)}, {acc if m + j in inited else 0}")
                    need.append(len(loads))
                    inited.add(m + j)
            assert len([1 for q in loc if q not in HOLD]) <= 8
            held.update(q for q in loc if q in HOLD)
            steps.append((si, loads, mf, need))
            k += 1
    mfs, fixed, pre, sstart = [], {}, {}, {}
    LAT = opt("dslat", 7)
    prev_pos = [-99] * len(steps[0][1])
    for k, (si, loads, mf, need) in enumerate(steps):
        g0 = len(mfs)
        sstart.setdefault(si, g0)
        nxt = steps[k + 1][1] if k + 1 < len(steps) else []
        span = len(mf) if len(nxt) > len(mf) - 3 else len(nxt)
        pos = [g0 + i * span // len(nxt) for i in range(len(nxt))]
        for g, x in zip(pos, nxt):
            fixed.setdefault(g, []).append(x)
        done = 0
        for i in range(len(mf)):
            if need[i] > done:
                done = max([need[i]] + [q + 1 for q in range(len(loads)) if g0 + i - prev_pos[q] >= LAT])
                pre[g0 + i] = [wait(loads[done - 1].tok)]
        prev_pos = pos
        mfs += mf
    N = len(mfs)
    th = [p.tok(), p.tok()]
    e = [conv_epi(c, th[c >> 1]) for c in range(4)]
    cka, ck0 = CKA(), CK2(0)
    s1, s2 = sstart[1], sstart[2]
    XA = opt("xat", 40)
    LD = opt("cklead", 30)
    E1 = s1 + 48
    B0 = E1 + opt("sigd", 55)
    BA = opt("ckaat", 100)
    put = lambda g, l: pre.setdefault(g, []).extend(flat(l))
    put(XA, [wait(tx)] + (cka.test() if BA == XA else []) + ["s_barrier"] + stamp_l(8))
    put(max(0, BA - LD), [cka.load()])
    if BA != XA:
        put(BA, cka.test() + ["s_barrier"] + stamp_l(28))
    put(B0, signal2(0, th[0]) + stamp_l(11))
    streams = [
        Stream(e[0][0], XA, s1),
        Stream(stamp_l(9) + e[0][1] + e[1][0] + e[1][1], s1 + 3, E1),
        Stream(e[2][0], E1 + 2, s2),
        Stream(stamp_l(10) + e[2][1], s2 + 3, s2 + 14),
        Stream(e[3][0], s2 + 16, N),
    ]
    pc = Pacer(fixed, pre, float(OPTS.get("cpace", 4)))
    nb, nw = opt("nw1b", 40), opt("nw2c", 0)
    pc.put(w1_loads(0, nb), max(BA, opt("w1at", 0)))
    if nw:
        ckw = CKW()
        put(int(pc.t) - LD, [ckw.load()])
        pc.test(ckw, 0, stamp_l(29))
        assert pc.t < N - LD
        pc.put(w2_loads(0, nw))
    put(N - LD, [ck0.load()])
    assert pc.t <= N + 4, pc.t
    p.add(steps[0][1])
    sched(p, mfs, 2, fixed, streams, pre)
    stamp(p, 12)
    p.add(flat(e[3][1]))
    p.add(ck0.test())
    p.e("s_barrier")
    stamp(p, 13)
    t0, t1 = p.tok(), p.tok()
    p.add(flat(h_dma(0, t0) + h_dma(1, t1)[:opt("h1n", 4)]))
    p.add(flat(signal2(1, th[1])))
    stamp(p, 30)
    p.add(flat(h_dma(1, t1)[opt("h1n", 4):]))
    return t0, t1


G_ACC, G_BF, G_BP, G_SV, G_TMP, G_RT = [24, 40, 56, 24], 72, 104, [108, 112], 116, 124
KK0, KK1 = -2.302208198, 0.044715


def ln_consts(sv, bp):
    sm, sq, t, u = sv, sv + 1, sv + 2, sv + 3
    return [f"v_mul_f32 {v(t)}, {v(sm)}, {v(sm)}",
            f"v_mul_f32 {v(sq)}, {f32((1 + 1e-5) / 640)}, {v(sq)}",
            f"v_and_b32 {v(u)}, {s(S_HI)}, {v(sm)}",
            f"v_fmac_f32 {v(sq)}, {f32(-(1 + 1e-5) / 640 / 640)}, {v(t)}",
            f"v_sub_f32 {v(sm)}, {v(sm)}, {v(u)}",
            f"v_add_f32_e64 {v(sq)}, |{v(sq)}|, {s(S_PL)}",
            f"v_cvt_pk_bf16_f32 {v(bp)}, {v(u)}, {v(sm)}",
            f"v_rsq_f32 {v(t)}, {v(sq)}",
            None,
            f"v_mul_f32 {v(sm)}, {v(sq)}, {v(t)}",
            f"v_mul_f32 {v(sq)}, {f32(KK0)}, {v(t)}",
            f"v_and_b32 {v(u)}, {s(S_HI)}, {v(sm)}",
            f"v_mul_f32 {v(t)}, {v(t)}, {v(t)}",
            f"v_sub_f32 {v(bp + 1)}, {v(sm)}, {v(u)}",
            f"v_mul_f32 {v(t)}, {v(t)}, {v(sq)}",
            f"v_cvt_pk_bf16_f32 {v(bp + 1)}, {v(u)}, {v(bp + 1)}",
            f"v_mul_f32 {v(t)}, {f32(KK1)}, {v(t)}"]


def gelu_ops(acc, n, sv, pk=False):
    out = []
    if pk:
        for k0 in range(0, n, 8):
            m = min(8, n - k0)
            t = lambda j, w=1: v(G_TMP + j, w)
            x = lambda j, w=1: v(acc + k0 + j, w)
            for j in range(0, m, 2):
                out.append(f"v_pk_mul_f32 {t(j, 2)}, {x(j, 2)}, {x(j, 2)}")
            for j in range(0, m, 2):
                out.append(f"v_pk_fma_f32 {t(j, 2)}, {t(j, 2)}, {v(sv + 2, 2)}, {v(sv, 2)} op_sel:[0,0,1] op_sel_hi:[1,0,1]")
            for j in range(0, m, 2):
                out.append(f"v_pk_mul_f32 {t(j, 2)}, {t(j, 2)}, {x(j, 2)}")
            for j in range(m):
                out.append(f"v_exp_f32 {t(j)}, {t(j)}")
            for j in range(0, m, 2):
                out.append(f"v_pk_fma_f32 {t(j, 2)}, {t(j, 2)}, {v(sv, 2)}, {v(sv, 2)} op_sel_hi:[1,0,0]")
            for j in range(m):
                out.append(f"v_rcp_f32 {t(j)}, {t(j)}")
            for j in range(0, m, 2):
                out.append(f"v_pk_mul_f32 {t(j, 2)}, {t(j, 2)}, {x(j, 2)}")
            for j in range(0, m, 2):
                out.append(f"v_cvt_pk_bf16_f32 {x(j // 2)}, {t(j)}, {t(j + 1)}")
            out.append(("store", k0 // 8))
        return out
    def stages(k):
        t = lambda j: v(G_TMP + (k + j) % 6)
        x = lambda j: v(acc + k + j)
        A = [f"v_mul_f32 {t(j)}, {x(j)}, {x(j)}" for j in (0, 1)] + \
            [f"v_fma_f32 {t(j)}, {t(j)}, {v(sv + 2)}, {v(sv + 1)}" for j in (0, 1)] + \
            [f"v_mul_f32 {t(j)}, {t(j)}, {x(j)}" for j in (0, 1)]
        E = [f"v_exp_f32 {t(j)}, {t(j)}" for j in (0, 1)]
        Bv = [f"v_fma_f32 {t(j)}, {t(j)}, {v(sv)}, {v(sv)}" for j in (0, 1)]
        Rr = [f"v_rcp_f32 {t(j)}, {t(j)}" for j in (0, 1)]
        C = [f"v_mul_f32 {t(j)}, {t(j)}, {x(j)}" for j in (0, 1)] + \
            [f"v_cvt_pk_bf16_f32 {v(acc + (k & ~7) + (k & 7) // 2)}, {t(0)}, {t(1)}"]
        return A, E, Bv, Rr, C
    sts = [stages(k) for k in range(0, n, 2)]
    out += sts[0][0]
    for i, (A, E, Bv, Rr, C) in enumerate(sts):
        nA = sts[i + 1][0] if i + 1 < len(sts) else []
        pC = sts[i - 1][4] if i else []
        out += [E[0]] + pC[:2] + [E[1]] + pC[2:]
        if i and (2 * i) % 8 == 0:
            out.append(("store", (2 * i) // 8 - 1))
        out += nA[:1] + Bv[:1] + nA[1:2] + Bv[1:] + [Rr[0]] + nA[2:4] + [Rr[1]] + nA[4:]
    out += sts[-1][4]
    out.append(("store", (n - 1) // 8))
    return out


def g1_consts(c, w3):
    acc = G_ACC[c]
    so = 256 * (c & 1)
    if not w3:
        return ([f"ds_read_b64 {v(G_SV[c & 1], 2)}, {v(G_VST)} offset:{so}", Delay(3)] + ln_consts(G_SV[c & 1], G_BP) +
                [Delay(1), f"v_mfma_f32_32x32x16_bf16 {v(acc, 16)}, {a(A_P, 4)}, {v(G_BP, 4)}, {v(acc, 16)}"])
    out = [f"ds_read_b64 {v(acc + 8 * t + 4, 2)}, {v(G_VST)} offset:{so + 128 * t}" for t in range(2)] + [Delay(6)]
    l0, l1 = (ln_consts(acc + 8 * t + 4, G_BP + 4 * t) for t in range(2))
    for x, y in zip(l0, l1):
        out += [x, y]
    out.append(Delay(1))
    for t in range(2):
        out.append(f"v_mfma_f32_16x16x32_bf16 {v(acc + 8 * t, 4)}, {a(A_P, 4)}, {v(G_BP + 4 * t, 4)}, {v(acc + 8 * t, 4)}")
    return out


def g1_gelu(c, w3, tok, pk=False):
    acc = G_ACC[c]
    out = []
    if not w3:
        for x in gelu_ops(acc, 16, G_SV[c & 1], pk):
            if isinstance(x, tuple):
                q = x[1]
                x = [f"s_add_u32 {s(S_A)}, {s(S_HIS)}, {114688 * c}",
                     Ins(f"buffer_store_dwordx4 {v(acc + 8 * q, 4)}, {v(G_VSH)}, {srd(R_WS)}, {s(S_A)} offen offset:{512 * q} sc1", tok)]
            out.append(x)
    else:
        for t in range(2):
            for x in gelu_ops(acc + 8 * t, 4, acc + 8 * t + 4, pk):
                if isinstance(x, tuple):
                    out.append(f"v_cndmask_b32 {v(acc + 8 * t)}, {v(acc + 8 * t)}, {v(G_VSH)}, {s(S_MK + 6, 2)}")
                    out.append(f"v_cndmask_b32 {v(acc + 8 * t + 1)}, {v(acc + 8 * t + 1)}, 0, {s(S_MK + 6, 2)}")
                    x = [f"s_add_u32 {s(S_A)}, {s(S_HIS)}, {114688 * c + 57344 * t}",
                         Ins(f"buffer_store_dwordx2 {v(acc + 8 * t, 2)}, {v(G_X0)}, {srd(R_WS)}, {s(S_A)} offen sc1", tok)]
                out.append(x)
    return out


def g1_stats_out(c, tok):
    acc = G_ACC[c]
    out = []
    for k in range(1, 4):
        for t in range(2):
            g = acc + 8 * t + 4
            out.append(f"v_cndmask_b32 {v(g)}, {v(g)}, {v(g + k)}, {s(S_MK + 2 * (k - 1), 2)}")
    for t in range(2):
        out.append(Ins(f"ds_write_b32 {v(G_VRR)}, {v(acc + 8 * t)} offset:{256 * (c & 1) + 128 * t}", tok))
        out.append(Ins(f"ds_write_b32 {v(G_VRW)}, {v(acc + 8 * t + 4)} offset:{256 * (c & 1) + 128 * t + 4}", tok))
    return out


def res_stash(c):
    return [f"ds_read_b64_tr_b16 {v(G_RT, 2)}, {v(G_VRR)} offset:0",
            f"ds_read_b64_tr_b16 {v(G_RT + 2, 2)}, {v(G_VRR)} offset:2048", Delay(4),
            f"ds_write_b64 {v(G_VRW)}, {v(G_RT, 2)} offset:{2560 * c}",
            f"ds_write_b64 {v(G_VRW)}, {v(G_RT + 2, 2)} offset:{2560 * c + 64}"]


def aprime(w3):
    F, P, B, T = 56, 58, 63, 64
    half = 16 if w3 else 32
    out = []
    if w3:
        out += [f"v_and_b32 {v(F)}, 15, v1",
                [f"s_mul_i32 {s(S_C)}, {s(S_M)}, 13108", f"s_lshr_b32 {s(S_C)}, {s(S_C)}, 14", f"s_and_b32 {s(S_C)}, {s(S_C)}, 12"],
                [f"s_mul_i32 {s(S_E)}, {s(S_M)}, 12", f"s_add_u32 {s(S_C)}, {s(S_C)}, {s(S_E)}"],
                [f"s_cmp_eq_u32 {s(S_M)}, 15", f"s_cselect_b32 {s(S_C)}, 60, {s(S_C)}", f"s_cselect_b32 {s(S_E)}, 60, 0"],
                f"s_add_u32 {s(S_C)}, {s(S_C)}, 1536",
                f"v_lshrrev_b32 {v(T)}, 2, {v(F)}",
                f"v_mad_u32_u24 {v(F)}, {v(T)}, {s(S_E)}, {v(F)}",
                f"v_add_u32 {v(F)}, {s(S_C)}, {v(F)}",
                f"v_min_u32 {v(F)}, 1727, {v(F)}"]
    else:
        out += [f"v_and_b32 {v(F)}, 31, v1",
                [f"s_mul_i32 {s(S_C)}, {s(S_M)}, 3", f"s_add_u32 {s(S_C)}, {s(S_C)}, {s(S_W)}"],
                f"v_lshl_add_u32 {v(F)}, {s(S_C)}, 5, {v(F)}"]
    out += [f"v_lshlrev_b32 {v(F + 1)}, 1, {v(F)}", f"v_lshlrev_b32 {v(F)}, 2, {v(F)}",
            f"buffer_load_ushort {v(B)}, {v(F + 1)}, {srd(R_B1)}, 0 offen"]
    n = 2 if w3 else 1
    for k in range(n):
        out.append([f"s_mov_b32 {s(S_C)}, {CSP + 8192 * k}",
                    f"buffer_load_dword {v(P + k)}, {v(F)}, {srd(R_WS)}, {s(S_C)} offen sc1"])
    post = [f"v_add_f32 {v(P)}, {v(P)}, {v(P + k)}" for k in range(1, n)]
    post += [f"v_mul_f32 {v(P)}, {f32(-1 / 640)}, {v(P)}",
             f"v_lshl_or_b32 {v(B)}, {v(B)}, 16, {v(B)}",
             f"v_cmp_gt_u32 {s(98, 2) if not STAMPS else s(R_SH, 2)}, {half}, v1",
             f"v_and_b32 {v(T)}, {s(S_HI)}, {v(P)}",
             f"v_sub_f32 {v(P)}, {v(P)}, {v(T)}",
             f"v_cndmask_b32 {v(B)}, 0, {v(B)}, {s(98, 2) if not STAMPS else s(R_SH, 2)}",
             f"v_cndmask_b32 {v(T)}, {v(P)}, {v(T)}, {s(98, 2) if not STAMPS else s(R_SH, 2)}"]
    if w3:
        post += [f"v_cmp_gt_u32 {s(98, 2) if not STAMPS else s(R_SH, 2)}, 32, v1", f"v_accvgpr_write_b32 {a(A_P + 2)}, 0",
                 f"v_accvgpr_write_b32 {a(A_P + 3)}, 0",
                 f"v_cndmask_b32 {v(T)}, 0, {v(T)}, {s(98, 2) if not STAMPS else s(R_SH, 2)}"]
    else:
        post += [f"v_accvgpr_write_b32 {a(A_P + 2)}, 0", f"v_accvgpr_write_b32 {a(A_P + 3)}, 0"]
    post += [f"v_cvt_pk_bf16_f32 {v(T)}, {v(T)}, {v(T)}", f"v_accvgpr_write_b32 {a(A_P + 1)}, {v(B)}",
             f"v_accvgpr_write_b32 {a(A_P)}, {v(T)}"]
    return out, post


def gemm1(p, w3, th0, th1):
    th = [th0, th1, p.tok(), p.tok()]
    ts = [p.tok() for _ in range(3)]
    ts.append(ts[2])
    u = 2 if w3 else 1
    LEAD = 7
    p.e(f"s_mov_b32 {s(S_PL)}, {f32(1e-10)}")
    for k in (2, 3, 6, 7) if w3 else (2, 3):
        p.e(f"v_mov_b32 {v(G_BP + k)}, 0")
    ckh, ck30 = CK2(1), CK3(0)
    HB_ = opt('h2bar', 45)
    rtok = [p.tok() for _ in range(160)]
    def reads(S):
        st = S % 40
        b = G_BF + 4 * (S % 8)
        if not w3:
            return [Ins(f"ds_read_b64_tr_b16 {v(b, 2)}, {v(G_VA)} offset:{1024 * st}", rtok[S]),
                    Ins(f"ds_read_b64_tr_b16 {v(b + 2, 2)}, {v(G_VB)} offset:{1024 * st}", rtok[S])]
        va = G_VB if st & 1 else G_VA
        return [Ins(f"ds_read_b64_tr_b16 {v(b, 2)}, {v(va)} offset:{2048 * (st >> 1)}", rtok[S]),
                Ins(f"ds_read_b64_tr_b16 {v(b + 2, 2)}, {v(va)} offset:{2048 * (st >> 1) + 1024}", rtok[S])]
    nb, nw = opt("nw1b", 40), opt("nw2c", 0)
    ckw = CKW()
    ap = aprime(w3)
    nd = lambda l: flat([x for x in l if x is not None and not isinstance(x, Delay)])
    if not nw:
        p.add(ckw.load())
    p.add(nd(w1_loads(nb, 40) + ap[0]))
    p.wait(th[0])
    p.e("s_barrier")
    stamp(p, 14)
    for S in range(LEAD):
        p.add(reads(S))
    mfs, fixed, pre = [], {}, {}
    for S in range(160):
        c, st = divmod(S, 40)
        acc = G_ACC[c]
        b = v(G_BF + 4 * (S % 8), 4)
        rd = reads(S + LEAD) if S + LEAD < 160 else []
        g = len(mfs)
        if S % 4 == 0 and S:
            pre[g] = [wait(rtok[S + 3])]
        gs = [int(x) for x in OPTS.get("gst", "").split(",") if x]
        if S in gs:
            pre[g] = pre.get(g, []) + flat(stamp_l(1 + gs.index(S), True))
        if st == 40 - LEAD and c < 3:
            d = (L_HBUF[c + 1] - L_HBUF[c]) & 0xffffffff
            pre[g] = pre.get(g, []) + [f"v_add_u32 {v(G_VA)}, {d}, {v(G_VA)}", f"v_add_u32 {v(G_VB)}, {d}, {v(G_VB)}",
                                       wait(th[c + 1])]
            pre[g] += (ckh.test() if (c == 0 and HB_ == 33) else []) + ["s_barrier"]
            pre[g] += flat(stamp_l(15 + c))
        if not w3:
            mfs.append(f"v_mfma_f32_32x32x16_bf16 {v(acc, 16)}, {a(4 * st, 4)}, {b}, {v(acc, 16) if st else 0}")
            fixed[g] = rd
        else:
            ks, t = st >> 1, st & 1
            x, gr = v(acc + 8 * t, 4), v(acc + 8 * t + 4, 4)
            mfs.append(f"v_mfma_f32_16x16x32_bf16 {x}, {a(80 + 4 * ks, 4)}, {b}, {x if ks else 0}")
            mfs.append(f"v_mfma_f32_16x16x32_bf16 {gr}, {b}, {b}, {gr if ks else 0}")
            fixed[g], fixed[g + 1] = rd[:1], rd[1:]
    at = lambda items, S, n=1: Stream(items, S * u, (S + n) * u)
    streams = []
    SB, GE = 5, (opt('ge3', 22) if w3 else opt('ge', 16))
    GX = opt('gx', 16)
    assert GX <= GE
    g2 = g1_gelu(2, w3, ts[2])
    cut = len(g2) * opt("g2cut", 70) // 100
    for c in range(3):
        o = 40 * (c + 1)
        if w3:
            tk = p.tok()
            streams.append(Stream(g1_stats_out(c, tk), u * o + 3, u * (o + SB) - 1))
            pre.setdefault(u * (o + SB), []).append(wait(tk))
        pre.setdefault(u * (o + SB), []).extend((ckh.test() if (c == 0 and HB_ == 45) else []) + ["s_barrier"])
        streams.append(at(g1_consts(c, w3), o + SB, GE - SB - (1 if w3 else 2)))
    LD, HP = opt("glead", 12), float(OPTS.get("ghpace", 1.3))
    put = lambda S, l: pre.setdefault(S * u, []).extend(flat(l))
    pc = Pacer(fixed, pre, float(OPTS.get("gpace", 1.6)), u)
    NL = opt("nw2g", 70)
    wl = w2_loads(nw, NL)
    k = 0
    def weights(until):
        nonlocal k
        while k < len(wl) and pc.t < until:
            late = nw + k - NW2_G1
            pc.put([wl[k]], 120 + late if (late >= 0 and not w3) else 0)
            k += 1
    if not nw:
        pc.test(ckw, opt("w2at", 6), stamp_l(29))
    put(HB_ - LD, [ckh.load()])
    weights(HB_ - opt("hquiet", 4))
    pc.put(h_dma(2, th[2]), HB_, pace=HP)
    weights(opt("h3at", 60))
    pc.put(h_dma(3, th[3]), 46, pace=HP)
    weights(999)
    assert pc.t < 161, pc.t
    streams.append(at(ap[1], 20, 20))
    streams.append(at(signal3(0, ts[0]), 80 + GX + opt("s3d", 22)))
    put(160 - opt("ck30lead", 4), [ck30.load()])
    streams.append(at(signal3(1, ts[1]), min(120 + GX + opt("s3d", 22), 159)))
    if not w3:
        for c in range(4):
            x = res_stash(c)
            if c < 3:
                x.append(f"v_add_u32 {v(G_VRR)}, {(L_HBUF[c + 1] - L_HBUF[c]) & 0xffffffff}, {v(G_VRR)}")
            streams.append(at(x, 40 * c, 14))
    for c in range(2):
        streams.append(at(g1_gelu(c, w3, ts[c]), 40 * (c + 1) + GE, 40 + GX - GE))
    streams.append(at(g2[:cut], 120 + GE, 40 - GE))
    sched(p, mfs, 2 if w3 else 6, fixed, streams, pre)
    stamp(p, 18)
    g2r = g2[cut:]
    if w3:
        p.add(nd(g2r[:6]))
        g2r = g2r[6:]
        p.add(g1_stats_out(3, None))
    else:
        k = len(g2r) * 2 // 5
        p.add(nd(g2r[:k]))
        g2r = g2r[k:]
    p.wait_all(vm=False)
    p.e("s_barrier")
    cs = g1_consts(3, w3)
    k = next(i for i, x in enumerate(cs) if isinstance(x, Delay))
    h = len(g2r) // 2
    p.add(nd(cs[:k] + g2r[:h] + cs[k:] + g2r[h:]))
    p.add(nd(g1_gelu(3, w3, ts[3], pk=True)))
    stamp(p, 19)
    return ts[3], ck30


H_ACC, H_RD, H_SUM, H_O = [44, 24], 64, 96, 104


def gemm2(p, ts3, ck30):
    def red_write(c):
        return [f"ds_write_b128 {v(H_VW)}, {v(H_ACC[c & 1] + 4 * tl, 4)} offset:{L_RED[c & 1] + 64 * tl}" for tl in range(5)]

    def red_pre(c):
        out = [f"ds_read_b128 {v(H_O, 4)}, {v(H_VRES)} offset:{2560 * c}", Delay(6)]
        for k in range(8):
            src = H_O + (k >> 1)
            out.append(f"v_and_b32 {v(H_SUM + k)}, {s(S_HI)}, {v(src)}" if k & 1 else f"v_lshlrev_b32 {v(H_SUM + k)}, 16, {v(src)}")
        return out

    def red_post(c, pk=False):
        out = []
        for w in range(4):
            for h in range(2):
                out.append(f"ds_read_b128 {v(H_RD + 8 * w + 4 * h, 4)}, {v(H_VR)} offset:{L_RED[c & 1] + 5376 * w + 16 * h}")
        out.append(Delay(6))
        for w in range(4):
            if pk:
                for k in range(0, 8, 2):
                    out.append(f"v_pk_add_f32 {v(H_SUM + k, 2)}, {v(H_SUM + k, 2)}, {v(H_RD + 8 * w + k, 2)}")
            else:
                for k in range(8):
                    out.append(f"v_add_f32 {v(H_SUM + k)}, {v(H_SUM + k)}, {v(H_RD + 8 * w + k)}")
        for k in range(4):
            out.append(f"v_cvt_pk_bf16_f32 {v(H_O + k)}, {v(H_SUM + 2 * k)}, {v(H_SUM + 2 * k + 1)}")
        out.append([f"s_add_u32 {s(S_A)}, {s(S_OSO)}, {512 * 1280 * c}",
                    f"buffer_store_dwordx4 {v(H_O, 4)}, {v(H_VO)}, {srd(R_OUT)}, {s(S_A)} offen{OPTS.get('outmod', '')}"])
        return out

    ck1, ck2 = CK3(1), SCheck(S_C3P, [1024], R_WS, None, S_C3P, 1024, 16)
    toks = [[p.tok() for _ in range(14)] for _ in range(4)]
    p.add(ck30.test())
    hl = hid_loads(0, 0, toks[0]) + w2_loads(opt("nw2g", 70), 70)
    n0 = opt("g2n0", 12)
    p.add(flat(hl[:n0]))
    p.add(flat([x for x in red_pre(0) if not isinstance(x, Delay)]))
    p.add(ck1.load())
    p.add(flat(signal3(2, ts3)))
    p.add(flat(hl[n0:]))
    stamp(p, 27)
    mf, pre, streams, fixed = [], {}, [], {}
    pc = Pacer(fixed, pre, float(OPTS.get('hgap', 3.5)))
    for c in range(4):
        o = 70 * c
        for st in range(14):
            if st % 2 == 0:
                pre.setdefault(len(mf), []).append(wait(toks[c][st + 1]))
            for tl in range(5):
                acc = v(H_ACC[c & 1] + 4 * tl, 4)
                mf.append(f"v_mfma_f32_16x16x32_bf16 {acc}, {r(W2LOC[5 * st + tl], 4)}, {r(HIDBUF[c & 1][st], 4)}, {acc if st else 0}")
        pre[o].extend(flat(stamp_l(20 + c)))
        if c == 0:
            pc.test(ck1, opt("t31", 10)).put(hid_loads(1, 0, toks[1]))
        if c == 1:
            T = o + opt("t32", 25)
            pre.setdefault(T - opt("ck3lead", 28), []).extend(ck2.load())
            pc.test(ck2, T).put(hid_loads(2, 0, toks[2]))
        if c == 2:
            for st, x in enumerate(hid_loads(3, 0, toks[3])):
                pc.put([x], max(75 + 5 * st, opt("t33", 125)))
        if c:
            fl = []
            for x in red_write(c - 1):
                fl += [x, Delay(2)]
            fl += [Delay(3), [wait_all(vm=False), Ins("s_barrier")]] + red_post(c - 1) + [Delay(1)]
            streams.append(Stream(fl + red_pre(c), o + 4, o + 70))
    sched(p, mf, 2, fixed, streams, pre)
    stamp(p, 24)
    p.add(red_write(3))
    p.wait_all(vm=False)
    p.e("s_barrier")
    p.add(flat([x for x in red_post(3, pk=True) if not isinstance(x, Delay)]))
    stamp(p, 25)


def kernel():
    p = Prog()
    if STAMPS:
        p.e("s_memrealtime s[84:85]")
    for b in (R_Q, R_WS):
        p.e(f"s_load_dwordx2 {s(b, 2)}, s[0:1], {KARG[b]}")
    p.e(f"s_lshr_b32 {s(S_IDX)}, s2, 3")
    touch_code(p)
    p.e(f"s_cmp_ge_u32 {s(S_IDX)}, 28")
    p.e("s_cbranch_scc1 L_prep0")
    p.e(f"s_cmp_ge_u32 {s(S_IDX)}, 20")
    p.e("s_cbranch_scc1 L_stats")
    p.save("entry")
    tu_st = p0_conv(p)
    def mid():
        stamp(p, 4)
        signal(p, tu_st, ready=True, single=True)
        stamp(p, 5)
    conv_build_t(p, mid)
    conv_addr2(p)
    p.e(f"s_cmp_lg_u32 {s(S_W)}, 0")
    p.e("s_cbranch_scc1 L_nopoll")
    p.save("poll")
    c1 = Check(R_WS, V_POL1, None, 0, 16) if opt("xjoin", 1) else Check(R_WS, None, S_CK1, 0, 16)
    p.add(c1.load())
    p.add(c1.test())
    p.label("L_nopoll")
    p.restore("poll")
    p.e("s_barrier")
    stamp(p, 6)
    tu = conv_load_u(p)
    if opt("xjoin", 1):
        tx = conv_load_x(p)
        p.wait(tu)
        stamp(p, 7)
    else:
        c1x = Check(R_WS, V_PA, S_CKA, CTRS, 16)
        p.add(c1x.load())
        p.add(c1x.test())
        stamp(p, 7)
        tx = conv_load_x(p)
    th0, th1 = conv_main(p, tx)
    p.label("L_g1")
    p.e(f"s_cmp_eq_u32 {s(S_W)}, 3")
    p.e("s_cbranch_scc1 L_g1w3")
    p.save("g1")
    ts3, ck30 = gemm1(p, False, th0, th1)
    p.label("L_g2")
    gemm2(p, ts3, ck30)
    if STAMPS:
        p.wait_all()
        stamp(p, 26)
        stamp_flush(p)
    p.label("L_end")
    p.e("s_endpgm")
    p.label("L_addr3")
    p.reset()
    gemm_addr(p, True)
    p.e("s_branch L_addr_c")
    p.label("L_stats")
    p.restore("entry")
    p0_stats(p)
    p.label("L_prep0")
    p.restore("entry")
    p.e(f"s_cmp_ge_u32 {s(S_IDX)}, 32")
    p.e("s_cbranch_scc1 L_end2")
    p0_prep(p)
    p.label("L_end2")
    p.e("s_endpgm")
    p.label("L_noconv")
    p.raw("    s_waitcnt vmcnt(0) lgkmcnt(0)")
    p.reset()
    cka, ckw, ck0, cks = VKA(), VKW(), VK2(0), Check(R_WS, V_PA, S_CKA, CTRS, 16)
    p.e(f"s_cmp_lg_u32 {s(S_W)}, 0")
    p.e("s_cbranch_scc1 L_nopoll3")
    for c_ in (cks, cka):
        p.add(c_.load())
        p.add(c_.test())
    p.label("L_nopoll3")
    p.e("s_barrier")
    stamp(p, 28)
    p.add(flat(w1_loads(0, 40)))
    nw = opt("nw2c", 0)
    if nw or opt("ahead", 0):
        p.add(ckw.load())
        p.add(ckw.test())
    stamp(p, 29)
    p.add(flat(w2_loads(0, nw)))
    if opt("ahead", 0):
        per = (70 - nw + 2) // 3
        p.e(f"s_lshr_b32 {s(S_A)}, {s(S_IDX)}, 2")
        p.e(f"s_sub_u32 {s(S_A)}, {s(S_A)}, 5")
        p.e(f"s_lshl_b32 {s(S_A)}, {s(S_A)}, 10")
        p.e(f"s_add_u32 {s(S_A)}, {s(S_A)}, {s(S_W2B)}")
        for k in range(per):
            p.e(f"s_add_u32 {s(S_B)}, {s(S_A)}, {min(nw + 3 * k, 67) * 1024}")
            p.e(f"buffer_load_dwordx4 {v(32 + 4 * k, 4)}, {v(G_VD)}, {srd(R_WS)}, {s(S_B)} offen sc1")
    p.wait_all()
    stamp(p, 7)
    p.e(f"s_cmp_lg_u32 {s(S_W)}, 0")
    p.e("s_cbranch_scc1 L_nopoll2")
    p.add(ck0.load())
    p.add(ck0.test())
    p.label("L_nopoll2")
    p.e("s_barrier")
    stamp(p, 11)
    p.add(flat(h_dma(0, None) + h_dma(1, None)))
    p.e("s_branch L_g1")
    p.label("L_g1w3")
    p.restore("g1")
    gemm1(p, True, th0, th1)
    p.e("s_branch L_g2")
    emit_slow(p)
    return p


def kernel_iso():
    p = Prog()
    p.e("s_memrealtime s[84:85]")
    for b in (R_Q, R_WS):
        p.e(f"s_load_dwordx2 {s(b, 2)}, s[0:1], {KARG[b]}")
    p.e(f"s_lshr_b32 {s(S_IDX)}, s2, 3")
    prologue(p, (R_K,))
    p.e(f"s_mul_i32 {s(S_CW)}, {s(S_XCD)}, 20")
    p.wait_all(vm=False)
    stamp(p, 0)
    common_addr(p, 0)
    p.label("L_addr_r1")
    p.label("L_addr_r2")
    conv_addr(p)
    conv_addr2(p)
    for i in range(40):
        p.e(f"s_mov_b32 m0, {4096 * i}")
        p.e(f"v_lshlrev_b32 v32, 4, v0")
        p.e(f"s_lshl_b32 {s(S_A)}, {s(S_W)}, 10")
        p.e(f"s_add_u32 m0, m0, {s(S_A)}")
        p.e(f"s_mov_b32 {s(S_B)}, {4096 * i}")
        descs(p, (R_Q,))
        p.add([dma(32, R_Q, s(S_B))])
    for i in range(64):
        p.e(f"buffer_load_dwordx4 {a(4 * i, 4)}, {v(G_VD)}, {srd(R_Q)}, 0 offen offset:{16 * i}")
    for i in range(8, 63):
        p.e(f"buffer_load_dwordx4 {v(4 * i, 4)}, {v(G_VD)}, {srd(R_Q)}, 0 offen offset:{16 * i}")
    p.wait_all()
    p.e("s_barrier")
    p.e("s_mov_b32 s95, 2")
    p.label("L_again")
    n0 = len(p.ins)
    which = OPTS["iso"]
    t = [p.tok() for _ in range(4)]
    if which == "conv":
        stamp(p, 7)
        conv_main(p, t[0])
        stamp(p, 13)
    elif which == "g2":
        gemm2(p, t[0], CK3(0))
    else:
        p.e(f"s_cmp_eq_u32 {s(S_W)}, {3 if which == 'g1' else (9 if which == 'g1a' else 0)}" if which != "g1b" else "s_cmp_eq_u32 0, 0")
        p.e("s_cbranch_scc1 L_g1w3")
        gemm1(p, False, t[0], t[1])
        p.e("s_branch L_g2")
        p.label("L_g1w3")
        gemm1(p, True, t[0], t[1])
        p.label("L_g2")
    vt = set(t)
    keep = []
    drop = OPTS.get("drop", "").split(",")
    for x in p.ins[n0:]:
        if x.kind == "vmem":
            vt.add(x.tok)
            continue
        if x.pseudo == "wait" and x.arg in vt:
            continue
        if x.pseudo is None and "writelane" not in x.op and any(d and x.op.startswith(d) for d in drop):
            vt.add(x.tok)
            continue
        keep.append(x)
    p.ins[n0:] = keep
    p.wait_all()
    p.e("s_barrier")
    p.e("s_sub_u32 s95, s95, 1")
    p.e("s_cmp_lg_u32 s95, " + OPTS.get("once", "0"))
    p.e("s_cbranch_scc1 L_again")
    stamp(p, 26)
    stamp_flush(p)
    p.e("s_endpgm")
    p.label("L_addr3")
    p.reset()
    gemm_addr(p, True)
    p.e("s_branch L_addr_c")
    emit_slow(p)
    return p


def build():
    head = open(f"cdna_kernels/{NAME}.s.ref").read().split("; Override launch")[0]
    label = NAME + "_kernel"
    body, st = finalize(kernel_iso() if 'iso' in OPTS else kernel())
    print(f"instr {st.n} waits {st.waits} nop-states {st.nops} smblock {st.smblock} dummies {st.dummies}", file=sys.stderr)
    body = body.replace(" ; soft", "").replace(" ; async", "")
    return head + f"""; Generated by gen10.py: one persistent launch, one workgroup per CU.
; @launch grid=(256,1,1) block=(256,1,1) lds={LDS_BYTES}
.amdgcn_target "amdgcn-amd-amdhsa--gfx950"
.text
.globl {label}
.p2align 8
.type {label},@function
{label}:
{body}L_code_end:
.section .rodata,"a"
.p2align 6
.amdhsa_kernel {label}
  .amdhsa_next_free_vgpr 512
  .amdhsa_next_free_sgpr 102
  .amdhsa_accum_offset 256
  .amdhsa_group_segment_fixed_size 0
  .amdhsa_kernarg_size 112
  .amdhsa_user_sgpr_count 2
  .amdhsa_user_sgpr_kernarg_segment_ptr 1
  .amdhsa_system_sgpr_workgroup_id_x 1
  .amdhsa_float_denorm_mode_32 3
.end_amdhsa_kernel
"""


if __name__ == "__main__":
    for o in sys.argv[2:]:
        k, _, val = o.partition("=")
        OPTS[k] = val.replace("+", " ") if val else "1"
    STAMPS = "stamps" in OPTS
    open(sys.argv[1], "w").write(build())
```

```python
import sys
NAME = "sequential_preLN__ssm_conv_h3__mixer_channel_mlp__prompt"
def wrap(src, a, b, mul, bmin=False, now=False):
    t = open(src).read()
    t = t.replace("; @launch grid=(256,1,1) block=(256,1,1) lds=163840",
      f"; @launch kernel={NAME}_kernel grid=(256,1,1) block=(256,1,1) lds=163840\n; @launch kernel=ec_kernel grid=(1,1,1) block=(64,1,1) lds=0")
    red = ""
    for k in range(6):
        red += f"v_xor_b32 v20, {1<<k}, v0\nv_lshlrev_b32 v20, 2, v20\nds_bpermute_b32 v21, v20, v2\nds_bpermute_b32 v22, v20, v6\ns_waitcnt lgkmcnt(0)\nv_min_u32 v2, v2, v21\nv_{'min' if bmin else 'max'}_u32 v6, v6, v22\n"
    fix = "".join(f"v_cmp_eq_u32 vcc, 0, v{6+i}\ns_nop 1\nv_cndmask_b32 v{6+i}, v{6+i}, v23, vcc\n" for i in range(4)) if bmin else ""
    op = 'min' if bmin else 'max'
    k = f""".globl ec_kernel
.p2align 8
.type ec_kernel,@function
ec_kernel:
s_cmp_ge_u32 s2, 1
s_cbranch_scc1 L_ec_end
s_load_dwordx2 s[4:5], s[0:1], 104
s_memrealtime s[10:11]
s_mov_b32 s6, 0x1400000
s_mov_b32 s7, 0x20000
s_mov_b32 s8, 0x1100000
v_lshlrev_b32 v1, 12, v0
v_mov_b32 v23, -1
s_waitcnt lgkmcnt(0)
""" + "".join(f"buffer_load_dword v{2+i}, v1, s[4:7], s8 offen offset:{1024*i+4*a}\nbuffer_load_dword v{6+i}, v1, s[4:7], s8 offen offset:{1024*i+4*b}\n" for i in range(4)) + f"""s_waitcnt vmcnt(0)
{fix}v_min_u32 v2, v2, v3
v_min_u32 v4, v4, v5
v_min_u32 v2, v2, v4
v_{op}_u32 v6, v6, v7
v_{op}_u32 v8, v8, v9
v_{op}_u32 v6, v6, v8
{red}s_nop 1
v_readfirstlane_b32 s12, v2
v_readfirstlane_b32 s13, v6
s_nop 4
{'s_mov_b32 s13, s10' if now else ''}
s_sub_u32 s12, s13, s12
s_mul_i32 s12, s12, {mul}
s_min_u32 s12, s12, 20000
s_memrealtime s[10:11]
s_waitcnt lgkmcnt(0)
L_ec:
s_memrealtime s[14:15]
s_waitcnt lgkmcnt(0)
s_sub_u32 s14, s14, s10
s_cmp_lt_u32 s14, s12
s_cbranch_scc1 L_ec
L_ec_end:
s_endpgm
"""
    t = t.replace('.section .rodata,"a"', k + '.section .rodata,"a"')
    t += """.p2align 6
.amdhsa_kernel ec_kernel
  .amdhsa_next_free_vgpr 32
  .amdhsa_next_free_sgpr 32
  .amdhsa_accum_offset 32
  .amdhsa_group_segment_fixed_size 0
  .amdhsa_kernarg_size 112
  .amdhsa_user_sgpr_count 2
  .amdhsa_user_sgpr_kernarg_segment_ptr 1
  .amdhsa_system_sgpr_workgroup_id_x 1
.end_amdhsa_kernel
"""
    return t
if __name__ == "__main__":
    src = sys.argv[1]
    for i, spec in enumerate(sys.argv[2:]):
        a, b, mul = spec.split(",")[:3]
        open(f"ec{i}.s", "w").write(wrap(src, int(a), int(b), int(mul), "min" in spec, "now" in spec))
```

```python
import sys, struct
from dsl import *

NAME = "sequential_preLN__ssm_conv_h3__mixer_channel_mlp__prompt"

UT, XT, HB, HID, W2P, ST, CTR = 0, 0x280000, 0x500000, 0x780000, 0xE80000, 0x10B0000, 0x10C0000
STAMP = 0x1100000
W1P = 0x1180000
W1R = W1P + 48 * 40 * 1024
CSP = 0x10B4000
WS_BYTES = 0x1400000
CTR3, CTR2, CTR1, CTRS, CTRW, CTRA, CTRB = (CTR + k * 128 for k in (0, 256, 768, 808, 872, 936, 1024))
OOB = 0x40000000
L_T, L_U, L_X, L_ST, L_HA, L_MISC = 0, 66560, 84992, 101376, 117760, 158720
L_KT = 66560
L_HBUF = [L_HA, 0, 40960, L_HA]
L_RES = 81920
L_RED = [0, 21504]
LDS_BYTES = 163840
R_Q, R_K, R_V, R_SSM, R_W1, R_W2, R_OUT, R_WS, R_SH, R_D, R_B1, R_B2, R_DBG = range(4, 56, 4)
S_W, S_XCD, S_IDX, S_CW, S_G, S_DS, S_M, S_T = range(56, 64)
S_TO = 64
S_A, S_B, S_C, S_E, S_F, S_H = 65, 66, 67, 68, 69, 70
S_PO, S_P2, S_HI, S_PL, S_PH = 71, 72, 73, 74, 75
S_MK = 76
S_HST, S_HLD, S_WL, S_W2B, S_C3A, S_C3P, S_HIS, S_HIL, S_OSO, S_CKW, S_W1B, S_CKA = range(84, 96)
S_STMP = 96
S_ROLE, S_RT, S_RO = 3, 100, 101
S_ONE, S_SG2, S_PL2, S_SG1, S_Q0, S_Q1, S_CV, S_U = 12, 13, 14, 15, 16, 17, 18, 19
S_WL3, S_HL3 = 10, 11
S_PR, S_J = 40, 41
S_CK1 = R_W2
srd = lambda b: s(b, 4)
SIZES = {R_K: 2621440, R_V: 2621440, R_SH: 5120, R_Q: 2621440, R_SSM: 2621440, R_W1: 2211840, R_W2: 2211840,
         R_OUT: 2621440, R_WS: WS_BYTES, R_D: 1280, R_B1: 3456, R_B2: 1280, R_DBG: 256}
KARG = {R_K: 8, R_V: 16, R_SH: 24, R_Q: 0, R_SSM: 32, R_D: 40, R_W1: 56, R_B1: 64, R_W2: 72, R_B2: 80, R_OUT: 88,
        R_DBG: 96, R_WS: 104}
(G_VA, G_VB, G_VD, G_VSH, G_VST, G_VRR, G_VRW, G_X0, G_X1, G_ONE, H_VW, H_VR, H_VRES, H_VO, V_SIG, V_POL, V_PT,
 V_STAMP) = range(2, 20)
A0 = 256
A_P = 160
W2LOC = ([A0 + 228 + 4 * i for i in range(7)] + [128 + 4 * i for i in range(8)] + [A0 + 164 + 4 * i for i in range(16)]
         + [160 + 4 * i for i in range(24)] + [A0 + 4 * i for i in range(15)])
NW2_G1 = 55
HIDBUF = [[A0 + 60 + 4 * i for i in range(14)], [A0 + 116 + 4 * i for i in range(11)] + [112, 116, 120]]
V_W1, V_SIG1, V_POL1, V_PA = 20, 26, 27, 254
SSM_RAW = 232

OPTS = {}
STAMPS = False
opt = lambda k, d: int(OPTS.get(k, d))


def f32(x):
    return "0x%08x" % struct.unpack("<I", struct.pack("<f", x))[0]


def stamp_l(k, force=False):
    if force:
        pass
    elif not STAMPS or ("entry" in OPTS and k in (12, 13)) or (OPTS["stamps"] != "1" and k not in (0, 26) and str(k) not in OPTS["stamps"].split(",")):
        return []
    return [[f"s_memrealtime {s(S_STMP, 2)}", f"s_memtime {s(S_STMP + 2, 2)}" if "spin" not in OPTS else f"s_sub_u32 {s(S_STMP + 2)}, 0x40000, {s(S_TO)}",
             f"v_writelane_b32 {v(V_STAMP)}, {s(S_STMP + 2)}, {32 + k}", f"v_writelane_b32 {v(V_STAMP)}, {s(S_STMP)}, {k}"]]


def stamp(p, k):
    p.add(flat(stamp_l(k)))
    if STAMPS and k == 0:
        p.e(f"v_writelane_b32 {v(V_STAMP)}, s84, 31")
        if "entry" in OPTS:
            p.e(f"v_writelane_b32 {v(V_STAMP)}, s86, 12")
            p.e(f"v_writelane_b32 {v(V_STAMP)}, s88, 13")


def stamp_flush(p):
    if not STAMPS:
        return
    p.e(f"s_lshl_b32 {s(S_A)}, s2, 2")
    p.e(f"s_add_u32 {s(S_A)}, {s(S_A)}, {s(S_W)}")
    p.e(f"s_lshl_b32 {s(S_A)}, {s(S_A)}, 8")
    p.e(f"s_add_u32 {s(S_A)}, {s(S_A)}, {STAMP}")
    p.e("v_lshlrev_b32 v2, 2, v1")
    p.e(f"buffer_store_dword {v(V_STAMP)}, v2, {srd(R_WS)}, {s(S_A)} offen")


def prologue(p, first):
    order = list(first) + [b for b in KARG if b not in first]
    if STAMPS:
        p.e("s_memrealtime s[86:87]")
    for b in [x for x in first if x not in (R_Q, R_WS)]:
        p.e(f"s_load_dwordx2 {s(b, 2)}, s[0:1], {KARG[b]}")
    if STAMPS:
        p.e(f"v_mov_b32 {v(V_STAMP)}, 0")
    p.e("v_and_b32 v1, 63, v0")
    p.e("v_lshrrev_b32 v2, 6, v0")
    p.e(f"s_mov_b32 {s(R_K + 2)}, 2621440")
    p.e(f"s_mov_b32 {s(R_K + 3)}, 0x20000")
    descs(p, first)
    p.e(f"v_readfirstlane_b32 {s(S_W)}, v2")
    p.e(f"s_and_b32 {s(S_XCD)}, s2, 7")
    if STAMPS:
        p.e("s_memrealtime s[88:89]")


def descs(p, which):
    for b in which:
        if b == R_K:
            continue
        if SIZES[b] == 2621440:
            p.e(f"s_mov_b64 {s(b + 2, 2)}, {s(R_K + 2, 2)}")
        else:
            p.e(f"s_mov_b32 {s(b + 2)}, {SIZES[b]}")
            p.e(f"s_mov_b32 {s(b + 3)}, {s(R_K + 3)}")


def prologue2(p):
    for b in (R_OUT, R_DBG, R_B1):
        p.e(f"s_load_dwordx2 {s(b, 2)}, s[0:1], {KARG[b]}")
    descs(p, (R_WS, R_OUT, R_DBG, R_B1))
    p.e(f"s_cmp_eq_u32 {s(S_W)}, 0")
    p.e(f"s_cselect_b32 {s(S_RT)}, 1, 0")
    p.e(f"s_cselect_b32 {s(S_RO)}, 0, 4096")
    p.e(f"s_lshr_b32 {s(S_G)}, {s(S_XCD)}, 1")
    p.e(f"s_lshl_b32 {s(S_G)}, {s(S_G)}, 2")
    p.e(f"s_lshr_b32 {s(S_M)}, {s(S_IDX)}, 3")
    p.e(f"s_add_u32 {s(S_G)}, {s(S_G)}, {s(S_M)}")
    p.e(f"s_and_b32 {s(S_DS)}, {s(S_IDX)}, 7")
    p.e(f"s_and_b32 {s(S_T)}, {s(S_XCD)}, 1")
    p.e(f"s_lshl_b32 {s(S_M)}, {s(S_T)}, 3")
    p.e(f"s_add_u32 {s(S_M)}, {s(S_M)}, {s(S_DS)}")
    if opt("map42", 1):
        p.e(f"s_lshl_b32 {s(S_A)}, {s(S_T)}, 2")
        p.e(f"s_lshr_b32 {s(S_T)}, {s(S_DS)}, 2")
        p.e(f"s_and_b32 {s(S_DS)}, {s(S_DS)}, 3")
        p.e(f"s_add_u32 {s(S_DS)}, {s(S_DS)}, {s(S_A)}")
    p.e(f"s_mov_b32 {s(S_TO)}, 0x20000")
    p.e(f"s_mov_b32 {s(S_HI)}, 0xffff0000")
    p.e(f"s_mov_b32 {s(S_PL)}, 0x05040100")
    p.e(f"s_mov_b32 {s(S_PH)}, 0x07060302")
    p.e(f"v_lshlrev_b32 {v(G_VD)}, 4, v1")
    p.e(f"v_lshlrev_b32 {v(G_X0)}, 3, v1")


def dma(vaddr, rs, soff, tok=None, mods=""):
    return Ins(f"buffer_load_dwordx4 {v(vaddr)}, {srd(rs)}, {soff} offen{mods} lds", tok)


SLOW = []


class Check:
    n = 0

    def __init__(self, rs, voff, sbase, add, target):
        self.rs, self.voff, self.sbase, self.addc, self.target = rs, voff, sbase, add, target
        if "nosync" in OPTS:
            self.target = 0

    def _ld(self, sreg):
        so = [f"s_add_u32 {s(sreg)}, {s(self.sbase)}, {self.addc}" if self.sbase is not None
              else f"s_mov_b32 {s(sreg)}, {self.addc}"]
        fl = OPTS.get("pollfl", "sc1")
        if self.voff is None:
            return so + [f"buffer_load_dword {v(V_PT)}, off, {srd(self.rs)}, {s(sreg)} {fl}"]
        return so + [f"buffer_load_dword {v(V_PT)}, {v(self.voff)}, {srd(self.rs)}, {s(sreg)} offen {fl}"]

    def load(self):
        return self._ld(S_P2)

    def test(self):
        Check.n += 1
        k = Check.n
        SLOW.append((k, self))
        return [Ins(f"v_cmp_gt_u32 vcc, {self.target}, {v(V_PT)}"), Ins(f"s_cbranch_vccnz L_slow{k} ; soft"),
                Ins(f"L_ret{k}:", pseudo="raw")]


class SCheck(Check):
    def __init__(self, ssamp, offs, *args):
        super().__init__(*args)
        self.ssamp, self.offs = ssamp, offs

    def load(self):
        out = [f"s_mov_b64 {s(S_Q0, 2)}, 0"]
        for k, o in enumerate(self.offs):
            out.append(f"s_load_dword {s(S_Q0 + k)}, {s(R_WS, 2)}, {s(self.ssamp)} offset:{o} ; async")
        return out

    def test(self):
        Check.n += 1
        k = Check.n
        SLOW.append((k, self))
        out = []
        q = S_Q0
        if len(self.offs) == 2:
            out.append(Ins(f"s_min_u32 {s(S_P2)}, {s(S_Q0)}, {s(S_Q1)}"))
            q = S_P2
        return out + [Ins(f"s_cmp_lt_u32 {s(q)}, {self.target}"), Ins(f"s_cbranch_scc1 L_slow{k} ; soft"),
                      Ins(f"L_ret{k}:", pseudo="raw")]


def emit_slow(p):
    for k, c in SLOW:
        p.label(f"L_slow{k}")
        p.reset()
        p.add(c._ld(S_PO))
        if isinstance(c, SCheck):
            p.wait_all()
        if "spin" in OPTS:
            p.e(f"s_sub_u32 {s(S_TO)}, {s(S_TO)}, 1")
        if "cnt" in OPTS:
            print("check", SLOW.index((k, c)), type(c).__name__, hex(c.addc), c.target, file=sys.stderr)
            p.e(f"v_readlane_b32 {s(S_STMP)}, {v(V_STAMP)}, {33 + SLOW.index((k, c))}")
            p.e(f"s_add_u32 {s(S_STMP)}, {s(S_STMP)}, 1")
            p.e(f"v_writelane_b32 {v(V_STAMP)}, {s(S_STMP)}, {33 + SLOW.index((k, c))}")
        p.e(f"v_cmp_gt_u32 vcc, {c.target}, {v(V_PT)}")
        p.e(f"s_cbranch_vccz L_ret{k} ; soft")
        p.e(f"s_sub_u32 {s(S_TO)}, {s(S_TO)}, 1")
        p.e(f"s_cbranch_scc0 L_slow{k} ; soft")
        p.e(f"s_mov_b32 {s(S_TO)}, 0")
        p.e(f"s_branch L_ret{k} ; soft")


READY = Check(R_DBG, None, S_RO, 0, s(S_RT))


def touch_code(p):
    p.e(f"s_getpc_b64 {s(S_MK, 2)}")
    p.raw("L_pc:")
    p.e(f"s_lshl_b32 {s(S_A)}, {s(S_IDX)}, 12")
    p.e(f"v_lshl_add_u32 v251, v0, 4, {s(S_A)}")
    p.e(f"v_min_u32 v251, L_code_end-L_pc-16, v251")
    p.e(f"v_mad_u64_u32 v[252:253], vcc, v251, 1, {s(S_MK, 2)}")
    p.e(f"global_load_dwordx4 a[252:255], v[252:253], off")


def sig_rep8(p, sbase, S_SG1=S_SG1):
    p.e(f"s_lshl_b32 {s(S_SG1)}, {s(S_W)}, 11")
    p.e(f"s_add_u32 {s(S_SG1)}, {s(S_SG1)}, {s(sbase)}")


def atom(so, off=0):
    return f"s_atomic_add {s(S_ONE)}, {s(R_WS, 2)}, {s(so)} offset:{off}"


def signal(p, tok=None, ready=False, single=False, off=0, S_SG1=S_SG1):
    if tok is None:
        p.wait_all(lgkm=False)
    else:
        p.wait(tok)
    if ready:
        p.add(READY.test())
    p.e("s_barrier")
    if single:
        Check.n += 1
        p.e(f"s_cmp_lg_u32 {s(S_W)}, 0")
        p.e(f"s_cbranch_scc1 L_nosig{Check.n} ; soft")
        p.e(atom(S_SG1))
        p.label(f"L_nosig{Check.n}", soft=True)
    else:
        p.e(atom(S_SG1, off))
        p.e(atom(S_SG1, off + 1024))


def helper_checks(p, n=2):
    Check.n += 1
    k = Check.n
    p.e(f"s_cmp_lg_u32 {s(S_W)}, 0")
    p.e(f"s_cbranch_scc1 L_nochk{k}")
    p.save("chk")
    if opt('hpollw', 1):
        p.raw('    s_waitcnt lgkmcnt(0)')
    for c_ in (Check(R_WS, V_PA, S_CKA, CTRS, 16), VKA())[:n][::(-1 if opt('hrev', 1) else 1)]:
        p.add(c_.load())
        p.add(c_.test())
    p.label(f"L_nochk{k}")
    p.restore("chk")
    p.e("s_barrier")


def common_addr(p, role):
    p.e(f"s_mov_b32 {s(S_ROLE)}, {role}")
    if role:
        p.e("s_branch L_addr")
    else:
        p.save("addr")
        p.label("L_addr")
        prologue2(p)
        p.e(f"s_cmp_eq_u32 {s(S_W)}, 3")
        p.e("s_cbranch_scc1 L_addr3")
        gemm_addr(p, False)
        p.label("L_addr_c")
        gemm_addr_common(p)
        p.wait_all(vm=False)
        p.e(f"s_cmp_eq_u32 {s(S_ROLE)}, 1")
        p.e("s_cbranch_scc1 L_addr_r1")
        p.e(f"s_cmp_eq_u32 {s(S_ROLE)}, 2")
        p.e("s_cbranch_scc1 L_addr_r2")
    if role:
        p.label(f"L_addr_r{role}")


def p0_conv(p):
    VA, VH, VK, VU, VX, VC = 208, 209, 210, 211, 212, 213
    W, WP, KR, VR, KF, U, VF, OUT = 32, 40, 56, 78, 94, 138, 170, 176
    prologue(p, (R_K, R_V, R_SH))
    p.e(f"s_mul_i32 {s(S_CW)}, {s(S_XCD)}, 20")
    p.e(f"s_add_u32 {s(S_CW)}, {s(S_CW)}, {s(S_IDX)}")
    p.e(f"v_lshrrev_b32 {v(VC)}, 3, v1")
    p.e(f"v_mul_u32_u24 {v(VC)}, 1280, {v(VC)}")
    p.e(f"v_and_b32 {v(VA)}, 7, v1")
    p.e(f"v_lshl_add_u32 {v(VA)}, {v(VA)}, 4, {v(VC)}")
    p.e(f"s_lshr_b32 {s(S_E)}, {s(S_CW)}, 4")
    p.e(f"s_and_b32 {s(S_F)}, {s(S_CW)}, 15")
    p.e(f"s_mul_i32 {s(S_A)}, {s(S_F)}, {128 * 1280}")
    p.e(f"s_lshl_b32 {s(S_B)}, {s(S_E)}, 7")
    p.e(f"s_add_u32 {s(S_A)}, {s(S_A)}, {s(S_B)}")
    p.e(f"s_sub_u32 {s(S_B)}, {s(S_A)}, 10240")
    p.e(f"v_add_u32 {v(VH)}, {s(S_B)}, {v(VA)}")
    p.e(f"s_mul_i32 {s(S_B)}, {s(S_W)}, {4 * 10240}")
    p.e(f"s_add_u32 {s(S_A)}, {s(S_A)}, {s(S_B)}")
    p.e(f"s_mul_i32 {s(S_C)}, {s(S_W)}, {4 * 1040}")
    p.e(f"v_lshrrev_b32 {v(VC)}, 4, v0")
    p.e(f"v_lshlrev_b32 {v(VU)}, 5, {v(VC)}")
    p.e(f"s_lshl_b32 {s(S_H)}, {s(S_E)}, 9")
    p.e(f"s_mov_b32 m0, {L_KT}")
    p.wait_all(vm=False)
    stamp(p, 0)
    p.e(f"s_cmp_lg_u32 {s(S_W)}, 0")
    p.e("s_cbranch_scc1 L_nohalo ; soft")
    p.e("s_mov_b32 exec_lo, 0")
    p.add([dma(VH, R_K, 0)])
    p.e("s_mov_b32 exec_lo, -1")
    p.label("L_nohalo", soft=True)
    p.reset()
    tkv, tx, tu = p.tok(), p.tok(), p.tok()
    p.e(f"buffer_load_dwordx4 {v(W, 4)}, {v(VU)}, {srd(R_SH)}, {s(S_H)} offen")
    p.e(f"buffer_load_dwordx4 {v(W + 4, 4)}, {v(VU)}, {srd(R_SH)}, {s(S_H)} offen offset:16")
    for rs, lb, tk in ((R_K, L_KT + 1040, tkv), (R_V, L_KT + 17680, tkv)):
        for o in range(4):
            p.e(f"s_add_u32 m0, {s(S_C)}, {lb + 1040 * o}")
            p.e(f"s_add_u32 {s(S_B)}, {s(S_A)}, {10240 * o}")
            p.add([dma(VA, rs, s(S_B), tk)])
    for b in (R_SSM, R_D):
        p.e(f"s_load_dwordx2 {s(b, 2)}, s[0:1], {KARG[b]}")
    descs(p, (R_SSM, R_D))
    def ssm_loads():
        p.e(f"s_lshl_b32 {s(S_C)}, {s(S_CW)}, 2")
        p.e(f"s_add_u32 {s(S_C)}, {s(S_C)}, {s(S_W)}")
        p.e(f"s_lshl_b32 {s(S_B)}, {s(S_C)}, 12")
        for q in range(4):
            p.e(f"buffer_load_dwordx4 {v(SSM_RAW + 4 * q, 4)}, {v(G_VD)}, {srd(R_SSM)}, {s(S_B)} offen offset:{1024 * q}")
        p.e(f"s_lshl_b32 {s(S_B)}, {s(S_C)}, 1")
        p.e(f"buffer_load_ushort {v(SSM_RAW + 16)}, off, {srd(R_D)}, {s(S_B)}")
    p.e(f"v_lshlrev_b32 {v(G_VD)}, 4, v1")
    ssm_loads()
    common_addr(p, 0)
    conv_addr(p)
    p.e(f"s_lshr_b32 {s(S_E)}, {s(S_CW)}, 4")
    p.e(f"s_and_b32 {s(S_F)}, {s(S_CW)}, 15")
    p.e(f"v_and_b32 {v(VH)}, 15, v1")
    p.e(f"v_mul_u32_u24 {v(VK)}, 1040, {v(VH)}")
    p.e(f"v_lshl_add_u32 {v(VK)}, {v(VC)}, 3, {v(VK)}")
    p.e(f"v_add_u32 {v(VK)}, {L_KT}, {v(VK)}")
    p.e(f"v_lshlrev_b32 {v(VH)}, 4, {v(VH)}")
    p.e(f"v_sub_u32 {v(VH)}, 240, {v(VH)}")
    p.e(f"v_lshl_add_u32 {v(VU)}, {v(VC)}, 14, {v(VH)}")
    p.e(f"s_lshl_b32 {s(S_B)}, {s(S_E)}, 8")
    p.e(f"s_add_u32 {s(S_B)}, {s(S_B)}, {CTR1}")
    p.e(f"s_mov_b32 {s(S_SG1)}, {s(S_B)}")
    p.e(f"s_mov_b32 {s(S_CK1)}, {s(S_B)}")
    p.e(f"s_add_u32 {s(S_A)}, {s(S_CKA)}, {CTRS}")
    p.e(f"v_add_u32 {v(V_POL1)}, {s(S_A)}, {v(V_PA)}")
    p.e(f"v_writelane_b32 {v(V_POL1)}, {s(S_B)}, 0")
    p.e(f"s_lshl_b32 {s(S_A)}, {s(S_E)}, 18")
    p.e(f"s_lshl_b32 {s(S_B)}, {s(S_F)}, 8")
    p.e(f"s_sub_u32 {s(S_A)}, {s(S_A)}, {s(S_B)}")
    for ch in range(4):
        for j in range(4):
            dst = WP + (ch >> 1) * 8 + j * 2 + (ch & 1)
            src = W + 2 * ch + (j >> 1)
            p.e(f"v_and_b32 {v(dst)}, {s(S_HI)}, {v(src)}" if j & 1 else f"v_lshlrev_b32 {v(dst)}, 16, {v(src)}")
    p.wait(tkv)
    p.e("s_barrier")
    stamp(p, 1)
    for i in range(11):
        off = 640 + 128 * i if i < 3 else 1040 + 128 * (i - 3)
        p.e(f"ds_read_b64 {v(KR + 2 * i, 2)}, {v(VK)} offset:{off}")
        if i >= 3:
            p.e(f"ds_read_b64 {v(VR + 2 * (i - 3), 2)}, {v(VK)} offset:{17680 + 128 * (i - 3)}")
    p.add(READY.load())
    def unpack(dst, src):
        p.e(f"v_lshlrev_b32 {v(dst)}, 16, {v(src)}")
        p.e(f"v_and_b32 {v(dst + 1)}, {s(S_HI)}, {v(src)}")
    for i in range(3):
        for pr in range(2):
            unpack(KF + 4 * i + 2 * pr, KR + 2 * i + pr)
    for pr in range(2):
        for t in range(8):
            unpack(KF + 4 * (t + 3) + 2 * pr, KR + 2 * (t + 3) + pr)
            unpack(VF + 2 * (t & 1), VR + 2 * t + pr)
            d = v(U + 4 * t + 2 * pr, 2)
            for j in (3, 2, 1, 0):
                kf, w = v(KF + 4 * (t + 3 - j) + 2 * pr, 2), v(WP + 8 * pr + 2 * j, 2)
                p.e(f"v_pk_mul_f32 {d}, {kf}, {w}" if j == 3 else f"v_pk_fma_f32 {d}, {kf}, {w}, {d}")
            p.e(f"v_pk_mul_f32 {d}, {d}, {v(VF + 2 * (t & 1), 2)}")
        for ch in (2 * pr, 2 * pr + 1):
            for i in range(4):
                p.e(f"v_cvt_pk_bf16_f32 {v(OUT + 4 * ch + i)}, {v(U + 4 * (7 - 2 * i) + ch)}, {v(U + 4 * (6 - 2 * i) + ch)}")
        for ch in (2 * pr, 2 * pr + 1):
            p.e(f"s_add_u32 {s(S_B)}, {s(S_A)}, {UT + 3840 + 4096 * ch}")
            p.e(f"buffer_store_dwordx4 {v(OUT + 4 * ch, 4)}, {v(VU)}, {srd(R_WS)}, {s(S_B)} offen sc1", tu)
    stamp(p, 2)
    return tu


def tile_addr(p, t0, t1, hi_shift, hi_mul, nrow, base=0):
    p.e(f"s_mul_i32 {s(S_A)}, {s(S_W)}, 5")
    p.e(f"s_and_b32 {s(S_B)}, {s(S_A)}, 1")
    p.e(f"s_lshr_b32 {s(S_A)}, {s(S_A)}, 1")
    p.e(f"s_lshl_b32 {s(S_A)}, {s(S_A)}, 10")
    p.e(f"s_lshl_b32 {s(S_E)}, {s(S_B)}, 6")
    p.e(f"s_add_u32 {s(S_A)}, {s(S_A)}, {s(S_E)}")
    if base:
        p.e(f"s_add_u32 {s(S_A)}, {s(S_A)}, {base}")
    p.e(f"s_mul_i32 {s(S_B)}, {s(S_B)}, 896")
    p.e(f"s_add_u32 {s(S_B)}, {s(S_B)}, 64")
    p.e(f"v_lshrrev_b32 {v(t0)}, {hi_shift}, v1")
    p.e(f"v_mul_u32_u24 {v(t0)}, {hi_mul}, {v(t0)}")
    p.e(f"v_bfe_u32 {v(t1)}, v1, 2, {nrow}")
    p.e(f"v_lshl_add_u32 {v(t0)}, {v(t1)}, 7, {v(t0)}")
    p.e(f"v_and_b32 {v(t1)}, 3, v1")
    p.e(f"v_lshl_add_u32 {v(t0)}, {v(t1)}, 3, {v(t0)}")
    p.e(f"v_add_u32 {v(t0)}, {s(S_A)}, {v(t0)}")
    p.e(f"v_add_u32 {v(t1)}, {s(S_B)}, {v(t0)}")


def tile_reads(p, fr, t0, t1, astep):
    for i in range(10):
        j = i >> 1
        for aa in range(2):
            p.e(f"ds_read_b64_tr_b16 {v(fr + 4 * i + 2 * aa, 2)}, {v(t1 if j & 1 else t0)} offset:{1024 * (j >> 1) + 32 * (i & 1) + astep * aa}")


def p0_stats(p):
    X, SU, SQ, VX, VW, T0, T1, T2, T3, VS, VO = 32, 72, 74, 76, 77, 78, 79, 80, 81, 82, 83
    FR, TA, TB, VR, B2 = 84, 124, 125, 126, 128
    SJ = S_H
    XB, SB = 49152, 98304
    prologue(p, (R_Q,))
    p.e(f"s_sub_u32 {s(S_C)}, {s(S_IDX)}, 20")
    p.e(f"s_lshr_b32 {s(S_E)}, {s(S_C)}, 1")
    p.e(f"s_and_b32 {s(S_F)}, {s(S_C)}, 1")
    p.e(f"s_lshl_b32 {s(S_A)}, {s(S_XCD)}, 8")
    p.e(f"s_lshl_b32 {s(S_B)}, {s(S_F)}, 7")
    p.e(f"s_add_u32 {s(S_A)}, {s(S_A)}, {s(S_B)}")
    p.e(f"s_lshl_b32 {s(S_B)}, {s(S_E)}, 2")
    p.e(f"s_add_u32 {s(S_A)}, {s(S_A)}, {s(S_B)}")
    p.e(f"s_lshl_b32 {s(S_B)}, {s(S_W)}, 5")
    p.e(f"s_add_u32 {s(S_A)}, {s(S_A)}, {s(S_B)}")
    p.e(f"s_mul_i32 {s(S_A)}, {s(S_A)}, 1280")
    p.e(f"v_lshrrev_b32 {v(VX)}, 5, v1")
    p.e(f"v_bfe_u32 {v(T0)}, v1, 3, 2")
    p.e(f"v_lshl_add_u32 {v(VX)}, {v(VX)}, 4, {v(T0)}")
    p.e(f"v_mul_u32_u24 {v(VX)}, 1280, {v(VX)}")
    p.e(f"v_and_b32 {v(T3)}, 7, v1")
    p.e(f"v_lshl_add_u32 {v(VX)}, {v(T3)}, 4, {v(VX)}")
    p.e(f"s_mul_i32 {s(S_B)}, {s(S_W)}, 10272")
    p.wait_all(vm=False)
    stamp(p, 0)
    tx = p.tok()
    for i in range(10):
        p.e(f"s_add_u32 m0, {s(S_B)}, {XB + 896 * i}")
        p.add([dma(VX, R_Q, s(S_A), tx, f" offset:{128 * i}")])
    for b in (R_W2, R_B2):
        p.e(f"s_load_dwordx2 {s(b, 2)}, s[0:1], {KARG[b]}")
    descs(p, (R_W2, R_B2))
    p.e(f"s_lshl_b32 {s(SJ)}, {s(S_XCD)}, 3")
    p.e(f"s_add_u32 {s(SJ)}, {s(SJ)}, {s(S_C)}")
    common_addr(p, 1)
    p.e(f"v_lshrrev_b32 {v(T0)}, 3, v0")
    p.e(f"v_lshl_add_u32 {v(VW)}, {s(SJ)}, 5, {v(T0)}")
    p.e(f"s_cmp_lt_u32 {s(SJ)}, 48")
    p.e("s_cbranch_scc1 L_w2reg")
    p.e(f"s_sub_u32 {s(S_A)}, {s(SJ)}, 48")
    p.e(f"s_lshl_b32 {s(S_A)}, {s(S_A)}, 1")
    p.e(f"s_and_b32 {s(S_B)}, {s(S_W)}, 1")
    p.e(f"s_add_u32 {s(S_A)}, {s(S_A)}, {s(S_B)}")
    p.e(f"s_mul_i32 {s(S_B)}, {s(S_A)}, 13108")
    p.e(f"s_lshr_b32 {s(S_B)}, {s(S_B)}, 16")
    p.e(f"s_lshl_b32 {s(S_B)}, {s(S_B)}, 2")
    p.e(f"s_mul_i32 {s(S_E)}, {s(S_A)}, 12")
    p.e(f"s_add_u32 {s(S_B)}, {s(S_B)}, {s(S_E)}")
    p.e(f"s_add_u32 {s(S_B)}, {s(S_B)}, 1536")
    p.e(f"s_lshr_b32 {s(S_E)}, {s(S_W)}, 1")
    p.e(f"v_lshrrev_b32 {v(T0)}, 3, v1")
    p.e(f"v_lshl_add_u32 {v(T0)}, {s(S_E)}, 3, {v(T0)}")
    p.e(f"v_add_u32 {v(VW)}, {s(S_B)}, {v(T0)}")
    p.e(f"v_lshrrev_b32 {v(T1)}, 2, {v(T0)}")
    p.e(f"v_mul_u32_u24 {v(T1)}, 60, {v(T1)}")
    p.e(f"v_add_u32 {v(T1)}, {v(T1)}, {v(T0)}")
    p.e(f"v_add_u32 {v(T1)}, 1596, {v(T1)}")
    p.e(f"s_cmp_eq_u32 {s(S_A)}, 15")
    p.e("s_cselect_b64 vcc, -1, 0")
    p.e(f"v_cndmask_b32 {v(VW)}, {v(VW)}, {v(T1)}, vcc")
    p.e(f"v_mov_b32 {v(T1)}, 4096")
    p.e(f"v_cmp_gt_u32 vcc, 12, {v(T0)}")
    p.e(f"v_cndmask_b32 {v(VW)}, {v(T1)}, {v(VW)}, vcc")
    p.label("L_w2reg")
    p.e(f"v_mul_u32_u24 {v(VW)}, 1280, {v(VW)}")
    p.e(f"v_lshl_add_u32 {v(VW)}, {v(T3)}, 4, {v(VW)}")
    tile_addr(p, TA, TB, 4, 10272, 2, XB)
    p.e(f"s_mul_i32 {s(S_B)}, {s(S_W)}, 10272")
    p.e(f"s_add_u32 {s(S_B)}, {s(S_B)}, {XB}")
    p.e(f"v_add_u32 {v(VR)}, {s(S_B)}, {v(G_VD)}")
    p.e(f"v_add_u32 {v(T0)}, {s(SJ)}, v1")
    p.e(f"v_and_b32 {v(T0)}, 3, {v(T0)}")
    p.e(f"v_lshrrev_b32 {v(T1)}, 4, v1")
    p.e(f"v_lshl_add_u32 {v(T0)}, {v(T0)}, 2, {v(T1)}")
    p.e(f"v_bfe_u32 {v(T1)}, v1, 2, 2")
    p.e(f"v_lshl_add_u32 {v(T0)}, {v(T1)}, 10, {v(T0)}")
    p.e(f"v_lshlrev_b32 {v(VO)}, 4, {v(T0)}")
    p.e(f"s_sub_u32 {s(S_C)}, {s(S_IDX)}, 20")
    for k in range(4):
        p.e(f"v_mov_b32 {v(SU + k)}, 0")
    p.e(f"v_bfe_u32 {v(T0)}, v1, 2, 2")
    p.e(f"v_lshl_add_u32 {v(T0)}, {s(SJ)}, 2, {v(T0)}")
    p.e(f"v_lshlrev_b32 {v(T1)}, 7, {v(T0)}")
    p.e(f"v_lshlrev_b32 {v(T0)}, 8, {v(T0)}")
    p.e(f"v_add_u32 {v(T0)}, {CTR2 - CTR3}, {v(T0)}")
    p.e("v_cmp_gt_u32 vcc, 16, v0")
    p.e(f"v_cndmask_b32 {v(T0)}, {v(T0)}, {v(T1)}, vcc")
    p.e(f"v_and_b32 {v(T1)}, 3, v1")
    p.e(f"v_lshl_add_u32 {v(T0)}, {v(T1)}, 4, {v(T0)}")
    p.e(f"v_mov_b32 {v(T2)}, {OOB}")
    p.e("v_cmp_gt_u32 vcc, 32, v0")
    p.e(f"v_cndmask_b32 {v(T0)}, {v(T2)}, {v(T0)}, vcc")
    p.e(f"s_mov_b32 {s(S_A)}, {CTR3}")
    p.e(f"buffer_store_dwordx4 {v(SU, 4)}, {v(T0)}, {srd(R_WS)}, {s(S_A)} offen sc1")
    p.e(f"v_lshrrev_b32 {v(T0)}, 3, v0")
    p.e(f"v_lshlrev_b32 {v(T0)}, 2, {v(T0)}")
    p.e(f"v_bfe_u32 {v(T1)}, v1, 2, 1")
    p.e(f"v_lshl_add_u32 {v(T0)}, {v(T1)}, 7, {v(T0)}")
    p.e(f"v_add_u32 {v(T0)}, {SB}, {v(T0)}")
    p.e(f"s_and_b32 {s(S_A)}, {s(S_C)}, 3")
    p.e(f"s_lshl_b32 {s(S_A)}, {s(S_A)}, 8")
    p.e(f"s_add_u32 {s(S_A)}, {s(S_A)}, {CTRS}")
    sig_rep8(p, S_A)
    p.e(f"v_mov_b32 {v(T2)}, {OOB}")
    p.e(f"v_lshlrev_b32 {v(VX)}, 2, v1")
    p.e(f"v_lshrrev_b32 {v(T3)}, 5, v1")
    p.e(f"v_and_b32 {v(VS)}, 127, {v(VX)}")
    p.e(f"v_lshl_add_u32 {v(VS)}, {v(T3)}, 10, {v(VS)}")
    p.e("v_cmp_gt_u32 vcc, 64, v0")
    p.e(f"v_cndmask_b32 {v(VS)}, {v(T2)}, {v(VS)}, vcc")
    p.e(f"v_add_u32 {v(VX)}, {SB}, {v(VX)}")
    p.e(f"s_mul_i32 {s(S_F)}, {s(S_W)}, {10 * 65536}")
    p.e(f"s_lshl_b32 {s(S_E)}, {s(SJ)}, 8")
    p.e(f"s_add_u32 {s(S_F)}, {s(S_F)}, {s(S_E)}")
    p.e(f"s_lshl_b32 {s(S_A)}, {s(S_XCD)}, 11")
    p.e(f"s_lshl_b32 {s(S_E)}, {s(S_C)}, 7")
    p.e(f"s_add_u32 {s(S_A)}, {s(S_A)}, {s(S_E)}")
    p.e(f"s_add_u32 {s(S_A)}, {s(S_A)}, {ST}")
    p.e(f"s_mov_b32 {s(S_E)}, 0x3f803f80")
    p.e(f"v_cmp_eq_u32 vcc, 0, {v(T1)}")
    p.wait(tx)
    p.e("s_barrier")
    stamp(p, 1)
    p.add(READY.load())
    tile_reads(p, FR, TA, TB, 512)
    for i in range(10):
        p.e(f"ds_read_b128 {v(X + 4 * i, 4)}, {v(VR)} offset:{1024 * i}")
    for i in range(10):
        p.e(f"s_add_u32 {s(S_B)}, {s(S_F)}, {XT + 65536 * i}")
        p.e(f"buffer_store_dwordx4 {v(FR + 4 * i, 4)}, {v(VO)}, {srd(R_WS)}, {s(S_B)} offen sc1")
        if i >= 2:
            for k in range(5 * (i - 2), 5 * (i - 1)):
                p.e(f"v_dot2_f32_bf16 {v(SU + (k & 1))}, {v(X + k)}, {s(S_E)}, {v(SU + (k & 1))}")
                p.e(f"v_dot2_f32_bf16 {v(SQ + (k & 1))}, {v(X + k)}, {v(X + k)}, {v(SQ + (k & 1))}")
    p.e(f"v_add_f32 {v(SU)}, {v(SU)}, {v(SU + 1)}")
    p.e(f"v_add_f32 {v(SQ)}, {v(SQ)}, {v(SQ + 1)}")
    for ctl in ("quad_perm:[1,0,3,2]", "quad_perm:[2,3,0,1]", "row_half_mirror"):
        for x in (SU, SQ):
            p.e(f"v_add_f32_dpp {v(x)}, {v(x)}, {v(x)} {ctl} row_mask:0xf bank_mask:0xf")
    p.e(f"v_mul_f32 {v(SU)}, {f32(1 / 640)}, {v(SU)}")
    p.e(f"v_mul_f32 {v(SQ)}, {f32(1 / 640)}, {v(SQ)}")
    p.e(f"v_fma_f32 {v(SQ)}, -{v(SU)}, {v(SU)}, {v(SQ)}")
    p.e(f"v_max_f32 {v(SQ)}, 0, {v(SQ)}")
    p.e(f"v_add_f32 {v(SQ)}, {f32(1e-5)}, {v(SQ)}")
    p.e(f"v_rsq_f32 {v(SQ)}, {v(SQ)}")
    p.e(f"v_mul_f32_e64 {v(SU)}, -{v(SU)}, {v(SQ)}")
    p.e(f"v_cndmask_b32 {v(SU)}, {v(SU)}, {v(SQ)}, vcc")
    p.e(f"ds_write_b32 {v(T0)}, {v(SU)}")
    p.wait_all(vm=False)
    p.e("s_barrier")
    p.e(f"ds_read_b32 {v(SU)}, {v(VX)}")
    p.e(f"buffer_store_dword {v(SU)}, {v(VS)}, {srd(R_WS)}, {s(S_A)} offen sc1")
    stamp(p, 2)
    tile_addr(p, TA, TB, 5, 20480, 3)
    signal(p, ready=True)
    stamp(p, 3)
    p.e(f"s_cmp_ge_u32 {s(SJ)}, 56")
    p.e("s_cbranch_scc1 L_noconv")
    G = opt("w2gate", 1)
    if G == 1:
        p.raw("    s_waitcnt lgkmcnt(0)")
    if G >= 2:
        helper_checks(p, G - 1)
    for i in range(10):
        p.e(f"s_add_u32 m0, {s(S_WL)}, {896 * i}")
        p.add([dma(VW, R_W2, 0, None, f" offset:{128 * i}")])
    p.e(f"v_lshlrev_b32 {v(T0)}, 4, v0")
    p.e(f"buffer_load_dwordx4 {v(B2, 4)}, {v(T0)}, {srd(R_B2)}, 0 offen")
    p.e(f"s_mul_i32 {s(S_A)}, {s(SJ)}, 5462")
    p.e(f"s_lshr_b32 {s(S_A)}, {s(S_A)}, 16")
    p.e(f"s_mul_i32 {s(S_B)}, {s(S_A)}, 12")
    p.e(f"s_sub_u32 {s(S_B)}, {s(SJ)}, {s(S_B)}")
    p.e(f"s_bfe_u32 {s(S_E)}, {s(SJ)}, 0x20001")
    p.e(f"s_and_b32 {s(S_F)}, {s(SJ)}, 1")
    p.e(f"s_add_u32 {s(S_F)}, {s(S_F)}, 12")
    p.e(f"s_cmp_lt_u32 {s(SJ)}, 48")
    p.e(f"s_cselect_b32 {s(S_A)}, {s(S_A)}, {s(S_E)}")
    p.e(f"s_cselect_b32 {s(S_B)}, {s(S_B)}, {s(S_F)}")
    p.e(f"s_lshl_b32 {s(S_E)}, {s(S_A)}, 8")
    p.e(f"s_add_u32 {s(S_E)}, {s(S_E)}, {CTRW}")
    sig_rep8(p, S_E, S_U)
    p.e(f"s_lshl_b32 {s(S_E)}, {s(S_W)}, 3")
    p.e(f"s_add_u32 {s(S_A)}, {s(S_A)}, {s(S_E)}")
    p.e(f"s_mul_i32 {s(S_A)}, {s(S_A)}, 14")
    p.e(f"s_add_u32 {s(S_A)}, {s(S_A)}, {s(S_B)}")
    p.e(f"s_mul_i32 {s(S_A)}, {s(S_A)}, 5120")
    p.wait_all(lgkm=False)
    p.e("s_barrier")
    stamp(p, 6)
    p.e(f"s_cmp_lg_u32 {s(SJ)}, 48")
    p.e("s_cbranch_scc1 L_nob2")
    p.e(f"v_lshrrev_b32 {v(T1)}, 3, v0")
    p.e(f"v_and_b32 {v(T2)}, 7, v0")
    p.e(f"v_lshlrev_b32 {v(T2)}, 4, {v(T2)}")
    p.e(f"v_lshl_add_u32 {v(T1)}, {v(T1)}, 10, {v(T2)}")
    p.e(f"v_mov_b32 {v(T2)}, 24576")
    p.e("v_cmp_gt_u32 vcc, 80, v0")
    p.e(f"v_cndmask_b32 {v(T1)}, {v(T2)}, {v(T1)}, vcc")
    p.e(f"ds_write_b128 {v(T1)}, {v(B2, 4)} offset:{20480 + 512}")
    p.wait_all(vm=False)
    p.e("s_barrier")
    p.label("L_nob2")
    tile_reads(p, FR, TA, TB, 10240)
    for i in range(10):
        p.e(f"s_add_u32 {s(S_B)}, {s(S_A)}, {W2P + (i // 5) * 4 * 70 * 1024 + (i % 5) * 1024}")
        p.e(f"buffer_store_dwordx4 {v(FR + 4 * i, 4)}, {v(G_VD)}, {srd(R_WS)}, {s(S_B)} offen sc1")
    stamp(p, 4)
    signal(p, S_SG1=S_U)
    stamp(p, 5)
    p.e("s_branch L_noconv")


def p0_prep(p):
    VO, VT, T0, T1, T2, VZ, ON, CS, FR = 32, 33, 34, 35, 36, 31, 40, 44, 80
    SP = S_H
    RS = 81920
    prologue(p, (R_WS, R_DBG, R_W1))
    p.e("s_cmp_lg_u32 s2, 255")
    p.e("s_cbranch_scc1 L_noinit")
    for k in range(4):
        p.e(f"v_mov_b32 {v(ON + k)}, 0")
    p.e(f"v_lshrrev_b32 {v(T0)}, 2, v0")
    p.e(f"v_and_b32 {v(T1)}, 3, v0")
    p.e(f"v_lshlrev_b32 {v(T1)}, 4, {v(T1)}")
    p.e(f"v_lshl_add_u32 {v(T0)}, {v(T0)}, 8, {v(T1)}")
    for i in range(2):
        p.e(f"s_mov_b32 {s(S_B)}, {CTR1 + 16384 * i}")
        p.e(f"buffer_store_dwordx4 {v(ON, 4)}, {v(T0)}, {srd(R_WS)}, {s(S_B)} offen sc1")
    p.e(f"v_mov_b32 {v(T1)}, 1")
    p.e(f"v_min_u32 {v(T2)}, 1, v0")
    p.e(f"v_lshlrev_b32 {v(T2)}, 30, {v(T2)}")
    p.wait_all()
    p.e("s_barrier")
    p.e(f"buffer_store_dword {v(T1)}, {v(T2)}, {srd(R_DBG)}, 0 offen sc1")
    stamp(p, 27)
    p.label("L_noinit")
    p.e(f"s_lshl_b32 {s(SP)}, {s(S_XCD)}, 2")
    p.e(f"s_add_u32 {s(SP)}, {s(SP)}, {s(S_IDX)}")
    p.e(f"s_sub_u32 {s(SP)}, {s(SP)}, 28")
    def job():
        p.e(f"s_and_b32 {s(S_F)}, {s(SP)}, 1")
        p.e(f"s_sub_u32 {s(S_A)}, 3, {s(S_F)}")
        p.e(f"s_mul_i32 {s(S_A)}, {s(S_A)}, {s(S_W)}")
        p.e(f"s_mul_i32 {s(S_B)}, {s(S_F)}, 12")
        p.e(f"s_add_u32 {s(S_A)}, {s(S_A)}, {s(S_B)}")
        p.e(f"s_lshr_b32 {s(S_E)}, {s(SP)}, 1")
        p.e(f"s_add_u32 {s(S_E)}, {s(S_E)}, 12")
        p.e(f"s_mul_i32 {s(S_C)}, {s(S_W)}, 5")
        p.e(f"s_cmp_lt_u32 {s(SP)}, 24")
        p.e(f"s_cselect_b32 {s(S_E)}, {s(SP)}, {s(S_E)}")
        p.e(f"s_cselect_b32 {s(S_F)}, 0, {s(S_F)}")
        p.e(f"s_cselect_b32 {s(S_C)}, {s(S_C)}, {s(S_A)}")
    job()
    p.e(f"s_cselect_b32 {s(S_PO)}, 0, 0x1000000")
    p.e(f"s_lshl_b32 {s(S_P2)}, {s(S_F)}, 24")
    p.e(f"s_mul_i32 {s(S_A)}, {s(S_C)}, {32 * 3456}")
    p.e(f"s_lshl_b32 {s(S_B)}, {s(S_E)}, 7")
    p.e(f"s_add_u32 {s(S_A)}, {s(S_A)}, {s(S_B)}")
    p.e(f"s_cmp_lt_u32 {s(SP)}, {0 if 'noprep1' in OPTS else 30}")
    p.e(f"s_cselect_b32 {s(S_A)}, {s(S_A)}, 0x1000000")
    p.e(f"v_lshrrev_b32 {v(T0)}, 3, v1")
    p.e(f"v_mul_u32_u24 {v(T0)}, 3456, {v(T0)}")
    p.e(f"v_and_b32 {v(T1)}, 7, v1")
    p.e(f"v_lshl_add_u32 {v(VO)}, {v(T1)}, 4, {v(T0)}")
    p.e(f"s_mul_i32 {s(S_C)}, {s(S_W)}, 20480")
    p.raw("    s_waitcnt lgkmcnt(0)")
    p.reset()
    stamp(p, 0)
    toks = [p.tok() for _ in range(20)]
    for i in range(20):
        if i == 8:
            p.e(f"s_add_u32 {s(S_A)}, {s(S_A)}, {s(S_P2)}")
        if i == 12:
            p.e(f"s_add_u32 {s(S_A)}, {s(S_A)}, {s(S_PO)}")
        p.e(f"s_add_u32 m0, {s(S_C)}, {1024 * i}")
        p.e(f"s_add_u32 {s(S_B)}, {s(S_A)}, {8 * 3456 * i}")
        p.add([dma(VO, R_W1, s(S_B), toks[i])])
    common_addr(p, 2)
    p.e(f"s_and_b32 {s(S_A)}, {s(SP)}, 3")
    p.e(f"s_lshl_b32 {s(S_A)}, {s(S_A)}, 8")
    p.e(f"s_add_u32 {s(S_A)}, {s(S_A)}, {CTRA}")
    sig_rep8(p, S_A)
    p.e(f"v_mov_b32 {v(T2)}, {OOB}")
    p.e(f"s_cmp_ge_u32 {s(SP)}, {0 if 'noprep1' in OPTS else 30}")
    p.e("s_cbranch_scc1 L_w1sig")
    job()
    for k in range(4):
        p.e(f"v_mov_b32 {v(ON + k)}, 0x3f803f80")
    p.e(f"v_lshlrev_b32 {v(VZ)}, 2, v1")
    p.e("v_cmp_gt_u32 vcc, 64, v0")
    p.e(f"v_cndmask_b32 {v(VO)}, {v(T2)}, {v(VZ)}, vcc")
    p.e(f"v_add_u32 {v(VZ)}, {RS}, {v(VZ)}")
    p.e(f"s_lshl_b32 {s(S_P2)}, {s(S_WL)}, 1")
    p.e(f"v_and_b32 {v(T1)}, 3, v1")
    p.e(f"v_lshl_add_u32 {v(T1)}, {v(T1)}, 3, {s(S_P2)}")
    p.e(f"s_lshl_b32 {s(S_B)}, {s(S_W)}, 8")
    p.e(f"s_add_u32 {s(S_PO)}, {s(S_B)}, {RS}")
    p.e(f"s_cmp_ge_u32 {s(SP)}, 24")
    p.e("s_cbranch_scc1 L_w1rem")
    p.save("w1")
    p.e(f"v_lshrrev_b32 {v(T0)}, 5, v1")
    p.e(f"v_lshl_add_u32 {v(VT)}, {v(T0)}, 10, {v(T1)}")
    p.e(f"v_bfe_u32 {v(T0)}, v1, 2, 2")
    p.e(f"v_lshl_add_u32 {v(VT)}, {v(T0)}, 7, {v(VT)}")
    p.e(f"v_bfe_u32 {v(T0)}, v1, 4, 1")
    p.e(f"v_lshl_add_u32 {v(VT)}, {v(T0)}, 5, {v(VT)}")
    p.e(f"v_and_b32 {v(T2)}, 31, v1")
    p.e(f"v_lshl_add_u32 {v(T0)}, {v(T2)}, 2, {s(S_PO)}")
    p.e(f"s_lshl_b32 {s(S_A)}, {s(S_E)}, 3")
    p.e(f"s_add_u32 {s(S_A)}, {s(S_A)}, {s(S_W)}")
    p.e(f"s_mul_i32 {s(S_A)}, {s(S_A)}, 10240")
    for st in range(11):
        if st < 10:
            p.wait(toks[2 * st + 1])
            if st == 0:
                stamp(p, 1)
            for blk in range(2):
                for aa in range(2):
                    p.e(f"ds_read_b64_tr_b16 {v(FR + 8 * st + 4 * blk + 2 * aa, 2)}, {v(VT)} offset:{2048 * st + 512 * aa + 64 * blk}")
        if st:
            for blk in range(2):
                p.e(f"v_mfma_f32_32x32x16_bf16 {v(CS + 16 * blk, 16)}, {v(ON, 4)}, {v(FR + 8 * (st - 1) + 4 * blk, 4)}, {v(CS + 16 * blk, 16) if st > 1 else 0}")
    stamp(p, 2)
    def sums():
        p.wait_all(vm=False)
        p.e("s_barrier")
        for w in range(4):
            p.e(f"ds_read_b32 {v(CS + 1 + w)}, {v(VZ)} offset:{256 * w}")
        p.e(f"s_lshl_b32 {s(S_P2)}, {s(S_F)}, 13")
        p.e(f"s_lshl_b32 {s(S_B)}, {s(S_E)}, 8")
        p.e(f"s_add_u32 {s(S_B)}, {s(S_B)}, {s(S_P2)}")
        p.e(f"s_add_u32 {s(S_B)}, {s(S_B)}, {CSP}")
        p.e(f"v_add_f32 {v(CS + 1)}, {v(CS + 1)}, {v(CS + 2)}")
        p.e(f"v_add_f32 {v(CS + 3)}, {v(CS + 3)}, {v(CS + 4)}")
        p.e(f"v_add_f32 {v(CS + 1)}, {v(CS + 1)}, {v(CS + 3)}")
        p.e(f"buffer_store_dword {v(CS + 1)}, {v(VO)}, {srd(R_WS)}, {s(S_B)} offen sc1")
    for k in range(10):
        for blk in range(2):
            p.e(f"s_add_u32 {s(S_B)}, {s(S_A)}, {W1P + (40 * blk + k) * 1024}")
            p.e(f"buffer_store_dwordx4 {v(FR + 8 * k + 4 * blk, 4)}, {v(G_VD)}, {srd(R_WS)}, {s(S_B)} offen sc1")
        if k == 2:
            for blk in range(2):
                p.e(f"ds_write_b32 {v(T0)}, {v(CS + 16 * blk)} offset:{128 * blk}")
            sums()
    p.label("L_w1sig")
    p.add(READY.load())
    stamp(p, 4)
    signal(p, ready=True)
    stamp(p, 5)
    p.e("s_branch L_noconv")

    p.label("L_w1rem")
    p.restore("w1")
    V5, VC, VM, VW5 = 37, 38, 39, 76
    p.e(f"v_lshrrev_b32 {v(T0)}, 2, v1")
    p.e(f"v_lshl_add_u32 {v(VT)}, {v(T0)}, 7, {v(T1)}")
    p.e(f"v_lshl_add_u32 {v(V5)}, {v(T0)}, 7, {s(S_P2)}")
    p.e(f"s_sub_u32 {s(S_B)}, {s(S_E)}, 24")
    p.e(f"v_and_b32 {v(T2)}, 15, v1")
    p.e(f"v_cmp_eq_u32 vcc, 12, {v(T2)}")
    p.e(f"v_cndmask_b32 {v(VC)}, 0, {v(ON)}, vcc")
    p.e(f"v_lshrrev_b32 {v(T0)}, 2, {v(T2)}")
    p.e(f"v_cmp_eq_u32 vcc, {s(S_B)}, {v(T0)}")
    p.e(f"v_mov_b32 {v(T0)}, {OOB}")
    p.e(f"v_cndmask_b32 {v(VM)}, {v(T0)}, {v(G_VD)}, vcc")
    p.e(f"v_lshl_add_u32 {v(T0)}, {v(T2)}, 2, {s(S_PO)}")
    p.e(f"v_mov_b32 {v(T1)}, {RS + 2048}")
    p.e(f"v_cmp_gt_u32 vcc, 4, {v(T2)}")
    p.e(f"v_cndmask_b32 {v(VW5)}, {v(T1)}, {v(T0)}, vcc")
    p.e(f"v_cmp_le_u32 vcc, 12, {v(T2)}")
    p.e(f"v_cndmask_b32 {v(VM)}, {v(VM)}, {v(G_VD)}, vcc")
    p.e(f"v_cndmask_b32 {v(T0)}, {v(T0)}, {v(T1)}, vcc")
    p.e(f"s_lshl_b32 {s(S_C)}, {s(S_C)}, 10")
    p.e(f"s_mul_i32 {s(S_A)}, {s(S_B)}, {100 * 1024}")
    p.e(f"s_add_u32 {s(S_A)}, {s(S_A)}, {s(S_C)}")
    for k in range(3):
        p.wait(toks[4 * k + 3])
        for i in range(6):
            for aa in range(2):
                p.e(f"ds_read_b64_tr_b16 {v(FR + 24 * k + 4 * i + 2 * aa, 2)}, {v(V5 if i == 5 else VT)} offset:{4096 * k + 2048 * aa + 24 * i}")
    for k in range(3):
        if k == 2:
            p.e(f"s_lshl_b32 {s(S_B)}, {s(S_F)}, 30")
            p.e(f"v_or_b32 {v(VM)}, {s(S_B)}, {v(VM)}")
            p.e(f"v_or_b32 {v(77)}, {s(S_B)}, {v(G_VD)}")
        for i in range(6):
            f = FR + 24 * k + 4 * i
            for q in range(4):
                p.e(f"v_cndmask_b32 {v(f + q)}, {v(f + q)}, {v(VC)}, vcc")
            if i < 5:
                p.e(f"s_add_u32 {s(S_B)}, {s(S_A)}, {W1R + (20 * i + k) * 1024}")
            else:
                p.e(f"s_add_u32 {s(S_B)}, {s(S_C)}, {W1R + (20 * 15 + k) * 1024}")
            p.e(f"buffer_store_dwordx4 {v(f, 4)}, {v(VM if i == 5 else (77 if k == 2 else G_VD))}, {srd(R_WS)}, {s(S_B)} offen sc1")
            p.e(f"v_mfma_f32_16x16x32_bf16 {v(CS + 4 * i, 4)}, {v(ON, 4)}, {v(f, 4)}, {v(CS + 4 * i, 4) if k else 0}")
    for i in range(6):
        p.e(f"ds_write_b32 {v(VW5 if i == 5 else T0)}, {v(CS + 4 * i)} offset:{48 * i}")
    sums()
    p.e("s_branch L_w1sig")


def gemm_addr(p, w3):
    t0, t1, t2 = 28, 29, 30
    X, Y = S_E, S_F
    if w3:
        p.e(f"s_mul_i32 {s(S_W1B)}, {s(S_M)}, {20 * 1024}")
        p.e(f"s_add_u32 {s(S_W1B)}, {s(S_W1B)}, {W1R - 20 * 1024}")
        p.e(f"v_mov_b32 {v(V_W1)}, {OOB}")
    else:
        p.e(f"s_mul_i32 {s(S_W1B)}, {s(S_M)}, 3")
        p.e(f"s_add_u32 {s(S_W1B)}, {s(S_W1B)}, {s(S_W)}")
        p.e(f"s_mul_i32 {s(S_W1B)}, {s(S_W1B)}, {40 * 1024}")
        p.e(f"s_add_u32 {s(S_W1B)}, {s(S_W1B)}, {W1P}")
        p.e(f"v_mov_b32 {v(V_W1)}, {v(G_VD)}")
    p.e(f"v_and_b32 {v(t2)}, 3, v1")
    p.e(f"v_lshlrev_b32 {v(t2)}, 3, {v(t2)}")
    p.e(f"v_bfe_u32 {v(t1)}, v1, 4, 1")
    p.e(f"s_mul_i32 {s(S_HIL)}, {s(S_G)}, {4 * 114688}")
    p.e(f"s_add_u32 {s(S_HIL)}, {s(S_HIL)}, {HID}")
    p.e(f"s_lshr_b32 {s(X)}, {s(S_M)}, 2")
    p.e(f"s_lshl_b32 {s(S_C3P)}, {s(S_G)}, 11")
    p.e(f"s_add_u32 {s(S_C3P)}, {s(S_C3P)}, {CTR3}")
    p.e(f"s_lshl_b32 {s(Y)}, {s(X)}, 7")
    p.e(f"s_add_u32 {s(S_C3A)}, {s(S_C3P)}, {s(Y)}")
    p.e(f"s_lshl_b32 {s(Y)}, {s(S_W)}, 7")
    p.e(f"s_add_u32 {s(S_C3P)}, {s(S_C3P)}, {s(Y)}")
    p.e(f"s_mul_i32 {s(X)}, {s(X)}, 14336")
    p.e(f"s_add_u32 {s(S_HIS)}, {s(S_HIL)}, {s(X)}")
    p.e(f"s_and_b32 {s(X)}, {s(S_M)}, 3")
    if not w3:
        p.e(f"s_mul_i32 {s(X)}, {s(X)}, 3")
        p.e(f"s_add_u32 {s(X)}, {s(X)}, {s(S_W)}")
        p.e(f"s_lshl_b32 {s(X)}, {s(X)}, 10")
        p.e(f"s_add_u32 {s(S_HIS)}, {s(S_HIS)}, {s(X)}")
        p.e(f"v_lshrrev_b32 {v(t0)}, 5, v1")
        p.e(f"v_bfe_u32 {v(G_VA)}, v1, 2, 2")
        p.e(f"v_lshl_add_u32 {v(G_VA)}, {v(t0)}, 3, {v(G_VA)}")
        p.e(f"v_lshl_add_u32 {v(G_VA)}, {v(G_VA)}, 6, {v(t2)}")
        p.e(f"v_lshl_add_u32 {v(G_VA)}, {v(t1)}, 5, {v(G_VA)}")
        p.e(f"v_xor_b32 {v(G_VB)}, 0x120, {v(G_VA)}")
        p.e(f"v_mul_u32_u24 {v(G_VSH)}, 57344, {v(t1)}")
        p.e(f"v_lshl_add_u32 {v(G_VSH)}, {v(t0)}, 8, {v(G_VSH)}")
        p.e(f"v_and_b32 {v(t0)}, 15, v1")
        p.e(f"v_lshl_add_u32 {v(G_VSH)}, {v(t0)}, 4, {v(G_VSH)}")
        p.e(f"v_and_b32 {v(G_VST)}, 31, v1")
        p.e(f"v_lshlrev_b32 {v(G_VST)}, 5, {v(G_VST)}")
        p.e(f"v_add_u32 {v(G_VST)}, {L_MISC}, {v(G_VST)}")
        p.e(f"s_mul_i32 {s(X)}, {s(S_DS)}, 5")
        p.e(f"s_add_u32 {s(X)}, {s(X)}, {s(S_W)}")
        p.e(f"s_lshl_b32 {s(X)}, {s(X)}, 10")
        p.e(f"v_lshrrev_b32 {v(G_VRR)}, 2, v1")
        p.e(f"v_lshl_add_u32 {v(G_VRR)}, {v(G_VRR)}, 6, {v(t2)}")
        p.e(f"v_xor_b32 {v(t1)}, {s(S_T)}, {v(t1)}")
        p.e(f"v_lshl_add_u32 {v(G_VRR)}, {v(t1)}, 5, {v(G_VRR)}")
        p.e(f"v_add_u32 {v(G_VRR)}, {s(X)}, {v(G_VRR)}")
        p.e(f"v_mul_u32_u24 {v(G_VRW)}, 160, {v(t0)}")
        p.e(f"v_lshrrev_b32 {v(t1)}, 4, v1")
        p.e(f"v_lshl_add_u32 {v(G_VRW)}, {v(t1)}, 3, {v(G_VRW)}")
        p.e(f"s_lshl_b32 {s(X)}, {s(S_W)}, 5")
        p.e(f"s_add_u32 {s(X)}, {s(X)}, {L_RES}")
        p.e(f"v_add_u32 {v(G_VRW)}, {s(X)}, {v(G_VRW)}")
        regs = (G_VA, G_VB, G_VRR)
    else:
        p.e(f"s_lshl_b32 {s(X)}, {s(X)}, 9")
        p.e(f"s_add_u32 {s(X)}, {s(X)}, 12288")
        p.e(f"s_add_u32 {s(S_HIS)}, {s(S_HIS)}, {s(X)}")
        p.e(f"v_lshrrev_b32 {v(G_VA)}, 2, v1")
        p.e(f"v_lshl_add_u32 {v(G_VA)}, {v(G_VA)}, 6, {v(t2)}")
        p.e(f"v_lshl_add_u32 {v(G_VA)}, {v(t1)}, 5, {v(G_VA)}")
        p.e(f"v_xor_b32 {v(G_VB)}, 32, {v(G_VA)}")
        p.e(f"v_mov_b32 {v(G_VSH)}, 0x3f80")
        p.e(f"v_and_b32 {v(t0)}, 15, v1")
        p.e(f"v_lshlrev_b32 {v(G_VST)}, 5, {v(t0)}")
        p.e(f"v_add_u32 {v(G_VST)}, {L_MISC}, {v(G_VST)}")
        p.e(f"v_lshl_add_u32 {v(G_X1)}, {v(t1)}, 9, {v(G_VST)}")
        p.e(f"v_mov_b32 {v(t2)}, {L_MISC + 2048}")
        p.e(f"v_cmp_le_u32 {s(S_MK + 6, 2)}, 48, v1")
        p.e(f"v_cndmask_b32 {v(G_VRR)}, {v(t2)}, {v(G_VST)}, {s(S_MK + 6, 2)}")
        p.e(f"v_lshrrev_b32 {v(t1)}, 4, v1")
        p.e(f"v_lshrrev_b32 {v(t0)}, 2, {v(t0)}")
        p.e(f"v_cmp_eq_u32 vcc, {v(t0)}, {v(t1)}")
        p.e(f"v_cndmask_b32 {v(G_VRW)}, {v(t2)}, {v(G_VST)}, vcc")
        p.e(f"v_and_b32 {v(t0)}, 3, v1")
        for k in range(1, 4):
            p.e(f"v_cmp_eq_u32 {s(S_MK + 2 * (k - 1), 2)}, {k}, {v(t0)}")
        regs = (G_VA, G_VB)
    for x in regs:
        p.e(f"v_add_u32 {v(x)}, {L_HBUF[0]}, {v(x)}")


def gemm_addr_common(p):
    t0, t1, t2 = 28, 29, 30
    X, Y = S_E, S_F
    p.e(f"s_mul_i32 {s(S_WL)}, {s(S_W)}, 10240")
    p.e(f"s_lshl_b32 {s(S_W2B)}, {s(S_DS)}, 2")
    p.e(f"s_add_u32 {s(S_W2B)}, {s(S_W2B)}, {s(S_W)}")
    p.e(f"s_mul_i32 {s(S_W2B)}, {s(S_W2B)}, {70 * 1024}")
    p.e(f"s_add_u32 {s(S_W2B)}, {s(S_W2B)}, {W2P}")
    p.e(f"s_lshl_b32 {s(S_CKA)}, {s(S_XCD)}, 10")
    p.e(f"v_and_b32 {v(V_PA)}, 3, v1")
    p.e(f"v_lshlrev_b32 {v(V_PA)}, 8, {v(V_PA)}")
    p.e(f"s_lshl_b32 {s(S_CKW)}, {s(S_XCD)}, 2")
    p.e(f"s_add_u32 {s(S_CKW)}, {s(S_CKW)}, {s(S_W)}")
    p.e(f"s_lshl_b32 {s(S_CKW)}, {s(S_CKW)}, 8")
    p.e(f"s_lshl_b32 {s(X)}, {s(S_XCD)}, 11")
    p.e(f"v_and_b32 {v(V_POL)}, 7, v1")
    p.e(f"v_lshl_add_u32 {v(V_POL)}, {v(V_POL)}, 8, {s(X)}")
    p.e(f"s_mov_b32 {s(S_ONE)}, 1")
    p.e(f"s_mov_b32 {s(S_SG2)}, {CTR2}")
    p.e(f"s_lshl_b32 {s(S_PL2)}, {s(S_CKW)}, 1")
    p.e(f"s_add_u32 {s(S_PL2)}, {s(S_PL2)}, {CTR2}")
    p.e(f"s_add_u32 {s(S_CV)}, {s(S_CKW)}, {CTR}")
    p.e(f"s_lshl_b32 {s(X)}, {s(S_T)}, 2")
    p.e(f"s_add_u32 {s(X)}, {s(X)}, {s(S_W)}")
    p.e(f"s_mul_i32 {s(X)}, {s(X)}, 14336")
    p.e(f"s_add_u32 {s(S_HIL)}, {s(S_HIL)}, {s(X)}")
    p.e(f"s_mul_i32 {s(S_HLD)}, {s(S_G)}, 163840")
    p.e(f"s_add_u32 {s(S_HLD)}, {s(S_HLD)}, {s(S_WL)}")
    p.e(f"s_add_u32 {s(S_HLD)}, {s(S_HLD)}, {HB}")
    p.e(f"s_mul_i32 {s(S_WL3)}, {s(S_W)}, 13312")
    p.e(f"s_mul_i32 {s(S_HL3)}, {s(S_W)}, 3072")
    p.e(f"s_add_u32 {s(S_HL3)}, {s(S_HL3)}, {s(S_HLD)}")
    p.e(f"v_and_b32 {v(t0)}, 15, v1")
    p.e(f"v_mul_u32_u24 {v(H_VW)}, 336, {v(t0)}")
    p.e(f"v_lshrrev_b32 {v(t0)}, 4, v1")
    p.e(f"v_lshl_add_u32 {v(H_VW)}, {v(t0)}, 4, {v(H_VW)}")
    p.e(f"s_mul_i32 {s(X)}, {s(S_W)}, 5376")
    p.e(f"v_add_u32 {v(H_VW)}, {s(X)}, {v(H_VW)}")
    p.e(f"v_min_u32 {v(t2)}, 159, v0")
    p.e(f"v_mul_u32_u24 {v(t0)}, 6554, {v(t2)}")
    p.e(f"v_lshrrev_b32 {v(t0)}, 16, {v(t0)}")
    p.e(f"v_mul_u32_u24 {v(t1)}, 10, {v(t0)}")
    p.e(f"v_sub_u32 {v(t1)}, {v(t2)}, {v(t1)}")
    p.e(f"v_mul_u32_u24 {v(H_VR)}, 336, {v(t0)}")
    p.e(f"v_lshl_add_u32 {v(H_VR)}, {v(t1)}, 5, {v(H_VR)}")
    p.e(f"v_lshlrev_b32 {v(H_VRES)}, 4, {v(t2)}")
    p.e(f"v_add_u32 {v(H_VRES)}, {L_RES}, {v(H_VRES)}")
    p.e(f"v_bfe_u32 {v(t2)}, {v(t0)}, 2, 1")
    p.e(f"v_lshlrev_b32 {v(H_VO)}, 8, {v(t2)}")
    p.e(f"v_lshrrev_b32 {v(t2)}, 3, {v(t0)}")
    p.e(f"v_lshl_add_u32 {v(H_VO)}, {v(t2)}, 4, {v(H_VO)}")
    p.e(f"v_and_b32 {v(t2)}, 3, {v(t0)}")
    p.e(f"v_add_u32 {v(H_VO)}, {v(t2)}, {v(H_VO)}")
    p.e(f"v_mul_u32_u24 {v(H_VO)}, 1280, {v(H_VO)}")
    p.e(f"v_lshl_add_u32 {v(H_VO)}, {v(t1)}, 4, {v(H_VO)}")
    p.e(f"v_mov_b32 {v(t2)}, {OOB}")
    p.e(f"v_cmp_gt_u32 vcc, 160, v0")
    p.e(f"v_cndmask_b32 {v(H_VO)}, {v(t2)}, {v(H_VO)}, vcc")
    p.e(f"s_and_b32 {s(Y)}, {s(S_G)}, 3")
    p.e(f"s_lshl_b32 {s(Y)}, {s(Y)}, 1")
    p.e(f"s_add_u32 {s(Y)}, {s(Y)}, {s(S_T)}")
    p.e(f"s_lshl_b32 {s(Y)}, {s(Y)}, 5")
    p.e(f"s_and_b32 {s(S_OSO)}, {s(S_G)}, 12")
    p.e(f"s_add_u32 {s(S_OSO)}, {s(S_OSO)}, {s(Y)}")
    p.e(f"s_mul_i32 {s(S_OSO)}, {s(S_OSO)}, 1280")
    p.e(f"s_mul_i32 {s(X)}, {s(S_DS)}, 160")
    p.e(f"s_add_u32 {s(S_OSO)}, {s(S_OSO)}, {s(X)}")


VK2 = lambda c: Check(R_WS, V_POL, None, CTR2 + 16384 * c, 20)
CK2 = lambda c: SCheck(S_PL2, [16384 * c, 16384 * c + 256], R_WS, V_POL, None, CTR2 + 16384 * c, 20)
CK3 = lambda c: SCheck(S_C3P, [512 * c], R_WS, None, S_C3P, 512 * c, 16)
VK3 = lambda c: Check(R_WS, None, S_C3P, 512 * c, 16)
VKW = lambda: Check(R_WS, None, S_CKW, CTRW, 0 if 'now2' in OPTS else 14)
CKW = lambda: SCheck(S_CV, [CTRW - CTR], R_WS, None, S_CKW, CTRW, 0 if 'now2' in OPTS else 14)
VKA = lambda: Check(R_WS, V_PA, S_CKA, CTRA, 0 if 'now1' in OPTS else 8)
CKA = lambda: SCheck(S_CV, [CTRA - CTR], R_WS, None, S_CKW, CTRA, 0 if 'now1' in OPTS else 8)


def signal2(c, tok, ck=None, guard=False):
    out = [wait(tok)] + (ck.test() if ck else []) + [Ins("s_barrier")]
    if "nosig" in OPTS:
        return [out]
    at = [Ins(atom(S_SG2, 16384 * c)), Ins(atom(S_SG2, 16384 * c + 2048))]
    if guard:
        Check.n += 1
        at = [Ins(f"s_cmp_lg_u32 {s(S_ROLE)}, 0"), Ins(f"s_cbranch_scc1 L_nosig{Check.n} ; soft")] + at + \
             [Ins(f"L_nosig{Check.n}:", pseudo="raw")]
    return [out + at]


def signal3(c, tok):
    if "nosig" in OPTS:
        return []
    if str(c) in OPTS.get("vsig3", ""):
        return [[wait(tok), Ins(f"buffer_atomic_add {v(G_ONE)}, {v(V_W1)}, {srd(R_WS)}, {s(S_C3A)} offen offset:{512 * c} sc1")]]
    return [[wait(tok), Ins(atom(S_C3A, 512 * c))]]


def w2_loads(lo, hi, gap=0, each=False):
    out = []
    if "now2" in OPTS:
        return out
    for i in range(lo, hi):
        x = []
        if i == lo or i % 4 == 0 or each:
            x.append(f"s_add_u32 {s(S_F)}, {s(S_W2B)}, {(i & ~3) * 1024}")
        x.append(f"buffer_load_dwordx4 {r(W2LOC[i], 4)}, {v(G_VD)}, {srd(R_WS)}, {s(S_F)} offen offset:{(i & 3) * 1024} sc1")
        out.append(x)
        if gap:
            out.append(Delay(gap))
    return out


def w1_loads(lo, hi, gap=0):
    out = []
    if "now1" in OPTS:
        return out
    for i in range(lo, hi):
        x = []
        if i % 4 == 0 or i == lo:
            x.append(f"s_add_u32 {s(S_F)}, {s(S_W1B)}, {(i & ~3) * 1024}")
        x.append(f"buffer_load_dwordx4 {a(4 * i, 4)}, {v(G_VD if i >= 20 else V_W1)}, {srd(R_WS)}, {s(S_F)} offen offset:{(i & 3) * 1024} sc1")
        out.append(x)
        if gap:
            out.append(Delay(gap))
    return out


def h_dma(c, tok, gap=0, three=False):
    out = []
    for i in range(14 if three else 10):
        x = []
        if i % 4 == 0:
            x.append(f"s_add_u32 m0, {s(S_WL3 if three else S_WL)}, {L_HBUF[c] + 1024 * i}")
            x.append(f"s_add_u32 {s(S_B)}, {s(S_HL3 if three else S_HLD)}, {40960 * c + 1024 * i}")
        x.append(dma(G_VD, R_WS, s(S_B), tok, f" offset:{1024 * (i % 4)} sc1"))
        out.append(x)
        if gap:
            out.append(Delay(gap))
    return out


def hid_loads(c, gap=0, toks=None):
    b = HIDBUF[c & 1]
    out = []
    for st in range(14):
        x = []
        if st % 4 == 0:
            x.append(f"s_add_u32 {s(S_B)}, {s(S_HIL)}, {114688 * c + 1024 * st}")
        tk = toks[st] if toks else None
        if st < 12:
            x.append(Ins(f"buffer_load_dwordx4 {r(b[st], 4)}, {v(G_VD)}, {srd(R_WS)}, {s(S_B)} offen offset:{1024 * (st & 3)} sc1", tk))
        else:
            for h in range(2):
                x.append(Ins(f"buffer_load_dwordx2 {r(b[st] + 2 * h, 2)}, {v(G_X0)}, {srd(R_WS)}, {s(S_B)} offen offset:{512 * (2 * (st - 12) + h)} sc1", tk))
        out.append(x)
        if gap:
            out.append(Delay(gap))
    return out


class Pacer:
    def __init__(self, fixed, pre, pace, u=1):
        self.fixed, self.pre, self.pace, self.u, self.t, self.rest = fixed, pre, pace, u, 0.0, []
        self.end = 1 << 30

    def put(self, items, at=0, pace=None, w=1.0):
        for x in items:
            self.t = max(self.t, at)
            g = int(self.t * self.u) | (self.u - 1 if opt('w3pair', 1) else 0)
            if g >= self.end:
                self.rest += x
            else:
                self.fixed.setdefault(g, []).extend(x)
            self.t += (self.pace if pace is None else pace) * w
        return self

    def test(self, ck, at=0, extra=()):
        self.t = max(self.t, at)
        g = int(self.t * self.u)
        assert g < self.end
        self.pre.setdefault(g, []).extend(ck.test() + flat(list(extra)))
        return self


C_VT, C_VP, C_VX, C_VS, C_VH = 21, 22, 23, 24, 25
C_AD, C_ACC, C_FR, C_TMP = 28, 32, 64, 160


def conv_build_t(p, mid):
    raw, tmp = SSM_RAW, 32
    va = tmp
    p.e(f"s_mul_i32 {s(S_A)}, {s(S_W)}, 16640")
    p.e(f"v_add_u32 {v(va)}, {s(S_A)}, {v(G_VD)}")
    z = tmp + 2
    for k in range(4):
        p.e(f"v_mov_b32 {v(z + k)}, 0")
    p.e(f"v_bfe_u32 {v(tmp + 1)}, v1, 1, 2")
    p.e(f"v_mul_u32_u24 {v(tmp + 1)}, 4160, {v(tmp + 1)}")
    p.e(f"v_and_b32 {v(tmp + 6)}, 1, v1")
    p.e(f"v_lshl_add_u32 {v(tmp + 1)}, {v(tmp + 6)}, 4, {v(tmp + 1)}")
    p.e(f"v_add_u32 {v(tmp + 1)}, {s(S_A)}, {v(tmp + 1)}")
    p.e(f"ds_write_b128 {v(tmp + 1)}, {v(z, 4)} offset:{L_T}")
    for q in range(4):
        d = raw + 4 * q
        b = tmp + 8 + 14 * (q & 1)
        Q1, Q2, Q3, DM2 = b, b + 4, b + 8, b + 12
        p.e(f"ds_write_b128 {v(va)}, {v(d, 4)} offset:{L_T + 32 + 1024 * q}")
        if q == 0:
            p.e(f"v_mov_b32 {v(Q2)}, 0")
            p.e(f"v_mov_b32 {v(DM2)}, 0")
        else:
            p.e(f"v_mov_b32_dpp {v(Q2)}, {v(d - 1)} wave_ror:1 row_mask:0xf bank_mask:0xf")
            p.e(f"v_mov_b32_dpp {v(DM2)}, {v(d - 2)} wave_ror:1 row_mask:0xf bank_mask:0xf")
        for k in range(3):
            p.e(f"v_mov_b32 {v(Q2 + 1 + k)}, {v(d + k)}")
        p.e(f"v_mov_b32_dpp {v(Q2)}, {v(d + 3)} wave_shr:1 row_mask:0xf bank_mask:0xf")
        p.e(f"v_mov_b32_dpp {v(DM2)}, {v(d + 2)} wave_shr:1 row_mask:0xf bank_mask:0xf")
        for k in range(1, 4):
            p.e(f"v_alignbit_b32 {v(Q1 + k)}, {v(d + k)}, {v(d + k - 1)}, 16")
        p.e(f"v_alignbit_b32 {v(Q1)}, {v(d)}, {v(Q2)}, 16")
        p.e(f"v_alignbit_b32 {v(Q3)}, {v(Q2)}, {v(DM2)}, 16")
        for k in range(3):
            p.e(f"v_mov_b32 {v(Q3 + 1 + k)}, {v(Q1 + k)}")
        p.e(f"ds_write_b128 {v(va)}, {v(Q2, 4)} offset:{L_T + 2 * 4160 + 32 + 1024 * q}")
        p.e(f"ds_write_b128 {v(va)}, {v(Q1, 4)} offset:{L_T + 4160 + 32 + 1024 * q}")
        p.e(f"ds_write_b128 {v(va)}, {v(Q3, 4)} offset:{L_T + 3 * 4160 + 32 + 1024 * q}")
        if q == opt("tmid", 2):
            mid()


def conv_addr(p):
    t0, t1, t2 = 28, 29, 30
    p.e(f"v_and_b32 {v(t0)}, 15, v1")
    p.e(f"v_lshrrev_b32 {v(t1)}, 4, v1")
    p.e(f"v_sub_u32 {v(t2)}, 15, {v(t0)}")
    p.e(f"v_and_b32 {v(C_VT)}, 3, {v(t2)}")
    p.e(f"v_mul_u32_u24 {v(C_VT)}, 4160, {v(C_VT)}")
    p.e(f"v_lshl_add_u32 {v(C_VT)}, {v(t1)}, 4, {v(C_VT)}")
    p.e(f"v_lshrrev_b32 {v(t2)}, 2, {v(t2)}")
    p.e(f"v_lshlrev_b32 {v(t2)}, 3, {v(t2)}")
    p.e(f"v_sub_u32 {v(C_VT)}, {v(C_VT)}, {v(t2)}")
    p.e(f"s_mul_i32 {s(S_A)}, {s(S_W)}, 16640")
    p.e(f"s_add_u32 {s(S_A)}, {s(S_A)}, {L_T + 32}")
    p.e(f"v_add_u32 {v(C_VT)}, {s(S_A)}, {v(C_VT)}")
    p.e(f"s_mul_i32 {s(S_C)}, {s(S_W)}, 4608")
    p.e(f"s_add_u32 {s(S_A)}, {s(S_C)}, {L_U + 480}")
    p.e(f"v_lshl_add_u32 {v(C_VP)}, {v(t1)}, 4, {s(S_A)}")
    p.e(f"v_lshlrev_b32 {v(t2)}, 5, {v(t0)}")
    p.e(f"v_sub_u32 {v(C_VP)}, {v(C_VP)}, {v(t2)}")
    p.e(f"v_lshrrev_b32 {v(t2)}, 3, v1")
    p.e(f"v_add_u32 {v(C_VX)}, {s(S_W)}, {v(t2)}")
    p.e(f"v_and_b32 {v(C_VX)}, 3, {v(C_VX)}")
    p.e(f"v_lshl_add_u32 {v(C_VX)}, {v(t2)}, 2, {v(C_VX)}")
    p.e(f"v_and_b32 {v(t2)}, 7, v1")
    p.e(f"v_lshl_add_u32 {v(C_VX)}, {v(C_VX)}, 3, {v(t2)}")
    p.e(f"v_lshlrev_b32 {v(C_VX)}, 3, {v(C_VX)}")
    p.e(f"v_add_u32 {v(C_VX)}, {L_X}, {v(C_VX)}")
    p.e(f"v_add_u32 {v(C_VS)}, {L_ST}, {v(G_VD)}")
    p.e(f"s_and_b32 {s(S_A)}, {s(S_CW)}, 1")
    p.e(f"s_lshl_b32 {s(S_A)}, {s(S_A)}, 1")
    p.e(f"v_and_b32 {v(t2)}, 3, v1")
    p.e(f"v_xor_b32 {v(t2)}, {s(S_A)}, {v(t2)}")
    p.e(f"v_lshrrev_b32 {v(C_VH)}, 2, v1")
    p.e(f"v_mul_u32_u24 {v(C_VH)}, 163840, {v(C_VH)}")
    p.e(f"v_lshl_add_u32 {v(C_VH)}, {v(t2)}, 4, {v(C_VH)}")
    p.e(f"s_lshl_b32 {s(S_H)}, {s(S_CW)}, 2")
    p.e(f"s_add_u32 {s(S_H)}, {s(S_H)}, {s(S_W)}")
    p.e(f"s_lshl_b32 {s(S_HST)}, {s(S_H)}, 6")
    p.e(f"s_add_u32 {s(S_HST)}, {s(S_HST)}, {HB}")
    p.e(f"s_and_b32 {s(S_A)}, {s(S_CW)}, 7")
    p.e(f"s_lshl_b32 {s(S_SG2)}, {s(S_W)}, 4")
    p.e(f"s_add_u32 {s(S_SG2)}, {s(S_SG2)}, {s(S_A)}")
    p.e(f"s_lshl_b32 {s(S_SG2)}, {s(S_SG2)}, 8")
    p.e(f"s_add_u32 {s(S_SG2)}, {s(S_SG2)}, {CTR2}")


def conv_addr2(p):
    t0, t1, t2 = C_TMP, C_TMP + 1, C_TMP + 2
    p.e(f"v_and_b32 {v(t0)}, 15, v1")
    p.e(f"v_lshrrev_b32 {v(t1)}, 4, v1")
    p.e(f"v_lshl_add_u32 {v(t0)}, {v(t1)}, 3, {v(t0)}")
    p.e(f"v_sub_u32 {v(t0)}, 15, {v(t0)}")
    p.e(f"v_and_b32 {v(t1)}, 1, {v(t0)}")
    p.e(f"v_lshlrev_b32 {v(t1)}, 4, {v(t1)}")
    p.e(f"v_lshlrev_b32 {v(t2)}, {v(t1)}, {v(SSM_RAW + 16)}")
    p.e(f"v_ashrrev_i32 {v(t0)}, 1, {v(t0)}")
    for k in range(4):
        p.e(f"v_cmp_eq_u32 vcc, {k}, {v(t0)}")
        p.e(f"v_cndmask_b32 {v(C_AD + k)}, 0, {v(t2)}, vcc")
    p.e(f"s_mul_i32 {s(S_C)}, {s(S_W)}, 4608")
    p.e(f"s_lshl_b32 {s(S_E)}, {s(S_W)}, 12")
    p.e(f"s_lshl_b32 {s(S_H)}, {s(S_CW)}, 14")
    p.e(f"s_add_u32 {s(S_H)}, {s(S_H)}, {s(S_E)}")
    for k in range(2):
        p.e(f"v_mov_b32 {v(C_TMP + 4 + k)}, 0")
    p.e(f"s_add_u32 {s(S_A)}, {s(S_C)}, {L_U + 4096}")
    p.e(f"v_add_u32 {v(t0)}, {s(S_A)}, {v(G_X0)}")
    p.e(f"ds_write_b64 {v(t0)}, {v(C_TMP + 4, 2)}")


def conv_load_u(p, h):
    tu = p.tok()
    p.e(f"s_add_u32 m0, {s(S_C)}, {L_U}")
    for q in ((3, 2), (1, 0))[h]:
        p.add([dma(G_VD, R_WS, s(S_H), tu, f" offset:{1024 * q} sc1")])
    return tu


def conv_load_x(p, h, S_F=S_F):
    tx = p.tok()
    p.e(f"s_lshr_b32 {s(S_F)}, {s(S_E)}, 1")
    p.e(f"s_add_u32 m0, {s(S_F)}, {L_ST + 8192 * h}")
    p.e(f"s_add_u32 {s(S_B)}, {s(S_F)}, {ST + 8192 * h}")
    for q in range(2):
        p.add([dma(G_VD, R_WS, s(S_B), tx, f" offset:{1024 * q} sc1")])
    p.e(f"s_add_u32 m0, {s(S_F)}, {L_X + 8192 * h}")
    p.e(f"s_sub_u32 {s(S_B)}, {s(S_H)}, {s(S_F)}")
    p.e(f"s_add_u32 {s(S_B)}, {s(S_B)}, {XT + 8192 * h}")
    for q in range(2):
        p.add([dma(G_VD, R_WS, s(S_B), tx, f" offset:{1024 * q} sc1")])
    return tx


def conv_epi(c, tok):
    pre, post = [], []
    tmp = 128 if c == 1 else C_TMP
    XR, RR, Q, XF, O = tmp, tmp + 4, tmp + 8, tmp + 16, tmp + 24
    for jj in range(2):
        j = 2 * c + jj
        pre.append(f"ds_read_b64 {v(XR, 2)}, {v(C_VX)} offset:{2048 * j}")
        pre.append(f"ds_read_b128 {v(RR, 4)}, {v(C_VS)} offset:{2048 * j}")
        pre.append(f"ds_read_b128 {v(Q + 4 * jj, 4)}, {v(C_VS)} offset:{2048 * j + 1024}")
        pre.append(Delay(7))
        for k in range(4):
            pre.append(f"v_and_b32 {v(XF + 4 * jj + k)}, {s(S_HI)}, {v(XR + (k >> 1))}" if k & 1 else
                       f"v_lshlrev_b32 {v(XF + 4 * jj + k)}, 16, {v(XR + (k >> 1))}")
        for k in range(4):
            pre.append(f"v_fmac_f32 {v(Q + 4 * jj + k)}, {v(XF + 4 * jj + k)}, {v(RR + k)}")
        for k in range(4):
            post.append(f"v_fmac_f32 {v(XF + 4 * jj + k)}, {v(Q + 4 * jj + k)}, {v(C_ACC + 4 * j + k)}")
        for k in range(2):
            post.append(f"v_cvt_pk_bf16_f32 {v(O + 2 * jj + k)}, {v(XF + 4 * jj + 2 * k)}, {v(XF + 4 * jj + 2 * k + 1)}")
    post.append([f"s_add_u32 {s(S_A)}, {s(S_HST)}, {40960 * c}",
                 Ins(f"buffer_store_dwordx4 {v(O, 4)}, {v(C_VH)}, {srd(R_WS)}, {s(S_A)} offen sc1", tok)])
    return pre, post


def conv_stages():
    allp = [(m, j) for m in range(8) for j in range(8) if m + j <= 7]
    return [[x for x in allp if sum(x) <= 3], [x for x in allp if sum(x) > 3 and max(x) <= 5], [x for x in allp if max(x) > 5]]


def conv_main(p, tx, tu2, tx2):
    stages = conv_stages()
    HOLD = {}
    if opt("hold", 2) >= 1:
        HOLD.update({("T", i, c): A0 + 164 + 4 * (2 * c + i) for i in range(2) for c in range(8)})
    if opt("hold", 2) >= 2:
        HOLD.update({("P", i, c): 188 + 4 * (2 * c + i) for i in range(2) for c in range(8)})
    held = set()
    steps, inited, k = [], set(), 0
    for si, pairs in enumerate(stages):
        cs = [[0, 1], [2, 3], [4, 5], [6, 7]] if si == 2 else [[c] for c in range(8)]
        for cl in cs:
            base = C_FR + 32 * (k & 1)
            loc, loads, mf, need = {}, [], [], []
            def get(kind, i, c):
                key = (kind, i, c)
                if key in held:
                    return HOLD[key]
                if key not in loc:
                    if key in HOLD:
                        rg = HOLD[key]
                    else:
                        rg = base + 4 * len([1 for q in loc if q not in HOLD])
                    loc[key] = rg
                    if kind == "T":
                        loads.append(Ins(f"ds_read_b64 {r(rg, 2)}, {v(C_VT)} offset:{512 * i + 64 * c}", p.tok()))
                        loads.append(Ins(f"ds_read_b64 {r(rg + 2, 2)}, {v(C_VT)} offset:{512 * i + 64 * c + 8}", p.tok()))
                    else:
                        loads.append(Ins(f"ds_read_b128 {r(rg, 4)}, {v(C_VP)} offset:{512 * (7 - i) + 64 * c}", p.tok()))
                return loc[key]
            for c in cl:
                rest, have = list(pairs), set((a_, b_) for a_, b_, c_ in held if c_ == c)
                while rest:
                    rest.sort(key=lambda x: ((("T", x[0]) not in have) + (("P", x[1]) not in have), -max(x), x))
                    m, j = rest.pop(0)
                    have.update({("T", m), ("P", j)})
                    pj, tm = get("P", j, c), get("T", m, c)
                    acc = v(C_ACC + 4 * (m + j), 4)
                    if c == 0 and m == 0:
                        mf.append(f"v_mfma_f32_16x16x32_bf16 {acc}, {v(C_AD, 4)}, {r(pj, 4)}, {acc if j in inited else 0}")
                        need.append(len(loads))
                        inited.add(j)
                    mf.append(f"v_mfma_f32_16x16x32_bf16 {acc}, {r(tm, 4)}, {r(pj, 4)}, {acc if m + j in inited else 0}")
                    need.append(len(loads))
                    inited.add(m + j)
            assert len([1 for q in loc if q not in HOLD]) <= 8
            held.update(q for q in loc if q in HOLD)
            steps.append((si, loads, mf, need))
            k += 1
    mfs, fixed, pre, sstart = [], {}, {}, {}
    LAT = opt("dslat", 7)
    prev_pos = [-99] * len(steps[0][1])
    for k, (si, loads, mf, need) in enumerate(steps):
        g0 = len(mfs)
        sstart.setdefault(si, g0)
        nxt = steps[k + 1][1] if k + 1 < len(steps) else []
        span = len(mf) if len(nxt) > len(mf) - 3 else len(nxt)
        pos = [g0 + i * span // len(nxt) for i in range(len(nxt))]
        for g, x in zip(pos, nxt):
            fixed.setdefault(g, []).append(x)
        done = 0
        for i in range(len(mf)):
            if need[i] > done:
                done = max([need[i]] + [q + 1 for q in range(len(loads)) if g0 + i - prev_pos[q] >= LAT])
                pre[g0 + i] = [wait(loads[done - 1].tok)]
        prev_pos = pos
        mfs += mf
    N = len(mfs)
    th = [p.tok(), p.tok(), p.tok()]
    EARLY = opt("early", 0)
    e = [conv_epi(c, th[max(0, c - 1) if EARLY else c >> 1]) for c in range(4)]
    cka, ck0 = CKA(), CK2(0)
    s1, s2 = sstart[1], sstart[2]
    XA = opt("xat", 30)
    LD = opt("cklead", 30)
    two = True
    E1 = s1 + (22 if two else 48)
    B0 = E1 + opt("sigd", 55)
    BA = opt("ckaat", 125)
    put = lambda g, l: pre.setdefault(g, []).extend(flat(l))
    put(XA, [wait(tx)] + (cka.test() if BA == XA else []) + ["s_barrier"] + stamp_l(8))
    put(s1 - 12, [wait(tu2)])
    put(max(0, BA - LD), [cka.load()])
    if BA not in (XA, B0):
        put(BA, cka.test() + ["s_barrier"] + stamp_l(28))
    put(B0, [wait(tx2)] + signal2(0, th[0], cka if BA == B0 else None) + stamp_l(11))
    streams = [
        Stream(e[0][0] + (e[1][0] if two else []), XA, s1 + 2),
        Stream(stamp_l(9) + e[0][1] + ([] if two else e[1][0]) + e[1][1], s1 + 3, E1),
        Stream(e[2][0], B0 + 1, s2),
        Stream(stamp_l(10) + e[2][1], s2 + 3, s2 + 14),
        Stream(e[3][0], s2 + 16, N),
    ]
    pc = Pacer(fixed, pre, float(OPTS.get("cpace", 4)))
    nb, nw = opt("nw1b", 40), opt("nw2c", 0)
    pc.put(w1_loads(0, nb), max(BA, opt("w1at", 0)))
    if nw:
        ckw = CKW()
        put(int(pc.t) - LD, [ckw.load()])
        pc.test(ckw, 0, stamp_l(29))
        assert pc.t < N - LD
        pc.put(w2_loads(0, nw))
    t0, t1 = p.tok(), p.tok()
    if EARLY:
        assert pc.t <= EARLY + 3, pc.t
        put(EARLY - LD, [ck0.load()])
        put(EARLY, ck0.test() + ["s_barrier"] + stamp_l(13))
        pc.put(h_dma(0, t0), EARLY, pace=float(OPTS.get("hpace", 2)))
    else:
        put(N - LD, [ck0.load()])
    assert pc.t <= N + 4, pc.t
    p.add(steps[0][1])
    sched(p, mfs, 2, fixed, streams, pre)
    stamp(p, 12)
    p.add(flat(e[3][1]))
    if EARLY:
        p.add(flat(signal2(1, th[1])))
        stamp(p, 30)
        p.add(flat(h_dma(1, t1)[:opt("h1n", 4)]))
        return t0, t1, th[2]
    p.add(ck0.test())
    p.e("s_barrier")
    stamp(p, 13)
    p.add(flat(h_dma(0, t0) + h_dma(1, t1)[:opt("h1n", 4)]))
    p.add(flat(signal2(1, th[1])))
    stamp(p, 30)
    p.add(flat(h_dma(1, t1)[opt("h1n", 4):]))
    return t0, t1, None


G_ACC, G_BF, G_BP, G_SV, G_TMP, G_RT = [24, 40, 56, 24], 72, 104, [108, 112], 116, 124
KK0, KK1 = -2.302208198, 0.044715


def ln_consts(sv, bp):
    sm, sq, t, u = sv, sv + 1, sv + 2, sv + 3
    return [f"v_mul_f32 {v(t)}, {v(sm)}, {v(sm)}",
            f"v_mul_f32 {v(sq)}, {f32((1 + 1e-5) / 640)}, {v(sq)}",
            f"v_and_b32 {v(u)}, {s(S_HI)}, {v(sm)}",
            f"v_fmac_f32 {v(sq)}, {f32(-(1 + 1e-5) / 640 / 640)}, {v(t)}",
            f"v_sub_f32 {v(sm)}, {v(sm)}, {v(u)}",
            f"v_add_f32_e64 {v(sq)}, |{v(sq)}|, {s(S_PL)}",
            f"v_cvt_pk_bf16_f32 {v(bp)}, {v(u)}, {v(sm)}",
            f"v_rsq_f32 {v(t)}, {v(sq)}",
            None,
            f"v_mul_f32 {v(sm)}, {v(sq)}, {v(t)}",
            f"v_mul_f32 {v(sq)}, {f32(KK0)}, {v(t)}",
            f"v_and_b32 {v(u)}, {s(S_HI)}, {v(sm)}",
            f"v_mul_f32 {v(t)}, {v(t)}, {v(t)}",
            f"v_sub_f32 {v(bp + 1)}, {v(sm)}, {v(u)}",
            f"v_mul_f32 {v(t)}, {v(t)}, {v(sq)}",
            f"v_cvt_pk_bf16_f32 {v(bp + 1)}, {v(u)}, {v(bp + 1)}",
            f"v_mul_f32 {v(t)}, {f32(KK1)}, {v(t)}"]


def gelu_ops(acc, n, sv, pk=False):
    out = []
    if pk:
        for k0 in range(0, n, 8):
            m = min(8, n - k0)
            t = lambda j, w=1: v(G_TMP + j, w)
            x = lambda j, w=1: v(acc + k0 + j, w)
            for j in range(0, m, 2):
                out.append(f"v_pk_mul_f32 {t(j, 2)}, {x(j, 2)}, {x(j, 2)}")
            for j in range(0, m, 2):
                out.append(f"v_pk_fma_f32 {t(j, 2)}, {t(j, 2)}, {v(sv + 2, 2)}, {v(sv, 2)} op_sel:[0,0,1] op_sel_hi:[1,0,1]")
            for j in range(0, m, 2):
                out.append(f"v_pk_mul_f32 {t(j, 2)}, {t(j, 2)}, {x(j, 2)}")
            for j in range(m):
                out.append(f"v_exp_f32 {t(j)}, {t(j)}")
            for j in range(0, m, 2):
                out.append(f"v_pk_fma_f32 {t(j, 2)}, {t(j, 2)}, {v(sv, 2)}, {v(sv, 2)} op_sel_hi:[1,0,0]")
            for j in range(m):
                out.append(f"v_rcp_f32 {t(j)}, {t(j)}")
            for j in range(0, m, 2):
                out.append(f"v_pk_mul_f32 {t(j, 2)}, {t(j, 2)}, {x(j, 2)}")
            for j in range(0, m, 2):
                out.append(f"v_cvt_pk_bf16_f32 {x(j // 2)}, {t(j)}, {t(j + 1)}")
            out.append(("store", k0 // 8))
        return out
    def stages(k):
        t = lambda j: v(G_TMP + (k + j) % 6)
        x = lambda j: v(acc + k + j)
        A = [f"v_mul_f32 {t(j)}, {x(j)}, {x(j)}" for j in (0, 1)] + \
            [f"v_fma_f32 {t(j)}, {t(j)}, {v(sv + 2)}, {v(sv + 1)}" for j in (0, 1)] + \
            [f"v_mul_f32 {t(j)}, {t(j)}, {x(j)}" for j in (0, 1)]
        E = [f"v_exp_f32 {t(j)}, {t(j)}" for j in (0, 1)]
        Bv = [f"v_fma_f32 {t(j)}, {t(j)}, {v(sv)}, {v(sv)}" for j in (0, 1)]
        Rr = [f"v_rcp_f32 {t(j)}, {t(j)}" for j in (0, 1)]
        C = [f"v_mul_f32 {t(j)}, {t(j)}, {x(j)}" for j in (0, 1)] + \
            [f"v_cvt_pk_bf16_f32 {v(acc + (k & ~7) + (k & 7) // 2)}, {t(0)}, {t(1)}"]
        return A, E, Bv, Rr, C
    sts = [stages(k) for k in range(0, n, 2)]
    out += sts[0][0]
    for i, (A, E, Bv, Rr, C) in enumerate(sts):
        nA = sts[i + 1][0] if i + 1 < len(sts) else []
        pC = sts[i - 1][4] if i else []
        out += [E[0]] + pC[:2] + [E[1]] + pC[2:]
        if i and (2 * i) % 8 == 0:
            out.append(("store", (2 * i) // 8 - 1))
        out += nA[:1] + Bv[:1] + nA[1:2] + Bv[1:] + [Rr[0]] + nA[2:4] + [Rr[1]] + nA[4:]
    out += sts[-1][4]
    out.append(("store", (n - 1) // 8))
    return out


def g1_consts(c, w3):
    acc = G_ACC[c]
    so = 1024 * (c & 1)
    if not w3:
        return [f"ds_read_b64 {v(G_BP, 2)}, {v(G_VST)} offset:{so + 16}",
                f"ds_read_b128 {v(G_SV[c & 1], 4)}, {v(G_VST)} offset:{so}", Delay(3),
                f"v_mfma_f32_32x32x16_bf16 {v(acc, 16)}, {a(A_P, 4)}, {v(G_BP, 4)}, {v(acc, 16)}"]
    out = [f"ds_read_b64 {v(G_BP + 4 * t, 2)}, {v(G_VST)} offset:{so + 512 * t + 16}" for t in range(2)]
    out += [f"ds_read_b128 {v(acc + 8 * t + 4, 4)}, {v(G_VST)} offset:{so + 512 * t}" for t in range(2)] + [Delay(5)]
    for t in range(2):
        out.append(f"v_mfma_f32_16x16x32_bf16 {v(acc + 8 * t, 4)}, {a(A_P, 4)}, {v(G_BP + 4 * t, 4)}, {v(acc + 8 * t, 4)}")
    return out


def g1_gelu(c, w3, tok, pk=False):
    acc = G_ACC[c]
    out = []
    if not w3:
        for x in gelu_ops(acc, 16, G_SV[c & 1], pk):
            if isinstance(x, tuple):
                q = x[1]
                x = [f"s_add_u32 {s(S_A)}, {s(S_HIS)}, {114688 * c}",
                     Ins(f"buffer_store_dwordx4 {v(acc + 8 * q, 4)}, {v(G_VSH)}, {srd(R_WS)}, {s(S_A)} offen offset:{512 * q} sc1", tok)]
            out.append(x)
    else:
        for t in range(2):
            for x in gelu_ops(acc + 8 * t, 4, acc + 8 * t + 4, pk):
                if isinstance(x, tuple):
                    out.append(f"v_cndmask_b32 {v(acc + 8 * t)}, {v(acc + 8 * t)}, {v(G_VSH)}, {s(S_MK + 6, 2)}")
                    out.append(f"v_cndmask_b32 {v(acc + 8 * t + 1)}, {v(acc + 8 * t + 1)}, 0, {s(S_MK + 6, 2)}")
                    x = [f"s_add_u32 {s(S_A)}, {s(S_HIS)}, {114688 * c + 57344 * t}",
                         Ins(f"buffer_store_dwordx2 {v(acc + 8 * t, 2)}, {v(G_X0)}, {srd(R_WS)}, {s(S_A)} offen sc1", tok)]
                out.append(x)
    return out


def g1_stats_out(c, tok):
    acc = G_ACC[c]
    out = []
    for k in range(1, 4):
        for t in range(2):
            g = acc + 8 * t + 4
            out.append(f"v_cndmask_b32 {v(g)}, {v(g)}, {v(g + k)}, {s(S_MK + 2 * (k - 1), 2)}")
    so = 1024 * (c & 1)
    for t in range(2):
        out.append(f"ds_write_b32 {v(G_VRR)}, {v(acc + 8 * t)} offset:{so + 512 * t + 24}")
        out.append(f"ds_write_b32 {v(G_VRW)}, {v(acc + 8 * t + 4)} offset:{so + 512 * t + 28}")
    out += [f"ds_read_b64 {v(G_SV[1], 2)}, {v(G_X1)} offset:{so + 24}", Delay(5)]
    out += ln_consts(G_SV[1], G_RT)
    out.append(Ins(f"ds_write_b64 {v(G_X1)}, {v(G_RT, 2)} offset:{so + 16}", tok))
    out.append(Ins(f"ds_write_b128 {v(G_X1)}, {v(G_SV[1], 4)} offset:{so}", tok))
    return out


def res_stash(c):
    return [f"ds_read_b64_tr_b16 {v(G_RT, 2)}, {v(G_VRR)} offset:0",
            f"ds_read_b64_tr_b16 {v(G_RT + 2, 2)}, {v(G_VRR)} offset:2048", Delay(4),
            f"ds_write_b64 {v(G_VRW)}, {v(G_RT, 2)} offset:{2560 * c}",
            f"ds_write_b64 {v(G_VRW)}, {v(G_RT + 2, 2)} offset:{2560 * c + 64}"]


def aprime(w3):
    F, P, B, T = 56, 58, 63, 64
    half = 16 if w3 else 32
    out = []
    if w3:
        out += [f"v_and_b32 {v(F)}, 15, v1",
                [f"s_mul_i32 {s(S_C)}, {s(S_M)}, 13108", f"s_lshr_b32 {s(S_C)}, {s(S_C)}, 14", f"s_and_b32 {s(S_C)}, {s(S_C)}, 12"],
                [f"s_mul_i32 {s(S_E)}, {s(S_M)}, 12", f"s_add_u32 {s(S_C)}, {s(S_C)}, {s(S_E)}"],
                [f"s_cmp_eq_u32 {s(S_M)}, 15", f"s_cselect_b32 {s(S_C)}, 60, {s(S_C)}", f"s_cselect_b32 {s(S_E)}, 60, 0"],
                f"s_add_u32 {s(S_C)}, {s(S_C)}, 1536",
                f"v_lshrrev_b32 {v(T)}, 2, {v(F)}",
                f"v_mad_u32_u24 {v(F)}, {v(T)}, {s(S_E)}, {v(F)}",
                f"v_add_u32 {v(F)}, {s(S_C)}, {v(F)}",
                f"v_min_u32 {v(F)}, 1727, {v(F)}"]
    else:
        out += [f"v_and_b32 {v(F)}, 31, v1",
                [f"s_mul_i32 {s(S_C)}, {s(S_M)}, 3", f"s_add_u32 {s(S_C)}, {s(S_C)}, {s(S_W)}"],
                f"v_lshl_add_u32 {v(F)}, {s(S_C)}, 5, {v(F)}"]
    out += [f"v_lshlrev_b32 {v(F + 1)}, 1, {v(F)}", f"v_lshlrev_b32 {v(F)}, 2, {v(F)}",
            f"buffer_load_ushort {v(B)}, {v(F + 1)}, {srd(R_B1)}, 0 offen"]
    n = 2 if w3 else 1
    for k in range(n):
        out.append([f"s_mov_b32 {s(S_C)}, {CSP + 8192 * k}",
                    f"buffer_load_dword {v(P + k)}, {v(F)}, {srd(R_WS)}, {s(S_C)} offen sc1"])
    post = [f"v_add_f32 {v(P)}, {v(P)}, {v(P + k)}" for k in range(1, n)]
    post += [f"v_mul_f32 {v(P)}, {f32(-1 / 640)}, {v(P)}",
             f"v_lshl_or_b32 {v(B)}, {v(B)}, 16, {v(B)}",
             f"v_cmp_gt_u32 {s(98, 2) if not STAMPS else s(R_SH, 2)}, {half}, v1",
             f"v_and_b32 {v(T)}, {s(S_HI)}, {v(P)}",
             f"v_sub_f32 {v(P)}, {v(P)}, {v(T)}",
             f"v_cndmask_b32 {v(B)}, 0, {v(B)}, {s(98, 2) if not STAMPS else s(R_SH, 2)}",
             f"v_cndmask_b32 {v(T)}, {v(P)}, {v(T)}, {s(98, 2) if not STAMPS else s(R_SH, 2)}"]
    if w3:
        post += [f"v_cmp_gt_u32 {s(98, 2) if not STAMPS else s(R_SH, 2)}, 32, v1", f"v_accvgpr_write_b32 {a(A_P + 2)}, 0",
                 f"v_accvgpr_write_b32 {a(A_P + 3)}, 0",
                 f"v_cndmask_b32 {v(T)}, 0, {v(T)}, {s(98, 2) if not STAMPS else s(R_SH, 2)}"]
    else:
        post += [f"v_accvgpr_write_b32 {a(A_P + 2)}, 0", f"v_accvgpr_write_b32 {a(A_P + 3)}, 0"]
    post += [f"v_cvt_pk_bf16_f32 {v(T)}, {v(T)}, {v(T)}", f"v_accvgpr_write_b32 {a(A_P + 1)}, {v(B)}",
             f"v_accvgpr_write_b32 {a(A_P)}, {v(T)}"]
    return out, post


def gemm1(p, w3, th0, th1, tc3):
    EARLY = opt('early', 0)
    th = [th0, th1, p.tok(), p.tok()]
    ts = [p.tok() for _ in range(3)]
    ts.append(ts[2])
    u = 2 if w3 else 1
    LEAD = 7
    p.e(f"s_mov_b32 {s(S_PL)}, {f32(1e-10)}")
    for k in (2, 3, 6, 7) if w3 else (2, 3):
        p.e(f"v_mov_b32 {v(G_BP + k)}, 0")
    ckh, ck30 = (VK2(1) if 'h' in OPTS.get('vck', '') else CK2(1)), (VK3(0) if '0' in OPTS.get('vck', '') else CK3(0))
    ckh3 = CK2(2)
    SB = opt('sb3', 12) if w3 else opt('sb', 14)
    HB_ = opt('h2bar', 40) or 40 + SB
    T3 = opt('dma3', 1)
    rtok = [p.tok() for _ in range(160)]
    def reads(S):
        st = S % 40
        b = G_BF + 4 * (S % 8)
        if not w3:
            return [Ins(f"ds_read_b64_tr_b16 {v(b, 2)}, {v(G_VA)} offset:{1024 * st}", rtok[S]),
                    Ins(f"ds_read_b64_tr_b16 {v(b + 2, 2)}, {v(G_VB)} offset:{1024 * st}", rtok[S])]
        va = G_VB if st & 1 else G_VA
        return [Ins(f"ds_read_b64_tr_b16 {v(b, 2)}, {v(va)} offset:{2048 * (st >> 1)}", rtok[S]),
                Ins(f"ds_read_b64_tr_b16 {v(b + 2, 2)}, {v(va)} offset:{2048 * (st >> 1) + 1024}", rtok[S])]
    nb, nw = opt("nw1b", 40), opt("nw2c", 0)
    ckw = CKW()
    ap = aprime(w3)
    nd = lambda l: flat([x for x in l if x is not None and not isinstance(x, Delay)])
    if not nw:
        p.add(ckw.load())
    p.add(nd(w1_loads(nb, 40) + ap[0]))
    p.e(f"v_mov_b32 {v(G_ONE)}, 1")
    p.e(f"v_min_u32 {v(V_W1)}, 1, v1")
    p.e(f"v_lshlrev_b32 {v(V_W1)}, 30, {v(V_W1)}")
    p.wait(th[0])
    p.e("s_barrier")
    stamp(p, 14)
    for S in range(LEAD):
        p.add(reads(S))
    mfs, fixed, pre = [], {}, {}
    for S in range(160):
        c, st = divmod(S, 40)
        acc = G_ACC[c]
        b = v(G_BF + 4 * (S % 8), 4)
        rd = reads(S + LEAD) if S + LEAD < 160 else []
        g = len(mfs)
        if S % 4 == 0 and S:
            pre[g] = [wait(rtok[S + 3])]
        gs = [int(x) for x in OPTS.get("gst", "").split(",") if x]
        if S in gs:
            pre[g] = pre.get(g, []) + flat(stamp_l(1 + gs.index(S), True))
        if st == 40 - LEAD and c < 3:
            d = (L_HBUF[c + 1] - L_HBUF[c]) & 0xffffffff
            pre[g] = pre.get(g, []) + [f"v_add_u32 {v(G_VA)}, {d}, {v(G_VA)}", f"v_add_u32 {v(G_VB)}, {d}, {v(G_VB)}",
                                       ] + ([] if (w3 and T3 and c) else [wait(th[c + 1])])
            if c == 0 and EARLY and opt("sig3at", 33) == 33:
                pre[g] += flat(signal2(2, tc3, ckh if HB_ == 33 else None, guard=True))
            elif c == 1 and EARLY and opt("h3bar", 73) == 73:
                pre[g] += ckh3.test() + ["s_barrier"]
            else:
                pre[g] += (ckh.test() if (c == 0 and HB_ == 33) else []) + ["s_barrier"]
            pre[g] += flat(stamp_l(15 + c))
        if not w3:
            mfs.append(f"v_mfma_f32_32x32x16_bf16 {v(acc, 16)}, {a(4 * st, 4)}, {b}, {v(acc, 16) if st else 0}")
            fixed[g] = rd
        else:
            ks, t = st >> 1, st & 1
            x, gr = v(acc + 8 * t, 4), v(acc + 8 * t + 4, 4)
            mfs.append(f"v_mfma_f32_16x16x32_bf16 {x}, {a(80 + 4 * ks, 4)}, {b}, {x if ks else 0}")
            mfs.append(f"v_mfma_f32_16x16x32_bf16 {gr}, {b}, {b}, {gr if ks else 0}")
            fixed[g], fixed[g + 1] = (rd, []) if opt('w3pair', 1) else (rd[:1], rd[1:])
    at = lambda items, S, n=1: Stream(items, S * u, (S + n) * u)
    streams = []
    GE = SB + 6
    GX = opt('gx3', 2) if w3 else opt('gx', 18)
    assert GX <= GE
    g2 = g1_gelu(2, w3, ts[2], pk=w3)
    cut = 0 if w3 else len(g2) * opt("g2cut", 75) // 100
    for c in range(3):
        o = 40 * (c + 1)
        if w3:
            tk = p.tok()
            streams.append(Stream(g1_stats_out(c, tk), u * o + 3, u * (o + SB) - 3))
            pre.setdefault(u * (o + SB), []).append(wait(tk))
        pre.setdefault(u * (o + SB), []).extend((ckh.test() if (c == 0 and not opt('h2bar', 40)) else []) + ["s_barrier"])
        streams.append(at(g1_consts(c, w3), o + SB, GE - SB - 2))
    LD, HP = opt("glead", 12), float(OPTS.get("ghpace", 1.3))
    put = lambda S, l: pre.setdefault(S * u, []).extend(flat(l))
    pc = Pacer(fixed, pre, float(OPTS.get("gpace", 1.6)), u)
    NL = opt("nw2g", 70)
    wl = w2_loads(nw, NL)
    k = 0
    def weights(until):
        nonlocal k
        while k < len(wl) and pc.t < until:
            late = nw + k - NW2_G1
            pc.put([wl[k]], 0 if (late < 0 or w3) else 120 + late)
            k += 1
    if EARLY:
        pc.put(h_dma(1, th[1])[opt("h1n", 4):], pace=HP)
        if opt("sig3at", 33) != 33:
            put(opt("sig3at", 33), signal2(2, tc3, guard=True))
    if not nw:
        pc.test(ckw, opt("w2at", 6), stamp_l(29))
    put(HB_ - LD, [ckh.load()])
    if opt('h2bar', 40) not in (0, 33):
        put(HB_, ckh.test() + ["s_barrier"])
    weights(HB_ - opt("hquiet", 4))
    hd = lambda c: ([[]] * 10 if w3 else h_dma(c, th[c], three=True)) if T3 else h_dma(c, th[c])
    HP = HP * (10 / 14 if (T3 and not w3) else 1)
    pc.put(hd(2), HB_, pace=HP)
    if EARLY:
        H3 = opt("h3bar", 73)
        put(H3 - LD, [ckh3.load()])
        if H3 != 73:
            put(H3, ckh3.test() + ["s_barrier"])
        weights(H3 - opt("hquiet", 4))
        pc.put(hd(3), H3, pace=HP)
    else:
        weights(opt("h3at", 80))
        pc.put(hd(3), 41 + SB, pace=HP)
    weights(999)
    assert pc.t < 161, pc.t
    streams.append(at(ap[1], 20, 20))
    streams.append(at(signal3(0, ts[0]), 80 + GX + opt("s3d", 22)))
    put(160 - opt("ck30lead", 4), [ck30.load()])
    streams.append(at(signal3(1, ts[1]), min(120 + GX + opt("s3d", 22), 159)))
    if not w3:
        for c in range(4):
            x = res_stash(c)
            if c < 3:
                x.append(f"v_add_u32 {v(G_VRR)}, {(L_HBUF[c + 1] - L_HBUF[c]) & 0xffffffff}, {v(G_VRR)}")
            streams.append(at(x, 40 * c, 14))
    for c in range(2):
        streams.append(at(g1_gelu(c, w3, ts[c]), 40 * (c + 1) + GE, 40 + GX - GE))
    streams.append(at(g2[:cut], 120 + GE, 40 - GE))
    sched(p, mfs, 2 if w3 else 6, fixed, streams, pre)
    stamp(p, 18)
    g2r = g2[cut:]
    cs = g1_consts(3, w3)
    k = next(i for i, x in enumerate(cs) if isinstance(x, Delay))
    if w3:
        p.add(nd(g1_stats_out(3, None)))
        p.wait_all(vm=False)
        p.e("s_barrier")
        h = next(i for i, x in enumerate(g2r) if isinstance(x, list)) + 1
        p.add(nd(cs[:k] + g2r[:h] + cs[k:] + g2r[h:]))
    else:
        n1, n2 = max(0, len(g2r) - 26), max(0, len(g2r) - 12)
        p.add(nd(g2r[:n1]))
        p.wait_all(vm=False)
        p.e("s_barrier")
        p.add(nd(cs[:k] + g2r[n1:n2] + cs[k:] + g2r[n2:]))
    p.add(nd(g1_gelu(3, w3, ts[3], pk=True)))
    stamp(p, 19)
    return ts[3], ck30


H_ACC, H_RD, H_SUM, H_O = [44, 24], 64, 96, 104


def gemm2(p, ts3, ck30):
    def red_write(c):
        return [f"ds_write_b128 {v(H_VW)}, {v(H_ACC[c & 1] + 4 * tl, 4)} offset:{L_RED[c & 1] + 64 * tl}" for tl in range(5)]

    def red_pre(c):
        out = [f"ds_read_b128 {v(H_O, 4)}, {v(H_VRES)} offset:{2560 * c}", Delay(6)]
        for k in range(8):
            src = H_O + (k >> 1)
            out.append(f"v_and_b32 {v(H_SUM + k)}, {s(S_HI)}, {v(src)}" if k & 1 else f"v_lshlrev_b32 {v(H_SUM + k)}, 16, {v(src)}")
        return out

    def red_post(c, pk=False):
        out = []
        for w in range(4):
            for h in range(2):
                out.append(f"ds_read_b128 {v(H_RD + 8 * w + 4 * h, 4)}, {v(H_VR)} offset:{L_RED[c & 1] + 5376 * w + 16 * h}")
        out.append(Delay(6))
        for w in range(4):
            if pk:
                for k in range(0, 8, 2):
                    out.append(f"v_pk_add_f32 {v(H_SUM + k, 2)}, {v(H_SUM + k, 2)}, {v(H_RD + 8 * w + k, 2)}")
            else:
                for k in range(8):
                    out.append(f"v_add_f32 {v(H_SUM + k)}, {v(H_SUM + k)}, {v(H_RD + 8 * w + k)}")
        for k in range(4):
            out.append(f"v_cvt_pk_bf16_f32 {v(H_O + k)}, {v(H_SUM + 2 * k)}, {v(H_SUM + 2 * k + 1)}")
        out.append([f"s_add_u32 {s(S_A)}, {s(S_OSO)}, {512 * 1280 * c}",
                    f"buffer_store_dwordx4 {v(H_O, 4)}, {v(H_VO)}, {srd(R_OUT)}, {s(S_A)} offen{OPTS.get('outmod', ' nt')}"])
        return out

    ck1, ck2 = (VK3(c) if str(c) in OPTS.get('vck', '') else CK3(c) for c in (1, 2))
    toks = [[p.tok() for _ in range(14)] for _ in range(4)]
    p.add(ck30.test())
    hl = hid_loads(0, 0, toks[0]) + w2_loads(opt("nw2g", 70), 70)
    n0 = opt("g2n0", 12)
    p.add(flat(hl[:n0]))
    p.add(flat([x for x in red_pre(0) if not isinstance(x, Delay)]))
    p.add(ck1.load())
    p.add(flat(signal3(2, ts3)))
    p.add(flat(hl[n0:]))
    stamp(p, 27)
    mf, pre, streams, fixed = [], {}, [], {}
    pc = Pacer(fixed, pre, float(OPTS.get('hgap', 3.5)))
    for c in range(4):
        o = 70 * c
        for st in range(14):
            if st % 2 == 0:
                pre.setdefault(len(mf), []).append(wait(toks[c][st + 1]))
            for tl in range(5):
                acc = v(H_ACC[c & 1] + 4 * tl, 4)
                mf.append(f"v_mfma_f32_16x16x32_bf16 {acc}, {r(W2LOC[5 * st + tl], 4)}, {r(HIDBUF[c & 1][st], 4)}, {acc if st else 0}")
        pre[o].extend(flat(stamp_l(20 + c)))
        if c == 0:
            pc.test(ck1, opt("t31", 16)).put(hid_loads(1, 0, toks[1]))
        if c == 1:
            T = o + opt("t32", 25)
            pre.setdefault(T - opt("ck3lead", 28), []).extend(ck2.load())
            pc.test(ck2, T).put(hid_loads(2, 0, toks[2]))
        if c == 2:
            for st, x in enumerate(hid_loads(3, 0, toks[3])):
                pc.put([x], max(75 + 5 * st, opt("t33", 125)))
        if c:
            fl = []
            for x in red_write(c - 1):
                fl += [x, Delay(2)]
            fl += [Delay(3), [wait_all(vm=False), Ins("s_barrier")]] + red_post(c - 1) + [Delay(1)]
            streams.append(Stream(fl + red_pre(c), o + 4, o + 70))
    sched(p, mf, 2, fixed, streams, pre)
    stamp(p, 24)
    p.add(red_write(3))
    p.wait_all(vm=False)
    p.e("s_barrier")
    p.add(flat([x for x in red_post(3, pk=True) if not isinstance(x, Delay)]))
    stamp(p, 25)


def kernel():
    p = Prog()
    if STAMPS:
        p.e("s_memrealtime s[84:85]")
    for b in (R_Q, R_WS):
        p.e(f"s_load_dwordx2 {s(b, 2)}, s[0:1], {KARG[b]}")
    p.e(f"s_lshr_b32 {s(S_IDX)}, s2, 3")
    touch_code(p)
    p.e(f"s_cmp_ge_u32 {s(S_IDX)}, 28")
    p.e("s_cbranch_scc1 L_prep0")
    p.e(f"s_cmp_ge_u32 {s(S_IDX)}, 20")
    p.e("s_cbranch_scc1 L_stats")
    p.save("entry")
    tu_st = p0_conv(p)
    def mid():
        stamp(p, 4)
        signal(p, tu_st, ready=True, single=True)
        stamp(p, 5)
    conv_build_t(p, mid)
    conv_addr2(p)
    p.e(f"s_cmp_lg_u32 {s(S_W)}, 0")
    p.e("s_cbranch_scc1 L_nopoll")
    p.save("poll")
    if opt("pollw", 1):
        p.raw("    s_waitcnt lgkmcnt(0)")
    if opt("pollseq", 0):
        c0_ = Check(R_WS, None, S_CK1, 0, 16)
        p.add(c0_.load())
        p.add(c0_.test())
    c1 = Check(R_WS, V_POL1, None, 0, 16) if opt("xjoin", 1) else Check(R_WS, None, S_CK1, 0, 16)
    p.add(c1.load())
    p.add(c1.test())
    p.label("L_nopoll")
    p.restore("poll")
    p.e("s_barrier")
    stamp(p, 6)
    tu = conv_load_u(p, 0)
    if opt("xjoin", 1):
        tx = conv_load_x(p, 0)
        tu2 = conv_load_u(p, 1)
        tx2 = conv_load_x(p, 1)
        p.wait(tu)
        stamp(p, 7)
    else:
        c1x = Check(R_WS, V_PA, S_CKA, CTRS, 16)
        p.add(c1x.load())
        tu2 = conv_load_u(p, 1)
        p.add(c1x.test())
        stamp(p, 7)
        tx = conv_load_x(p, 0)
        tx2 = conv_load_x(p, 1)
    G1IN = conv_main(p, tx, tu2, tx2)
    p.label("L_g1")
    p.e(f"s_cmp_eq_u32 {s(S_W)}, 3")
    p.e("s_cbranch_scc1 L_g1w3")
    p.save("g1")
    ts3, ck30 = gemm1(p, False, *G1IN)
    p.label("L_g2")
    gemm2(p, ts3, ck30)
    if STAMPS:
        p.wait_all()
        stamp(p, 26)
        stamp_flush(p)
    p.label("L_end")
    p.e("s_endpgm")
    p.label("L_addr3")
    p.reset()
    gemm_addr(p, True)
    p.e("s_branch L_addr_c")
    p.label("L_stats")
    p.restore("entry")
    p0_stats(p)
    p.label("L_prep0")
    p.restore("entry")
    p.e(f"s_cmp_ge_u32 {s(S_IDX)}, 32")
    p.e("s_cbranch_scc1 L_end2")
    p0_prep(p)
    p.label("L_end2")
    p.e("s_endpgm")
    p.label("L_noconv")
    p.raw("    s_waitcnt vmcnt(0)")
    p.reset()
    ckw, ck0 = VKW(), VK2(0)
    helper_checks(p)
    stamp(p, 28)
    p.add(flat(w1_loads(0, 8)))
    p.label("L_w1rest")
    p.add(flat(w1_loads(8, 40)))
    nw = opt("nw2c", 0)
    if nw or opt("ahead", 0):
        p.add(ckw.load())
        p.add(ckw.test())
    stamp(p, 29)
    p.add(flat(w2_loads(0, nw)))
    if opt("ahead", 0):
        per = (70 - nw + 2) // 3
        p.e(f"s_lshr_b32 {s(S_A)}, {s(S_IDX)}, 2")
        p.e(f"s_sub_u32 {s(S_A)}, {s(S_A)}, 5")
        p.e(f"s_lshl_b32 {s(S_A)}, {s(S_A)}, 10")
        p.e(f"s_add_u32 {s(S_A)}, {s(S_A)}, {s(S_W2B)}")
        for k in range(per):
            p.e(f"s_add_u32 {s(S_B)}, {s(S_A)}, {min(nw + 3 * k, 67) * 1024}")
            p.e(f"buffer_load_dwordx4 {v(32 + 4 * k, 4)}, {v(G_VD)}, {srd(R_WS)}, {s(S_B)} offen sc1")
    stamp(p, 7)
    p.e(f"s_cmp_lg_u32 {s(S_W)}, 0")
    p.e("s_cbranch_scc1 L_nopoll2")
    p.add(ck0.load())
    p.add(ck0.test())
    p.label("L_nopoll2")
    p.e("s_barrier")
    stamp(p, 11)
    if opt("early", 0):
        p.add(flat(h_dma(0, None)))
        p.wait_all()
        p.add(flat(h_dma(1, None)[:opt("h1n", 4)]))
    else:
        p.add(flat(h_dma(0, None) + h_dma(1, None)))
    p.e("s_branch L_g1")
    p.label("L_g1w3")
    p.restore("g1")
    gemm1(p, True, *G1IN)
    p.e("s_branch L_g2")
    emit_slow(p)
    return p


def kernel_iso():
    p = Prog()
    p.e("s_memrealtime s[84:85]")
    for b in (R_Q, R_WS):
        p.e(f"s_load_dwordx2 {s(b, 2)}, s[0:1], {KARG[b]}")
    p.e(f"s_lshr_b32 {s(S_IDX)}, s2, 3")
    prologue(p, (R_K,))
    p.e(f"s_mul_i32 {s(S_CW)}, {s(S_XCD)}, 20")
    p.wait_all(vm=False)
    stamp(p, 0)
    p.e(f"v_lshlrev_b32 {v(G_VD)}, 4, v1")
    for i in range(40):
        p.e(f"s_mov_b32 m0, {4096 * i}")
        p.e(f"v_lshlrev_b32 v32, 4, v0")
        p.e(f"s_lshl_b32 {s(S_A)}, {s(S_W)}, 10")
        p.e(f"s_add_u32 m0, m0, {s(S_A)}")
        p.e(f"s_mov_b32 {s(S_B)}, {4096 * i}")
        descs(p, (R_Q,))
        p.add([dma(32, R_Q, s(S_B))])
    for i in range(64):
        p.e(f"buffer_load_dwordx4 {a(4 * i, 4)}, {v(G_VD)}, {srd(R_Q)}, 0 offen offset:{16 * i}")
    for i in range(8, 63):
        p.e(f"buffer_load_dwordx4 {v(4 * i, 4)}, {v(G_VD)}, {srd(R_Q)}, 0 offen offset:{16 * i}")
    p.wait_all()
    common_addr(p, 0)
    p.label("L_addr_r1")
    p.label("L_addr_r2")
    conv_addr(p)
    conv_addr2(p)
    p.wait_all()
    p.e("s_barrier")
    p.e("s_mov_b32 s95, 2")
    p.label("L_again")
    n0 = len(p.ins)
    which = OPTS["iso"]
    t = [p.tok() for _ in range(4)]
    if which == "conv":
        stamp(p, 7)
        conv_main(p, t[0], t[1], t[2])
        stamp(p, 13)
    elif which == "g2":
        gemm2(p, t[0], CK3(0))
    else:
        p.e(f"s_cmp_eq_u32 {s(S_W)}, {3 if which == 'g1' else (9 if which == 'g1a' else 0)}" if which != "g1b" else "s_cmp_eq_u32 0, 0")
        p.e("s_cbranch_scc1 L_g1w3")
        gemm1(p, False, t[0], t[1], t[2])
        p.e("s_branch L_g2")
        p.label("L_g1w3")
        gemm1(p, True, t[0], t[1], t[2])
        p.label("L_g2")
    vt = set(t)
    keep = []
    drop = OPTS.get("drop", "").split(",")
    for x in p.ins[n0:]:
        kv = OPTS.get("keepvm", "")
        if x.kind == "vmem" and not (("l" in kv and x.writes) or ("d" in kv and "lds" in x.text) or ("s" in kv and "store" in x.op)):
            vt.add(x.tok)
            continue
        if x.op.startswith("s_atomic") or "async" in x.text:
            continue
        if x.pseudo == "wait" and x.arg in vt:
            continue
        if x.pseudo is None and "writelane" not in x.op and any(d and x.op.startswith(d) for d in drop):
            vt.add(x.tok)
            continue
        keep.append(x)
    p.ins[n0:] = keep
    p.wait_all()
    p.e("s_barrier")
    p.e("s_sub_u32 s95, s95, 1")
    p.e("s_cmp_lg_u32 s95, " + OPTS.get("once", "0"))
    p.e("s_cbranch_scc1 L_again")
    stamp(p, 26)
    stamp_flush(p)
    p.e("s_endpgm")
    p.label("L_addr3")
    p.reset()
    gemm_addr(p, True)
    p.e("s_branch L_addr_c")
    emit_slow(p)
    return p


def build():
    head = open(f"cdna_kernels/{NAME}.s.ref").read().split("; Override launch")[0]
    label = NAME + "_kernel"
    body, st = finalize(kernel_iso() if 'iso' in OPTS else kernel())
    print(f"instr {st.n} waits {st.waits} nop-states {st.nops} smblock {st.smblock} dummies {st.dummies}", file=sys.stderr)
    body = body.replace(" ; soft", "").replace(" ; async", "")
    return head + f"""; Generated by gen19.py: one persistent launch, one workgroup per CU.
; @launch grid=(256,1,1) block=(256,1,1) lds={LDS_BYTES}
.amdgcn_target "amdgcn-amd-amdhsa--gfx950"
.text
.globl {label}
.p2align 8
.type {label},@function
{label}:
{body}L_code_end:
.section .rodata,"a"
.p2align 6
.amdhsa_kernel {label}
  .amdhsa_next_free_vgpr 512
  .amdhsa_next_free_sgpr 102
  .amdhsa_accum_offset 256
  .amdhsa_group_segment_fixed_size 0
  .amdhsa_kernarg_size 112
  .amdhsa_user_sgpr_count 2
  .amdhsa_user_sgpr_kernarg_segment_ptr 1
  .amdhsa_system_sgpr_workgroup_id_x 1
  .amdhsa_float_denorm_mode_32 3
.end_amdhsa_kernel
"""


if __name__ == "__main__":
    for o in sys.argv[2:]:
        k, _, val = o.partition("=")
        OPTS[k] = val.replace("+", " ") if val else "1"
    STAMPS = "stamps" in OPTS
    open(sys.argv[1], "w").write(build())
```

```python
import sys, struct
from dsl import *

NAME = "sequential_preLN__ssm_conv_h3__mixer_channel_mlp__prompt"

UT, XT, HB, HID, W2P, ST, CTR = 0, 0x280000, 0x500000, 0x780000, 0xE80000, 0x10B0000, 0x10C0000
STAMP = 0x1100000
W1P = 0x1180000
W1R = W1P + 48 * 40 * 1024
CSP = 0x10B4000
WS_BYTES = 0x1400000
CTR3, CTR2, CTR1, CTRS, CTRW, CTRA, CTRB = (CTR + k * 128 for k in (0, 256, 768, 808, 872, 936, 1024))
FL0, FL1 = CTR + 788 * 128, CTR + 1096 * 128
OOB = 0x40000000
L_T, L_U, L_X, L_ST, L_HA, L_MISC = 0, 66560, 84992, 101376, 117760, 158720
L_KT = 66560
L_HBUF = [L_HA, 0, 40960, L_HA]
L_RES = 81920
L_RED = [0, 21504]
LDS_BYTES = 163840
R_Q, R_K, R_V, R_SSM, R_W1, R_W2, R_OUT, R_WS, R_SH, R_D, R_B1, R_B2, R_DBG = range(4, 56, 4)
S_W, S_XCD, S_IDX, S_CW, S_G, S_DS, S_M, S_T = range(56, 64)
S_TO = 64
S_A, S_B, S_C, S_E, S_F, S_H = 65, 66, 67, 68, 69, 70
S_PO, S_P2, S_HI, S_PL, S_PH = 71, 72, 73, 74, 75
S_MK = 76
S_HST, S_HLD, S_WL, S_W2B, S_C3A, S_C3P, S_HIS, S_HIL, S_OSO, S_CKW, S_W1B, S_CKA = range(84, 96)
S_STMP = 96
S_ROLE, S_RT, S_RO = 3, 100, 101
S_ONE, S_SG2, S_PL2, S_SG1, S_Q0, S_Q1, S_CV, S_U = 12, 13, 14, 15, 16, 17, 18, 19
S_WL3, S_HL3 = 10, 11
S_FL = 42
S_PR, S_J = 40, 41
S_CK1 = R_W2
srd = lambda b: s(b, 4)
SIZES = {R_K: 2621440, R_V: 2621440, R_SH: 5120, R_Q: 2621440, R_SSM: 2621440, R_W1: 2211840, R_W2: 2211840,
         R_OUT: 2621440, R_WS: WS_BYTES, R_D: 1280, R_B1: 3456, R_B2: 1280, R_DBG: 256}
KARG = {R_K: 8, R_V: 16, R_SH: 24, R_Q: 0, R_SSM: 32, R_D: 40, R_W1: 56, R_B1: 64, R_W2: 72, R_B2: 80, R_OUT: 88,
        R_DBG: 96, R_WS: 104}
(G_VA, G_VB, G_VD, G_VSH, G_VST, G_VRR, G_VRW, G_X0, G_X1, G_ONE, H_VW, H_VR, H_VRES, H_VO, V_SIG, V_POL, V_PT,
 V_STAMP) = range(2, 20)
A0 = 256
A_P = 160
W2LOC = ([A0 + 228 + 4 * i for i in range(7)] + [128 + 4 * i for i in range(8)] + [A0 + 164 + 4 * i for i in range(16)]
         + [160 + 4 * i for i in range(24)] + [A0 + 4 * i for i in range(15)])
NW2_G1 = 55
HIDBUF = [[A0 + 60 + 4 * i for i in range(14)], [A0 + 116 + 4 * i for i in range(11)] + [112, 116, 120]]
V_W1, V_SIG1, V_POL1, V_PA = 20, 26, 27, 254
SSM_RAW = 232

OPTS = {}
STAMPS = False
opt = lambda k, d: int(OPTS.get(k, d))


def f32(x):
    return "0x%08x" % struct.unpack("<I", struct.pack("<f", x))[0]


def stamp_l(k, force=False):
    if force:
        pass
    elif not STAMPS or ("entry" in OPTS and k in (12, 13)) or (OPTS["stamps"] != "1" and k not in (0, 26) and str(k) not in OPTS["stamps"].split(",")):
        return []
    return [[f"s_memrealtime {s(S_STMP, 2)}", f"s_memtime {s(S_STMP + 2, 2)}" if "spin" not in OPTS else f"s_sub_u32 {s(S_STMP + 2)}, 0x40000, {s(S_TO)}",
             f"v_writelane_b32 {v(V_STAMP)}, {s(S_STMP + 2)}, {32 + k}", f"v_writelane_b32 {v(V_STAMP)}, {s(S_STMP)}, {k}"]]


def stamp(p, k):
    p.add(flat(stamp_l(k)))
    if STAMPS and k == 0:
        p.e(f"v_writelane_b32 {v(V_STAMP)}, s84, 31")
        if "entry" in OPTS:
            p.e(f"v_writelane_b32 {v(V_STAMP)}, s86, 12")
            p.e(f"v_writelane_b32 {v(V_STAMP)}, s88, 13")


def stamp_flush(p):
    if not STAMPS:
        return
    p.e(f"s_lshl_b32 {s(S_A)}, s2, 2")
    p.e(f"s_add_u32 {s(S_A)}, {s(S_A)}, {s(S_W)}")
    p.e(f"s_lshl_b32 {s(S_A)}, {s(S_A)}, 8")
    p.e(f"s_add_u32 {s(S_A)}, {s(S_A)}, {STAMP}")
    p.e("v_lshlrev_b32 v2, 2, v1")
    p.e(f"buffer_store_dword {v(V_STAMP)}, v2, {srd(R_WS)}, {s(S_A)} offen")


def prologue(p, first):
    order = list(first) + [b for b in KARG if b not in first]
    if STAMPS:
        p.e("s_memrealtime s[86:87]")
    for b in [x for x in first if x not in (R_Q, R_WS)]:
        p.e(f"s_load_dwordx2 {s(b, 2)}, s[0:1], {KARG[b]}")
    if STAMPS:
        p.e(f"v_mov_b32 {v(V_STAMP)}, 0")
    p.e("v_and_b32 v1, 63, v0")
    p.e("v_lshrrev_b32 v2, 6, v0")
    p.e(f"s_mov_b32 {s(R_K + 2)}, 2621440")
    p.e(f"s_mov_b32 {s(R_K + 3)}, 0x20000")
    descs(p, first)
    p.e(f"v_readfirstlane_b32 {s(S_W)}, v2")
    p.e(f"s_and_b32 {s(S_XCD)}, s2, 7")
    if STAMPS:
        p.e("s_memrealtime s[88:89]")


def descs(p, which):
    for b in which:
        if b == R_K:
            continue
        if SIZES[b] == 2621440:
            p.e(f"s_mov_b64 {s(b + 2, 2)}, {s(R_K + 2, 2)}")
        else:
            p.e(f"s_mov_b32 {s(b + 2)}, {SIZES[b]}")
            p.e(f"s_mov_b32 {s(b + 3)}, {s(R_K + 3)}")


def prologue2(p):
    for b in (R_OUT, R_DBG, R_B1):
        p.e(f"s_load_dwordx2 {s(b, 2)}, s[0:1], {KARG[b]}")
    descs(p, (R_WS, R_OUT, R_DBG, R_B1))
    p.e(f"s_cmp_eq_u32 {s(S_W)}, 0")
    p.e(f"s_cselect_b32 {s(S_RT)}, 1, 0")
    p.e(f"s_cselect_b32 {s(S_RO)}, 0, 4096")
    p.e(f"s_lshr_b32 {s(S_G)}, {s(S_XCD)}, 1")
    p.e(f"s_lshl_b32 {s(S_G)}, {s(S_G)}, 2")
    if opt("mix", 1):
        p.e(f"s_and_b32 {s(S_M)}, {s(S_IDX)}, 3")
        p.e(f"s_add_u32 {s(S_G)}, {s(S_G)}, {s(S_M)}")
        p.e(f"s_lshl_b32 {s(S_M)}, {s(S_M)}, 1")
        p.e(f"s_lshr_b32 {s(S_DS)}, {s(S_IDX)}, 2")
        p.e(f"s_add_u32 {s(S_DS)}, {s(S_DS)}, {s(S_M)}")
        p.e(f"s_and_b32 {s(S_DS)}, {s(S_DS)}, 7")
    else:
        p.e(f"s_lshr_b32 {s(S_M)}, {s(S_IDX)}, 3")
        p.e(f"s_add_u32 {s(S_G)}, {s(S_G)}, {s(S_M)}")
        p.e(f"s_and_b32 {s(S_DS)}, {s(S_IDX)}, 7")
    p.e(f"s_and_b32 {s(S_T)}, {s(S_XCD)}, 1")
    p.e(f"s_lshl_b32 {s(S_M)}, {s(S_T)}, 3")
    p.e(f"s_add_u32 {s(S_M)}, {s(S_M)}, {s(S_DS)}")
    if opt("map42", 1):
        p.e(f"s_lshl_b32 {s(S_A)}, {s(S_T)}, 2")
        p.e(f"s_lshr_b32 {s(S_T)}, {s(S_DS)}, 2")
        p.e(f"s_and_b32 {s(S_DS)}, {s(S_DS)}, 3")
        p.e(f"s_add_u32 {s(S_DS)}, {s(S_DS)}, {s(S_A)}")
    p.e(f"s_mov_b32 {s(S_TO)}, 0x20000")
    p.e(f"s_mov_b32 {s(S_HI)}, 0xffff0000")
    p.e(f"s_mov_b32 {s(S_PL)}, 0x05040100")
    p.e(f"s_mov_b32 {s(S_PH)}, 0x07060302")
    p.e(f"v_lshlrev_b32 {v(G_VD)}, 4, v1")
    p.e(f"v_lshlrev_b32 {v(G_X0)}, 3, v1")


def dma(vaddr, rs, soff, tok=None, mods=""):
    return Ins(f"buffer_load_dwordx4 {v(vaddr)}, {srd(rs)}, {soff} offen{mods} lds", tok)


SLOW = []


class Check:
    n = 0

    def __init__(self, rs, voff, sbase, add, target):
        self.rs, self.voff, self.sbase, self.addc, self.target = rs, voff, sbase, add, target
        if "nosync" in OPTS:
            self.target = 0

    def _ld(self, sreg):
        so = [f"s_add_u32 {s(sreg)}, {s(self.sbase)}, {self.addc}" if self.sbase is not None
              else f"s_mov_b32 {s(sreg)}, {self.addc}"]
        if self.voff is None:
            return so + [f"buffer_load_dword {v(V_PT)}, off, {srd(self.rs)}, {s(sreg)} sc1"]
        return so + [f"buffer_load_dword {v(V_PT)}, {v(self.voff)}, {srd(self.rs)}, {s(sreg)} offen sc1"]

    def load(self):
        return self._ld(S_P2)

    def test(self):
        Check.n += 1
        k = Check.n
        SLOW.append((k, self))
        return [Ins(f"v_cmp_gt_u32 vcc, {self.target}, {v(V_PT)}"), Ins(f"s_cbranch_vccnz L_slow{k} ; soft"),
                Ins(f"L_ret{k}:", pseudo="raw")]


class SCheck(Check):
    def __init__(self, ssamp, offs, *args):
        super().__init__(*args)
        self.ssamp, self.offs = ssamp, offs

    def load(self):
        out = [f"s_mov_b64 {s(S_Q0, 2)}, 0"]
        for k, o in enumerate(self.offs):
            out.append(f"s_load_dword {s(S_Q0 + k)}, {s(R_WS, 2)}, {s(self.ssamp)} offset:{o} ; async")
        return out

    def test(self):
        Check.n += 1
        k = Check.n
        SLOW.append((k, self))
        out = []
        q = S_Q0
        if len(self.offs) == 2:
            out.append(Ins(f"s_min_u32 {s(S_P2)}, {s(S_Q0)}, {s(S_Q1)}"))
            q = S_P2
        return out + [Ins(f"s_cmp_lt_u32 {s(q)}, {self.target}"), Ins(f"s_cbranch_scc1 L_slow{k} ; soft"),
                      Ins(f"L_ret{k}:", pseudo="raw")]


def emit_slow(p):
    for k, c in SLOW:
        p.label(f"L_slow{k}")
        p.reset()
        if isinstance(c, SCheck):
            p.raw("    s_waitcnt lgkmcnt(0)")
            q = S_Q0
            if len(c.offs) == 2:
                p.e(f"s_min_u32 {s(S_P2)}, {s(S_Q0)}, {s(S_Q1)}")
                q = S_P2
            p.e(f"s_cmp_ge_u32 {s(q)}, {c.target}")
            p.e(f"s_cbranch_scc1 L_ret{k} ; soft")
        p.add(c._ld(S_PO))
        if "spin" in OPTS:
            p.e(f"s_sub_u32 {s(S_TO)}, {s(S_TO)}, 1")
        if "cnt" in OPTS:
            print("check", SLOW.index((k, c)), type(c).__name__, hex(c.addc), c.target, file=sys.stderr)
            p.e(f"v_readlane_b32 {s(S_STMP)}, {v(V_STAMP)}, {33 + SLOW.index((k, c))}")
            p.e(f"s_add_u32 {s(S_STMP)}, {s(S_STMP)}, 1")
            p.e(f"v_writelane_b32 {v(V_STAMP)}, {s(S_STMP)}, {33 + SLOW.index((k, c))}")
        p.e(f"v_cmp_gt_u32 vcc, {c.target}, {v(V_PT)}")
        p.e(f"s_cbranch_vccz L_ret{k} ; soft")
        p.e(f"s_sub_u32 {s(S_TO)}, {s(S_TO)}, 1")
        p.e(f"s_cbranch_scc0 L_slow{k} ; soft")
        p.e(f"s_mov_b32 {s(S_TO)}, 0")
        p.e(f"s_branch L_ret{k} ; soft")


READY = Check(R_DBG, None, S_RO, 0, s(S_RT))


def touch_code(p):
    p.e(f"s_getpc_b64 {s(S_MK, 2)}")
    p.raw("L_pc:")
    p.e(f"s_lshl_b32 {s(S_A)}, {s(S_IDX)}, 12")
    p.e(f"v_lshl_add_u32 v251, v0, 4, {s(S_A)}")
    p.e(f"v_min_u32 v251, L_code_end-L_pc-16, v251")
    p.e(f"v_mad_u64_u32 v[252:253], vcc, v251, 1, {s(S_MK, 2)}")
    p.e(f"global_load_dwordx4 a[252:255], v[252:253], off")


def sig_rep8(p, sbase, S_SG1=S_SG1):
    p.e(f"s_lshl_b32 {s(S_SG1)}, {s(S_W)}, 11")
    p.e(f"s_add_u32 {s(S_SG1)}, {s(S_SG1)}, {s(sbase)}")


def atom(so, off=0):
    return f"s_atomic_add {s(S_ONE)}, {s(R_WS, 2)}, {s(so)} offset:{off}"


def signal(p, tok=None, ready=False, single=False, off=0, S_SG1=S_SG1):
    if tok is None:
        p.wait_all(lgkm=False)
    else:
        p.wait(tok)
    if ready:
        p.add(READY.test())
    p.e("s_barrier")
    if single:
        Check.n += 1
        p.e(f"s_cmp_lg_u32 {s(S_W)}, 0")
        p.e(f"s_cbranch_scc1 L_nosig{Check.n} ; soft")
        p.e(atom(S_SG1))
        p.label(f"L_nosig{Check.n}", soft=True)
    else:
        p.e(atom(S_SG1, off))
        p.e(atom(S_SG1, off + 1024))


def relay(flag, wave):
    Check.n += 1
    return [f"s_cmp_lg_u32 {s(S_W)}, {wave}", f"s_cbranch_scc1 L_nosig{Check.n} ; soft",
            atom(S_FL, flag - CTR), Ins(f"L_nosig{Check.n}:", pseudo="raw")]


def helper_checks(p):
    Check.n += 1
    k = Check.n
    p.e(f"s_cmp_lg_u32 {s(S_W)}, 0")
    p.e(f"s_cbranch_scc1 L_nochk{k}")
    p.save("chk")
    p.e(f"v_bfe_u32 v28, v1, 2, 1")
    p.e(f"v_mad_u32_u24 v29, v28, 8, 8")
    p.e(f"v_mul_u32_u24 v28, {CTRA - CTRS}, v28")
    p.e(f"v_add_u32 v28, v28, {v(V_PA)}")
    c_ = Check(R_WS, 28, S_CKA, CTRS, "v29")
    p.add(c_.load())
    p.add(c_.test())
    p.label(f"L_nochk{k}")
    p.restore("chk")
    p.e("s_barrier")
    if opt("rel1", 1):
        p.add(relay(FL1, 3))


def common_addr(p, role):
    p.e(f"s_mov_b32 {s(S_ROLE)}, {role}")
    if role:
        p.e("s_branch L_addr")
    else:
        p.save("addr")
        p.label("L_addr")
        prologue2(p)
        p.e(f"s_cmp_eq_u32 {s(S_W)}, 3")
        p.e("s_cbranch_scc1 L_addr3")
        gemm_addr(p, False)
        p.label("L_addr_c")
        gemm_addr_common(p)
        p.wait_all(vm=False)
        p.e(f"s_cmp_eq_u32 {s(S_ROLE)}, 1")
        p.e("s_cbranch_scc1 L_addr_r1")
        p.e(f"s_cmp_eq_u32 {s(S_ROLE)}, 2")
        p.e("s_cbranch_scc1 L_addr_r2")
    if role:
        p.label(f"L_addr_r{role}")


def p0_conv(p):
    VA, VH, VK, VU, VX, VC = 208, 209, 210, 211, 212, 213
    W, WP, KR, VR, KF, U, VF, OUT = 32, 40, 56, 78, 94, 138, 170, 176
    prologue(p, (R_K, R_V, R_SH))
    p.e(f"s_mul_i32 {s(S_CW)}, {s(S_XCD)}, 20")
    p.e(f"s_add_u32 {s(S_CW)}, {s(S_CW)}, {s(S_IDX)}")
    p.e(f"v_lshrrev_b32 {v(VC)}, 3, v1")
    p.e(f"v_mul_u32_u24 {v(VC)}, 1280, {v(VC)}")
    p.e(f"v_and_b32 {v(VA)}, 7, v1")
    p.e(f"v_lshl_add_u32 {v(VA)}, {v(VA)}, 4, {v(VC)}")
    p.e(f"s_lshr_b32 {s(S_E)}, {s(S_CW)}, 4")
    p.e(f"s_and_b32 {s(S_F)}, {s(S_CW)}, 15")
    p.e(f"s_mul_i32 {s(S_A)}, {s(S_F)}, {128 * 1280}")
    p.e(f"s_lshl_b32 {s(S_B)}, {s(S_E)}, 7")
    p.e(f"s_add_u32 {s(S_A)}, {s(S_A)}, {s(S_B)}")
    p.e(f"s_sub_u32 {s(S_B)}, {s(S_A)}, 10240")
    p.e(f"v_add_u32 {v(VH)}, {s(S_B)}, {v(VA)}")
    p.e(f"s_mul_i32 {s(S_B)}, {s(S_W)}, {4 * 10240}")
    p.e(f"s_add_u32 {s(S_A)}, {s(S_A)}, {s(S_B)}")
    p.e(f"s_mul_i32 {s(S_C)}, {s(S_W)}, {4 * 1040}")
    p.e(f"v_lshrrev_b32 {v(VC)}, 4, v0")
    p.e(f"v_lshlrev_b32 {v(VU)}, 5, {v(VC)}")
    p.e(f"s_lshl_b32 {s(S_H)}, {s(S_E)}, 9")
    p.e(f"s_mov_b32 m0, {L_KT}")
    p.wait_all(vm=False)
    stamp(p, 0)
    p.e(f"s_cmp_lg_u32 {s(S_W)}, 0")
    p.e("s_cbranch_scc1 L_nohalo ; soft")
    p.e("s_mov_b32 exec_lo, 0")
    p.add([dma(VH, R_K, 0)])
    p.e("s_mov_b32 exec_lo, -1")
    p.label("L_nohalo", soft=True)
    p.reset()
    tkv, tx, tu = p.tok(), p.tok(), p.tok()
    p.e(f"buffer_load_dwordx4 {v(W, 4)}, {v(VU)}, {srd(R_SH)}, {s(S_H)} offen")
    p.e(f"buffer_load_dwordx4 {v(W + 4, 4)}, {v(VU)}, {srd(R_SH)}, {s(S_H)} offen offset:16")
    for rs, lb, tk in ((R_K, L_KT + 1040, tkv), (R_V, L_KT + 17680, tkv)):
        for o in range(4):
            p.e(f"s_add_u32 m0, {s(S_C)}, {lb + 1040 * o}")
            p.e(f"s_add_u32 {s(S_B)}, {s(S_A)}, {10240 * o}")
            p.add([dma(VA, rs, s(S_B), tk)])
    for b in (R_SSM, R_D):
        p.e(f"s_load_dwordx2 {s(b, 2)}, s[0:1], {KARG[b]}")
    descs(p, (R_SSM, R_D))
    def ssm_loads():
        p.e(f"s_lshl_b32 {s(S_C)}, {s(S_CW)}, 2")
        p.e(f"s_add_u32 {s(S_C)}, {s(S_C)}, {s(S_W)}")
        p.e(f"s_lshl_b32 {s(S_B)}, {s(S_C)}, 12")
        for q in range(4):
            p.e(f"buffer_load_dwordx4 {v(SSM_RAW + 4 * q, 4)}, {v(G_VD)}, {srd(R_SSM)}, {s(S_B)} offen offset:{1024 * q}")
        p.e(f"s_lshl_b32 {s(S_B)}, {s(S_C)}, 1")
        p.e(f"buffer_load_ushort {v(SSM_RAW + 16)}, off, {srd(R_D)}, {s(S_B)}")
    p.e(f"v_lshlrev_b32 {v(G_VD)}, 4, v1")
    ssm_loads()
    if opt("nx1", 5) and not opt("vic", 1) & 1:
        descs(p, (R_Q,))
        p.e(f"s_mul_i32 {s(S_A)}, {s(S_C)}, 13108")
        p.e(f"s_lshr_b32 {s(S_A)}, {s(S_A)}, 16")
        p.e(f"s_mul_i32 {s(S_A)}, {s(S_A)}, {10240 - 640}")
        p.e(f"s_lshl_b32 {s(S_B)}, {s(S_C)}, 7")
        p.e(f"s_add_u32 {s(S_A)}, {s(S_A)}, {s(S_B)}")
        p.e(f"s_add_u32 {s(S_A)}, {s(S_A)}, {1024 * 1280 + 640}")
        p.e(f"buffer_load_dwordx4 a[248:251], {v(VA)}, {srd(R_Q)}, {s(S_A)} offen")
    common_addr(p, 0)
    conv_addr(p)
    p.e(f"s_lshr_b32 {s(S_E)}, {s(S_CW)}, 4")
    p.e(f"s_and_b32 {s(S_F)}, {s(S_CW)}, 15")
    p.e(f"v_and_b32 {v(VH)}, 15, v1")
    p.e(f"v_mul_u32_u24 {v(VK)}, 1040, {v(VH)}")
    p.e(f"v_lshl_add_u32 {v(VK)}, {v(VC)}, 3, {v(VK)}")
    p.e(f"v_add_u32 {v(VK)}, {L_KT}, {v(VK)}")
    p.e(f"v_lshlrev_b32 {v(VH)}, 4, {v(VH)}")
    p.e(f"v_sub_u32 {v(VH)}, 240, {v(VH)}")
    p.e(f"v_lshl_add_u32 {v(VU)}, {v(VC)}, 14, {v(VH)}")
    p.e(f"s_lshl_b32 {s(S_B)}, {s(S_E)}, 8")
    p.e(f"s_add_u32 {s(S_B)}, {s(S_B)}, {CTR1}")
    p.e(f"s_mov_b32 {s(S_SG1)}, {s(S_B)}")
    p.e(f"s_mov_b32 {s(S_CK1)}, {s(S_B)}")
    p.e(f"s_add_u32 {s(S_A)}, {s(S_CKA)}, {CTRS}")
    p.e(f"v_add_u32 {v(V_POL1)}, {s(S_A)}, {v(V_PA)}")
    p.e(f"v_writelane_b32 {v(V_POL1)}, {s(S_B)}, 0")
    p.e(f"s_lshl_b32 {s(S_A)}, {s(S_E)}, 18")
    p.e(f"s_lshl_b32 {s(S_B)}, {s(S_F)}, 8")
    p.e(f"s_sub_u32 {s(S_A)}, {s(S_A)}, {s(S_B)}")
    for ch in range(4):
        for j in range(4):
            dst = WP + (ch >> 1) * 8 + j * 2 + (ch & 1)
            src = W + 2 * ch + (j >> 1)
            p.e(f"v_and_b32 {v(dst)}, {s(S_HI)}, {v(src)}" if j & 1 else f"v_lshlrev_b32 {v(dst)}, 16, {v(src)}")
    p.wait(tkv)
    p.e("s_barrier")
    stamp(p, 1)
    for i in range(11):
        off = 640 + 128 * i if i < 3 else 1040 + 128 * (i - 3)
        p.e(f"ds_read_b64 {v(KR + 2 * i, 2)}, {v(VK)} offset:{off}")
        if i >= 3:
            p.e(f"ds_read_b64 {v(VR + 2 * (i - 3), 2)}, {v(VK)} offset:{17680 + 128 * (i - 3)}")
    p.add(READY.load())
    def unpack(dst, src):
        p.e(f"v_lshlrev_b32 {v(dst)}, 16, {v(src)}")
        p.e(f"v_and_b32 {v(dst + 1)}, {s(S_HI)}, {v(src)}")
    for i in range(3):
        for pr in range(2):
            unpack(KF + 4 * i + 2 * pr, KR + 2 * i + pr)
    for pr in range(2):
        for t in range(8):
            unpack(KF + 4 * (t + 3) + 2 * pr, KR + 2 * (t + 3) + pr)
            unpack(VF + 2 * (t & 1), VR + 2 * t + pr)
            d = v(U + 4 * t + 2 * pr, 2)
            for j in (3, 2, 1, 0):
                kf, w = v(KF + 4 * (t + 3 - j) + 2 * pr, 2), v(WP + 8 * pr + 2 * j, 2)
                p.e(f"v_pk_mul_f32 {d}, {kf}, {w}" if j == 3 else f"v_pk_fma_f32 {d}, {kf}, {w}, {d}")
            p.e(f"v_pk_mul_f32 {d}, {d}, {v(VF + 2 * (t & 1), 2)}")
        for ch in (2 * pr, 2 * pr + 1):
            for i in range(4):
                p.e(f"v_cvt_pk_bf16_f32 {v(OUT + 4 * ch + i)}, {v(U + 4 * (7 - 2 * i) + ch)}, {v(U + 4 * (6 - 2 * i) + ch)}")
        for ch in (2 * pr, 2 * pr + 1):
            p.e(f"s_add_u32 {s(S_B)}, {s(S_A)}, {UT + 3840 + 4096 * ch}")
            p.e(f"buffer_store_dwordx4 {v(OUT + 4 * ch, 4)}, {v(VU)}, {srd(R_WS)}, {s(S_B)} offen sc1", tu)
    stamp(p, 2)
    return tu


def tile_addr(p, t0, t1, hi_shift, hi_mul, nrow, base=0):
    p.e(f"s_mul_i32 {s(S_A)}, {s(S_W)}, 5")
    p.e(f"s_and_b32 {s(S_B)}, {s(S_A)}, 1")
    p.e(f"s_lshr_b32 {s(S_A)}, {s(S_A)}, 1")
    p.e(f"s_lshl_b32 {s(S_A)}, {s(S_A)}, 10")
    p.e(f"s_lshl_b32 {s(S_E)}, {s(S_B)}, 6")
    p.e(f"s_add_u32 {s(S_A)}, {s(S_A)}, {s(S_E)}")
    if base:
        p.e(f"s_add_u32 {s(S_A)}, {s(S_A)}, {base}")
    p.e(f"s_mul_i32 {s(S_B)}, {s(S_B)}, 896")
    p.e(f"s_add_u32 {s(S_B)}, {s(S_B)}, 64")
    p.e(f"v_lshrrev_b32 {v(t0)}, {hi_shift}, v1")
    p.e(f"v_mul_u32_u24 {v(t0)}, {hi_mul}, {v(t0)}")
    p.e(f"v_bfe_u32 {v(t1)}, v1, 2, {nrow}")
    p.e(f"v_lshl_add_u32 {v(t0)}, {v(t1)}, 7, {v(t0)}")
    p.e(f"v_and_b32 {v(t1)}, 3, v1")
    p.e(f"v_lshl_add_u32 {v(t0)}, {v(t1)}, 3, {v(t0)}")
    p.e(f"v_add_u32 {v(t0)}, {s(S_A)}, {v(t0)}")
    p.e(f"v_add_u32 {v(t1)}, {s(S_B)}, {v(t0)}")


def tile_reads(p, fr, t0, t1, astep):
    for i in range(10):
        j = i >> 1
        for aa in range(2):
            p.e(f"ds_read_b64_tr_b16 {v(fr + 4 * i + 2 * aa, 2)}, {v(t1 if j & 1 else t0)} offset:{1024 * (j >> 1) + 32 * (i & 1) + astep * aa}")


W_T0, W_T1, W_T2, W_VT, W_V5, W_VC, W_VM, W_VW5, W_ON, W_CS, W_FR = 132, 133, 134, 135, 136, 137, 138, 139, 140, 144, 176
S_PC = S_CW


def w1_piece(p, k, S_PC=S_PC):
    p.e(f"s_add_u32 {s(S_F)}, {s(S_PC)}, {k}")
    p.e(f"s_mul_i32 {s(S_E)}, {s(S_F)}, 13108")
    p.e(f"s_lshr_b32 {s(S_E)}, {s(S_E)}, 16")
    p.e(f"s_mul_i32 {s(S_C)}, {s(S_E)}, 5")
    p.e(f"s_sub_u32 {s(S_F)}, {s(S_F)}, {s(S_C)}")
    p.e(f"s_lshl_b32 {s(S_C)}, {s(S_F)}, 2")
    p.e(f"s_add_u32 {s(S_C)}, {s(S_C)}, {s(S_W)}")


def w1_raw(p):
    T0, T1, T2 = W_T0, W_T1, W_T2
    toks = [p.tok() for _ in range(3)]
    p.e(f"v_lshrrev_b32 {v(T0)}, 3, v1")
    p.e(f"v_mul_u32_u24 {v(T0)}, 3456, {v(T0)}")
    p.e(f"v_and_b32 {v(T1)}, 7, v1")
    p.e(f"v_lshl_add_u32 {v(T0)}, {v(T1)}, 4, {v(T0)}")
    p.e(f"s_mul_i32 {s(S_PH)}, {s(S_W)}, 12288")
    for k in range(3):
        sp = S_PR if k == 2 else S_PC
        if k != 1:
            p.e(f"s_cmp_lt_u32 {s(sp)}, 135")
            p.e(f"s_cselect_b32 {s(S_A)}, 0, {OOB}")
            p.e(f"v_or_b32 {v(T2)}, {s(S_A)}, {v(T0)}")
        w1_piece(p, k & 1, sp)
        p.e(f"s_mul_i32 {s(S_A)}, {s(S_C)}, {32 * 3456}")
        p.e(f"s_lshl_b32 {s(S_B)}, {s(S_E)}, 7")
        p.e(f"s_add_u32 {s(S_A)}, {s(S_A)}, {s(S_B)}")
        for i in range(4):
            p.e(f"s_add_u32 m0, {s(S_PH)}, {4096 * k + 1024 * i}")
            p.e(f"s_add_u32 {s(S_B)}, {s(S_A)}, {8 * 3456 * i}")
            p.add([dma(T2, R_W1, s(S_B), toks[k])])
    return toks


def w1_setup(p):
    for k in range(4):
        p.e(f"v_mov_b32 {v(W_ON + k)}, 0x3f803f80")
    p.e(f"s_mul_i32 {s(S_PH)}, {s(S_W)}, 12288")
    p.e(f"v_and_b32 {v(W_T1)}, 3, v1")
    p.e(f"v_lshl_add_u32 {v(W_T1)}, {v(W_T1)}, 3, {s(S_PH)}")
    p.e(f"s_lshl_b32 {s(S_B)}, {s(S_W)}, 8")
    p.e(f"s_add_u32 {s(S_PL)}, {s(S_B)}, {L_MISC}")


def w1_reg(p, toks):
    T0, T1, T2, VT, ON, CS = W_T0, W_T1, W_T2, W_VT, W_ON, W_CS
    p.e(f"v_lshrrev_b32 {v(T0)}, 5, v1")
    p.e(f"v_lshl_add_u32 {v(VT)}, {v(T0)}, 10, {v(T1)}")
    p.e(f"v_bfe_u32 {v(T0)}, v1, 2, 2")
    p.e(f"v_lshl_add_u32 {v(VT)}, {v(T0)}, 7, {v(VT)}")
    p.e(f"v_bfe_u32 {v(T0)}, v1, 4, 1")
    p.e(f"v_lshl_add_u32 {v(VT)}, {v(T0)}, 5, {v(VT)}")
    p.e(f"v_and_b32 {v(T2)}, 31, v1")
    p.e(f"v_lshl_add_u32 {v(T0)}, {v(T2)}, 2, {s(S_PL)}")
    for k, tk in enumerate(toks):
        FR = W_FR + 16 * k
        p.wait(tk)
        for st in range(2):
            for blk in range(2):
                for aa in range(2):
                    p.e(f"ds_read_b64_tr_b16 {v(FR + 8 * st + 4 * blk + 2 * aa, 2)}, {v(VT)} offset:{4096 * k + 2048 * st + 512 * aa + 64 * blk}")
        for st in range(2):
            for blk in range(2):
                p.e(f"v_mfma_f32_32x32x16_bf16 {v(CS + 16 * blk, 16)}, {v(ON, 4)}, {v(FR + 8 * st + 4 * blk, 4)}, {v(CS + 16 * blk, 16) if st else 0}")
        for blk in range(2):
            p.e(f"ds_write_b32 {v(T0)}, {v(CS + 16 * blk)} offset:{1024 * k + 128 * blk}")
    for k in range(len(toks)):
        FR = W_FR + 16 * k
        w1_piece(p, k)
        p.e(f"s_mul_i32 {s(S_A)}, {s(S_E)}, 40")
        p.e(f"s_add_u32 {s(S_A)}, {s(S_A)}, {s(S_C)}")
        p.e(f"s_lshl_b32 {s(S_A)}, {s(S_A)}, 11")
        for st in range(2):
            for blk in range(2):
                p.e(f"s_add_u32 {s(S_B)}, {s(S_A)}, {W1P + (40 * blk + st) * 1024}")
                p.e(f"buffer_store_dwordx4 {v(FR + 8 * st + 4 * blk, 4)}, {v(G_VD)}, {srd(R_WS)}, {s(S_B)} offen sc1")


def w1_rem(p, tok):
    T0, T1, T2, VT, V5, VC, VM, VW5, ON, CS, FR = W_T0, W_T1, W_T2, W_VT, W_V5, W_VC, W_VM, W_VW5, W_ON, W_CS, W_FR + 32
    w1_piece(p, 0, S_PR)
    p.e(f"v_lshrrev_b32 {v(T0)}, 2, v1")
    p.e(f"v_lshl_add_u32 {v(VT)}, {v(T0)}, 7, {v(T1)}")
    p.e(f"v_lshl_add_u32 {v(V5)}, {v(T0)}, 7, {s(S_PH)}")
    p.wait(tok)
    for i in range(6):
        for aa in range(2):
            p.e(f"ds_read_b64_tr_b16 {v(FR + 4 * i + 2 * aa, 2)}, {v(V5 if i == 5 else VT)} offset:{8192 + 2048 * aa + 24 * i}")
    p.e(f"s_sub_u32 {s(S_B)}, {s(S_E)}, 24")
    p.e(f"v_and_b32 {v(T2)}, 15, v1")
    p.e(f"v_cmp_eq_u32 vcc, 12, {v(T2)}")
    p.e(f"v_cndmask_b32 {v(VC)}, 0, {v(ON)}, vcc")
    p.e(f"v_lshrrev_b32 {v(T0)}, 2, {v(T2)}")
    p.e(f"v_cmp_eq_u32 vcc, {s(S_B)}, {v(T0)}")
    p.e(f"v_mov_b32 {v(T0)}, {OOB}")
    p.e(f"v_cndmask_b32 {v(VM)}, {v(T0)}, {v(G_VD)}, vcc")
    p.e(f"v_lshl_add_u32 {v(T0)}, {v(T2)}, 2, {s(S_PL)}")
    p.e(f"v_mov_b32 {v(T1)}, {L_MISC + 2048}")
    p.e(f"v_cmp_gt_u32 vcc, 4, {v(T2)}")
    p.e(f"v_cndmask_b32 {v(VW5)}, {v(T1)}, {v(T0)}, vcc")
    p.e(f"v_cmp_le_u32 vcc, 12, {v(T2)}")
    p.e(f"v_cndmask_b32 {v(VM)}, {v(VM)}, {v(G_VD)}, vcc")
    p.e(f"v_cndmask_b32 {v(T0)}, {v(T0)}, {v(T1)}, vcc")
    p.e(f"s_lshl_b32 {s(S_C)}, {s(S_C)}, 10")
    p.e(f"s_mul_i32 {s(S_A)}, {s(S_B)}, {100 * 1024}")
    p.e(f"s_add_u32 {s(S_A)}, {s(S_A)}, {s(S_C)}")
    for i in range(6):
        for q in range(4):
            p.e(f"v_cndmask_b32 {v(FR + 4 * i + q)}, {v(FR + 4 * i + q)}, {v(VC)}, vcc")
        if i < 5:
            p.e(f"s_add_u32 {s(S_B)}, {s(S_A)}, {W1R + 20 * i * 1024}")
        else:
            p.e(f"s_add_u32 {s(S_B)}, {s(S_C)}, {W1R + 20 * 15 * 1024}")
        p.e(f"buffer_store_dwordx4 {v(FR + 4 * i, 4)}, {v(VM if i == 5 else G_VD)}, {srd(R_WS)}, {s(S_B)} offen sc1")
        p.e(f"v_mfma_f32_16x16x32_bf16 {v(CS + 4 * i, 4)}, {v(ON, 4)}, {v(FR + 4 * i, 4)}, 0")
    for i in range(6):
        p.e(f"ds_write_b32 {v(VW5 if i == 5 else T0)}, {v(CS + 4 * i)} offset:{2048 + 48 * i}")


def w1_sums(p, tok=None):
    T0, T1, CS = W_T0, W_T1, W_CS
    p.e(f"s_add_u32 {s(S_PH)}, {s(S_PC)}, {s(S_W)}")
    p.e(f"s_cmp_lt_u32 {s(S_W)}, 2")
    p.e(f"s_cselect_b32 {s(S_PH)}, {s(S_PH)}, {s(S_PR)}")
    p.e(f"s_cmp_lt_u32 {s(S_W)}, 3")
    p.e(f"s_cselect_b32 {s(S_PH)}, {s(S_PH)}, 135")
    w1_piece(p, 0, S_PH)
    p.e(f"v_lshlrev_b32 {v(T0)}, 2, v1")
    p.e(f"s_lshl_b32 {s(S_A)}, {s(S_W)}, 10")
    p.e(f"s_add_u32 {s(S_A)}, {s(S_A)}, {L_MISC}")
    p.e(f"v_add_u32 {v(T1)}, {s(S_A)}, {v(T0)}")
    for w in range(4):
        p.e(f"ds_read_b32 {v(CS + w)}, {v(T1)} offset:{256 * w}")
    p.e(f"s_cmp_lt_u32 {s(S_PH)}, 135")
    p.e(f"s_cselect_b32 {s(S_B)}, 0, {OOB}")
    p.e(f"v_or_b32 {v(T0)}, {s(S_B)}, {v(T0)}")
    p.e(f"s_lshl_b32 {s(S_A)}, {s(S_F)}, 13")
    p.e(f"s_lshl_b32 {s(S_B)}, {s(S_E)}, 8")
    p.e(f"s_add_u32 {s(S_B)}, {s(S_B)}, {s(S_A)}")
    p.e(f"s_add_u32 {s(S_B)}, {s(S_B)}, {CSP}")
    p.e(f"v_add_f32 {v(CS)}, {v(CS)}, {v(CS + 1)}")
    p.e(f"v_add_f32 {v(CS + 2)}, {v(CS + 2)}, {v(CS + 3)}")
    p.e(f"v_add_f32 {v(CS)}, {v(CS)}, {v(CS + 2)}")
    p.e(f"buffer_store_dword {v(CS)}, {v(T0)}, {srd(R_WS)}, {s(S_B)} offen sc1", tok)


X_REGS = (32, 72, 74, 76, 77, 78, 79, 80, 81, 82, 83, 84, 124, 125, 126, 128)
XB, SB = 49152, 98304


def x_loads(p, first, lo=0, hi=10):
    X, SU, SQ, VX, VW, T0, T1, T2, T3, VS, VO, FR, TA, TB, VR, B2 = X_REGS
    SJ = S_H
    p.e(f"s_lshr_b32 {s(S_A)}, {s(SJ)}, 3")
    p.e(f"s_lshl_b32 {s(S_A)}, {s(S_A)}, 1")
    p.e(f"s_and_b32 {s(S_B)}, {s(SJ)}, 1")
    p.e(f"s_add_u32 {s(S_A)}, {s(S_A)}, {s(S_B)}")
    p.e(f"s_lshl_b32 {s(S_A)}, {s(S_A)}, 2")
    p.e(f"s_add_u32 {s(S_A)}, {s(S_A)}, {s(S_W)}")
    p.e(f"s_lshl_b32 {s(S_A)}, {s(S_A)}, 4")
    p.e(f"s_and_b32 {s(S_B)}, {s(SJ)}, 6")
    p.e(f"s_add_u32 {s(S_A)}, {s(S_A)}, {s(S_B)}")
    p.e(f"s_mul_i32 {s(S_A)}, {s(S_A)}, 2560")
    p.e(f"v_lshrrev_b32 {v(VX)}, 5, v1")
    p.e(f"v_bfe_u32 {v(T0)}, v1, 3, 2")
    p.e(f"v_lshl_add_u32 {v(VX)}, {v(VX)}, 4, {v(T0)}")
    p.e(f"v_mul_u32_u24 {v(VX)}, 1280, {v(VX)}")
    p.e(f"v_and_b32 {v(T3)}, 7, v1")
    p.e(f"v_lshl_add_u32 {v(VX)}, {v(T3)}, 4, {v(VX)}")
    p.e(f"s_mul_i32 {s(S_B)}, {s(S_W)}, 10272")
    if first:
        p.wait_all(vm=False)
        stamp(p, 0)
    tx = p.tok()
    for i in range(lo, hi):
        p.e(f"s_add_u32 m0, {s(S_B)}, {XB + 896 * i}")
        p.add([dma(VX, R_Q, s(S_A), tx, f" offset:{128 * i}")])
    return tx


def w2_raw(p, tag):
    X, SU, SQ, VX, VW, T0, T1, T2, T3, VS, VO, FR, TA, TB, VR, B2 = X_REGS
    p.e(f"v_lshrrev_b32 {v(T0)}, 3, v0")
    p.e(f"v_lshl_add_u32 {v(VW)}, {s(S_J)}, 5, {v(T0)}")
    p.e(f"s_cmp_lt_u32 {s(S_J)}, 48")
    p.e(f"s_cbranch_scc1 L_w2reg{tag}")
    p.e(f"s_sub_u32 {s(S_A)}, {s(S_J)}, 48")
    p.e(f"s_lshl_b32 {s(S_A)}, {s(S_A)}, 1")
    p.e(f"s_and_b32 {s(S_B)}, {s(S_W)}, 1")
    p.e(f"s_add_u32 {s(S_A)}, {s(S_A)}, {s(S_B)}")
    p.e(f"s_mul_i32 {s(S_B)}, {s(S_A)}, 13108")
    p.e(f"s_lshr_b32 {s(S_B)}, {s(S_B)}, 16")
    p.e(f"s_lshl_b32 {s(S_B)}, {s(S_B)}, 2")
    p.e(f"s_mul_i32 {s(S_E)}, {s(S_A)}, 12")
    p.e(f"s_add_u32 {s(S_B)}, {s(S_B)}, {s(S_E)}")
    p.e(f"s_add_u32 {s(S_B)}, {s(S_B)}, 1536")
    p.e(f"s_lshr_b32 {s(S_E)}, {s(S_W)}, 1")
    p.e(f"v_lshrrev_b32 {v(T0)}, 3, v1")
    p.e(f"v_lshl_add_u32 {v(T0)}, {s(S_E)}, 3, {v(T0)}")
    p.e(f"v_add_u32 {v(VW)}, {s(S_B)}, {v(T0)}")
    p.e(f"v_lshrrev_b32 {v(T1)}, 2, {v(T0)}")
    p.e(f"v_mul_u32_u24 {v(T1)}, 60, {v(T1)}")
    p.e(f"v_add_u32 {v(T1)}, {v(T1)}, {v(T0)}")
    p.e(f"v_add_u32 {v(T1)}, 1596, {v(T1)}")
    p.e(f"s_cmp_eq_u32 {s(S_A)}, 15")
    p.e("s_cselect_b64 vcc, -1, 0")
    p.e(f"v_cndmask_b32 {v(VW)}, {v(VW)}, {v(T1)}, vcc")
    p.e(f"v_mov_b32 {v(T1)}, 4096")
    p.e(f"v_cmp_gt_u32 vcc, 12, {v(T0)}")
    p.e(f"v_cndmask_b32 {v(VW)}, {v(T1)}, {v(VW)}, vcc")
    p.label(f"L_w2reg{tag}")
    p.e(f"v_mul_u32_u24 {v(VW)}, 1280, {v(VW)}")
    p.e(f"v_and_b32 {v(T3)}, 7, v1")
    p.e(f"v_lshl_add_u32 {v(VW)}, {v(T3)}, 4, {v(VW)}")
    for i in range(10):
        p.e(f"s_add_u32 m0, {s(S_WL)}, {L_HA + 896 * i}")
        p.add([dma(VW, R_W2, 0, None, f" offset:{128 * i}")])
    p.e(f"v_lshlrev_b32 {v(T0)}, 4, v0")
    p.e(f"buffer_load_dwordx4 {v(B2, 4)}, {v(T0)}, {srd(R_B2)}, 0 offen")


def p0_stats(p):
    X, SU, SQ, VX, VW, T0, T1, T2, T3, VS, VO, FR, TA, TB, VR, B2 = X_REGS
    SJ = S_H
    prologue(p, (R_Q,))
    p.e(f"s_and_b32 {s(SJ)}, s2, 31")
    tx = x_loads(p, True)
    for b in (R_W2, R_B2):
        p.e(f"s_load_dwordx2 {s(b, 2)}, s[0:1], {KARG[b]}")
    descs(p, (R_W2, R_B2))
    p.e(f"s_mov_b32 {s(S_J)}, {s(SJ)}")
    common_addr(p, 1)
    p.e(f"s_mov_b32 {s(S_SG1)}, {CTRA}")
    p.label("L_xjob")
    tile_addr(p, TA, TB, 4, 10272, 2, XB)
    p.e(f"s_mul_i32 {s(S_B)}, {s(S_W)}, 10272")
    p.e(f"s_add_u32 {s(S_B)}, {s(S_B)}, {XB}")
    p.e(f"v_add_u32 {v(VR)}, {s(S_B)}, {v(G_VD)}")
    p.e(f"v_add_u32 {v(T0)}, {s(SJ)}, v1")
    p.e(f"v_and_b32 {v(T0)}, 3, {v(T0)}")
    p.e(f"v_lshrrev_b32 {v(T1)}, 4, v1")
    p.e(f"v_lshl_add_u32 {v(T0)}, {v(T0)}, 2, {v(T1)}")
    p.e(f"v_bfe_u32 {v(T1)}, v1, 2, 2")
    p.e(f"v_lshl_add_u32 {v(T0)}, {v(T1)}, 10, {v(T0)}")
    p.e(f"v_lshlrev_b32 {v(VO)}, 4, {v(T0)}")
    for k in range(4):
        p.e(f"v_mov_b32 {v(SU + k)}, 0")
    p.e(f"v_bfe_u32 {v(T0)}, v1, 2, 3")
    p.e(f"v_lshl_add_u32 {v(T0)}, {s(SJ)}, 3, {v(T0)}")
    p.e(f"v_lshlrev_b32 {v(T1)}, 7, {v(T0)}")
    p.e(f"v_lshlrev_b32 {v(T0)}, 8, {v(T0)}")
    p.e(f"v_add_u32 {v(T0)}, {CTR2 - CTR3}, {v(T0)}")
    p.e("v_cmp_gt_u32 vcc, 32, v0")
    p.e(f"v_cndmask_b32 {v(T0)}, {v(T0)}, {v(T1)}, vcc")
    p.e(f"v_and_b32 {v(T1)}, 3, v1")
    p.e(f"v_lshl_add_u32 {v(T0)}, {v(T1)}, 4, {v(T0)}")
    p.e(f"v_mov_b32 {v(T2)}, {OOB}")
    p.e(f"s_cmp_lt_u32 {s(SJ)}, 32")
    p.e(f"s_cselect_b32 {s(S_A)}, 64, 0")
    p.e(f"s_cselect_b32 {s(S_C)}, 0, {CTRB - CTRS}")
    p.e(f"v_cmp_gt_u32 vcc, {s(S_A)}, v0")
    p.e(f"v_cndmask_b32 {v(T0)}, {v(T2)}, {v(T0)}, vcc")
    p.e(f"s_mov_b32 {s(S_A)}, {CTR3}")
    p.e(f"buffer_store_dwordx4 {v(SU, 4)}, {v(T0)}, {srd(R_WS)}, {s(S_A)} offen sc1")
    p.e(f"v_lshrrev_b32 {v(T0)}, 3, v0")
    p.e(f"v_lshlrev_b32 {v(T0)}, 2, {v(T0)}")
    p.e(f"v_bfe_u32 {v(T1)}, v1, 2, 1")
    p.e(f"v_lshl_add_u32 {v(T0)}, {v(T1)}, 7, {v(T0)}")
    p.e(f"v_add_u32 {v(T0)}, {SB}, {v(T0)}")
    p.e(f"s_and_b32 {s(S_A)}, {s(S_IDX)}, 3")
    p.e(f"s_lshl_b32 {s(S_A)}, {s(S_A)}, 8")
    p.e(f"s_add_u32 {s(S_A)}, {s(S_A)}, {s(S_C)}")
    p.e(f"s_add_u32 {s(S_A)}, {s(S_A)}, {CTRS}")
    sig_rep8(p, S_A, S_U)
    p.e(f"v_mov_b32 {v(T2)}, {OOB}")
    p.e(f"v_lshlrev_b32 {v(VX)}, 2, v1")
    p.e(f"v_lshrrev_b32 {v(T3)}, 5, v1")
    p.e(f"v_and_b32 {v(VS)}, 127, {v(VX)}")
    p.e(f"v_lshl_add_u32 {v(VS)}, {v(T3)}, 10, {v(VS)}")
    p.e("v_cmp_gt_u32 vcc, 64, v0")
    p.e(f"v_cndmask_b32 {v(VS)}, {v(T2)}, {v(VS)}, vcc")
    p.e(f"v_add_u32 {v(VX)}, {SB}, {v(VX)}")
    p.e(f"s_mul_i32 {s(S_F)}, {s(S_W)}, {10 * 65536}")
    p.e(f"s_lshl_b32 {s(S_E)}, {s(SJ)}, 8")
    p.e(f"s_add_u32 {s(S_F)}, {s(S_F)}, {s(S_E)}")
    p.e(f"s_lshr_b32 {s(S_A)}, {s(SJ)}, 3")
    p.e(f"s_lshl_b32 {s(S_A)}, {s(S_A)}, 10")
    p.e(f"s_lshl_b32 {s(S_E)}, {s(SJ)}, 7")
    p.e(f"s_add_u32 {s(S_A)}, {s(S_A)}, {s(S_E)}")
    p.e(f"s_add_u32 {s(S_A)}, {s(S_A)}, {ST}")
    p.e(f"s_mov_b32 {s(S_E)}, 0x3f803f80")
    p.e(f"v_cmp_eq_u32 vcc, 0, {v(T1)}")
    if opt("bfast", 1):
        assert opt("vic", 1) & 1
        p.e(f"s_cmp_ge_u32 {s(S_IDX)}, 24")
        p.e("s_cbranch_scc1 L_xb ; soft")
        p.wait(tx)
        p.label("L_xb", soft=True)
        p.raw("    s_waitcnt vmcnt(11)")
    p.wait(tx)
    p.e("s_barrier")
    stamp(p, 1)
    tr_ = p.tok()
    rl = READY.load()
    p.add([rl[0], Ins(rl[1], tr_)])
    tile_reads(p, FR, TA, TB, 512)
    for i in range(10):
        p.e(f"ds_read_b128 {v(X + 4 * i, 4)}, {v(VR)} offset:{1024 * i}")
    for i in range(10):
        p.e(f"s_add_u32 {s(S_B)}, {s(S_F)}, {XT + 65536 * i}")
        p.e(f"buffer_store_dwordx4 {v(FR + 4 * i, 4)}, {v(VO)}, {srd(R_WS)}, {s(S_B)} offen sc1")
        if opt("bfast", 1) and i == opt("basig", 6):
            p.e(f"s_mov_b64 {s(R_SH, 2)}, vcc")
            p.add(READY.test())
            p.e(f"s_mov_b64 vcc, {s(R_SH, 2)}")
            p.e("s_barrier")
            p.e(f"s_cmp_lt_u32 {s(S_IDX)}, 24")
            p.e("s_cbranch_scc1 L_xnoa ; soft")
            p.e(atom(S_SG1))
            p.e(atom(S_SG1, 1024))
            p.label("L_xnoa", soft=True)
        if i >= 2:
            for k in range(5 * (i - 2), 5 * (i - 1)):
                p.e(f"v_dot2_f32_bf16 {v(SU + (k & 1))}, {v(X + k)}, {s(S_E)}, {v(SU + (k & 1))}")
                p.e(f"v_dot2_f32_bf16 {v(SQ + (k & 1))}, {v(X + k)}, {v(X + k)}, {v(SQ + (k & 1))}")
    p.e(f"v_add_f32 {v(SU)}, {v(SU)}, {v(SU + 1)}")
    p.e(f"v_add_f32 {v(SQ)}, {v(SQ)}, {v(SQ + 1)}")
    for ctl in ("quad_perm:[1,0,3,2]", "quad_perm:[2,3,0,1]", "row_half_mirror"):
        for x in (SU, SQ):
            p.e(f"v_add_f32_dpp {v(x)}, {v(x)}, {v(x)} {ctl} row_mask:0xf bank_mask:0xf")
    p.e(f"v_mul_f32 {v(SU)}, {f32(1 / 640)}, {v(SU)}")
    p.e(f"v_mul_f32 {v(SQ)}, {f32(1 / 640)}, {v(SQ)}")
    p.e(f"v_fma_f32 {v(SQ)}, -{v(SU)}, {v(SU)}, {v(SQ)}")
    p.e(f"v_max_f32 {v(SQ)}, 0, {v(SQ)}")
    p.e(f"v_add_f32 {v(SQ)}, {f32(1e-5)}, {v(SQ)}")
    p.e(f"v_rsq_f32 {v(SQ)}, {v(SQ)}")
    p.e(f"v_mul_f32_e64 {v(SU)}, -{v(SU)}, {v(SQ)}")
    p.e(f"v_cndmask_b32 {v(SU)}, {v(SU)}, {v(SQ)}, vcc")
    p.e(f"ds_write_b32 {v(T0)}, {v(SU)}")
    p.wait_all(vm=False)
    p.e("s_barrier")
    p.e(f"ds_read_b32 {v(SU)}, {v(VX)}")
    p.e(f"buffer_store_dword {v(SU)}, {v(VS)}, {srd(R_WS)}, {s(S_A)} offen sc1")
    stamp(p, 2)
    signal(p, ready=True, S_SG1=S_U)
    stamp(p, 3)
    p.label("L_w2job")
    p.e(f"s_cmp_ge_u32 {s(S_J)}, 56")
    p.e("s_cbranch_scc1 L_noconv")
    p.raw("    s_waitcnt lgkmcnt(0)")
    w2_raw(p, 0)
    p.label("L_w2conv")
    tile_addr(p, TA, TB, 5, 20480, 3, L_HA)
    p.e(f"s_mul_i32 {s(S_A)}, {s(S_J)}, 5462")
    p.e(f"s_lshr_b32 {s(S_A)}, {s(S_A)}, 16")
    p.e(f"s_mul_i32 {s(S_B)}, {s(S_A)}, 12")
    p.e(f"s_sub_u32 {s(S_B)}, {s(S_J)}, {s(S_B)}")
    p.e(f"s_bfe_u32 {s(S_E)}, {s(S_J)}, 0x20001")
    p.e(f"s_and_b32 {s(S_F)}, {s(S_J)}, 1")
    p.e(f"s_add_u32 {s(S_F)}, {s(S_F)}, 12")
    p.e(f"s_cmp_lt_u32 {s(S_J)}, 48")
    p.e(f"s_cselect_b32 {s(S_A)}, {s(S_A)}, {s(S_E)}")
    p.e(f"s_cselect_b32 {s(S_B)}, {s(S_B)}, {s(S_F)}")
    p.e(f"s_lshl_b32 {s(S_E)}, {s(S_A)}, 8")
    p.e(f"s_add_u32 {s(S_E)}, {s(S_E)}, {CTRW}")
    sig_rep8(p, S_E, S_PR)
    p.e(f"s_lshl_b32 {s(S_E)}, {s(S_W)}, 3")
    p.e(f"s_add_u32 {s(S_A)}, {s(S_A)}, {s(S_E)}")
    p.e(f"s_mul_i32 {s(S_A)}, {s(S_A)}, 14")
    p.e(f"s_add_u32 {s(S_A)}, {s(S_A)}, {s(S_B)}")
    p.e(f"s_mul_i32 {s(S_A)}, {s(S_A)}, 5120")
    p.wait_all(lgkm=False)
    VIC = opt("vic", 1)
    if VIC & 2:
        p.e(f"s_cmp_ge_u32 {s(S_IDX)}, 28")
        p.e("s_cbranch_scc1 L_w2nochk")
    helper_checks(p)
    p.label("L_w2nochk")
    stamp(p, 6)
    p.e(f"s_cmp_lg_u32 {s(S_J)}, 48")
    p.e("s_cbranch_scc1 L_nob2")
    p.e(f"v_lshrrev_b32 {v(T1)}, 3, v0")
    p.e(f"v_and_b32 {v(T2)}, 7, v0")
    p.e(f"v_lshlrev_b32 {v(T2)}, 4, {v(T2)}")
    p.e(f"v_lshl_add_u32 {v(T1)}, {v(T1)}, 10, {v(T2)}")
    p.e(f"v_add_u32 {v(T1)}, {L_HA}, {v(T1)}")
    p.e(f"v_mov_b32 {v(T2)}, {L_MISC + 4608 - 20992}")
    p.e("v_cmp_gt_u32 vcc, 80, v0")
    p.e(f"v_cndmask_b32 {v(T1)}, {v(T2)}, {v(T1)}, vcc")
    p.e(f"ds_write_b128 {v(T1)}, {v(B2, 4)} offset:{20480 + 512}")
    p.wait_all(vm=False)
    p.e("s_barrier")
    p.label("L_nob2")
    tile_reads(p, FR, TA, TB, 10240)
    for i in range(10):
        p.e(f"s_add_u32 {s(S_B)}, {s(S_A)}, {W2P + (i // 5) * 4 * 70 * 1024 + (i % 5) * 1024}")
        p.e(f"buffer_store_dwordx4 {v(FR + 4 * i, 4)}, {v(G_VD)}, {srd(R_WS)}, {s(S_B)} offen sc1")
    tk = p.tok()
    p.ins[-1].tok = tk
    stamp(p, 4)
    if VIC & 2:
        p.e(f"s_cmp_ge_u32 {s(S_IDX)}, 28")
        p.e("s_cbranch_scc1 L_w2sigc")
    p.save("w2s")
    p.add(flat(w1_loads(0, 8)))
    signal(p, tk, S_SG1=S_PR)
    stamp(p, 5)
    p.e("s_branch L_w1rest")
    if VIC & 2:
        p.label("L_w2sigc")
        p.restore("w2s")
        signal(p, tk, S_SG1=S_PR)
        p.e("s_branch L_noconv")


def p0_prep(p):
    T0, T1, T2, Z = 34, 35, 36, 40
    prologue(p, (R_WS, R_DBG, R_W1))
    p.e("s_cmp_lg_u32 s2, 255")
    p.e("s_cbranch_scc1 L_noinit")
    for k in range(4):
        p.e(f"v_mov_b32 {v(Z + k)}, 0")
    p.e(f"v_lshrrev_b32 {v(T0)}, 2, v0")
    p.e(f"v_and_b32 {v(T1)}, 3, v0")
    p.e(f"v_lshlrev_b32 {v(T1)}, 4, {v(T1)}")
    p.e(f"v_lshl_add_u32 {v(T0)}, {v(T0)}, 8, {v(T1)}")
    for i in range(3):
        p.e(f"s_mov_b32 {s(S_B)}, {CTR1 + 16384 * i}")
        p.e(f"buffer_store_dwordx4 {v(Z, 4)}, {v(T0)}, {srd(R_WS)}, {s(S_B)} offen sc1")
    p.e(f"v_mov_b32 {v(T1)}, 1")
    p.e(f"v_min_u32 {v(T2)}, 1, v0")
    p.e(f"v_lshlrev_b32 {v(T2)}, 30, {v(T2)}")
    p.wait_all()
    p.e("s_barrier")
    p.e(f"buffer_store_dword {v(T1)}, {v(T2)}, {srd(R_DBG)}, 0 offen sc1")
    p.label("L_noinit")
    p.e(f"s_sub_u32 {s(S_PC)}, s2, 192")
    p.e(f"s_lshl_b32 {s(S_PC)}, {s(S_PC)}, 1")
    p.e(f"s_cmp_lt_u32 {s(S_PC)}, 120")
    p.e(f"s_cselect_b32 {s(S_PC)}, {s(S_PC)}, 135")
    p.e(f"s_sub_u32 {s(S_PR)}, s2, 121")
    p.e(f"s_cmp_ge_u32 {s(S_PR)}, 120")
    p.e(f"s_cselect_b32 {s(S_PR)}, {s(S_PR)}, 135")
    p.raw("    s_waitcnt lgkmcnt(0)")
    p.reset()
    stamp(p, 0)
    toks = w1_raw(p)
    for b in (R_W2, R_B2):
        p.e(f"s_load_dwordx2 {s(b, 2)}, s[0:1], {KARG[b]}")
    descs(p, (R_Q, R_W2, R_B2))
    p.e(f"s_sub_u32 {s(S_H)}, s2, 160")
    p.e(f"s_sub_u32 {s(S_J)}, s2, 192")
    p.e(f"s_cmp_ge_u32 {s(S_IDX)}, 28")
    p.e(f"s_cselect_b32 {s(S_J)}, {s(S_J)}, 56")
    VIC = opt("vic", 1)
    NX = 10 if VIC & 1 else opt("nx1", 5)
    if NX:
        x_loads(p, False, 0, NX)
    common_addr(p, 2)
    p.e(f"s_and_b32 {s(S_A)}, {s(S_IDX)}, 3")
    p.e(f"s_lshl_b32 {s(S_A)}, {s(S_A)}, 8")
    p.e(f"s_add_u32 {s(S_A)}, {s(S_A)}, {CTRA}")
    sig_rep8(p, S_A)
    if VIC & 2:
        p.e(f"s_cmp_ge_u32 {s(S_J)}, 56")
        p.e("s_cbranch_scc1 L_now2raw")
        w2_raw(p, 1)
        p.label("L_now2raw")
    w1_setup(p)
    if VIC & 2:
        p.wait_all(lgkm=False)
    p.wait(toks[2])
    stamp(p, 8)
    p.add(READY.load())
    p.e(f"s_cmp_ge_u32 {s(S_PC)}, 135")
    p.e("s_cbranch_scc1 L_w1noreg")
    w1_reg(p, toks[:2])
    p.label("L_w1noreg")
    p.e(f"s_cmp_ge_u32 {s(S_PR)}, 135")
    p.e("s_cbranch_scc1 L_w1norem")
    w1_rem(p, toks[2])
    p.label("L_w1norem")
    p.raw("    s_waitcnt lgkmcnt(0)")
    p.e("s_barrier")
    ta = p.tok()
    w1_sums(p, ta)
    stamp(p, 9)
    if 0 < NX < 10:
        x_loads(p, False, NX, 10)
    if opt("bfast", 1):
        p.e(f"s_cmp_lt_u32 {s(S_IDX)}, 28")
        p.e("s_cbranch_scc1 L_xjob")
    signal(p, ta, ready=True)
    stamp(p, 10)
    if VIC & 2:
        p.e(f"s_cmp_lt_u32 {s(S_J)}, 56")
        p.e("s_cbranch_scc1 L_w2conv")
    p.e(f"s_cmp_ge_u32 {s(S_IDX)}, 28")
    p.e("s_cbranch_scc1 L_w2job")
    if not NX:
        x_loads(p, False)
    p.e("s_branch L_xjob")


def gemm_addr(p, w3):
    t0, t1, t2 = 28, 29, 30
    X, Y = S_E, S_F
    if w3:
        p.e(f"s_mul_i32 {s(S_W1B)}, {s(S_M)}, {20 * 1024}")
        p.e(f"s_add_u32 {s(S_W1B)}, {s(S_W1B)}, {W1R - 20 * 1024}")
        p.e(f"v_mov_b32 {v(V_W1)}, {OOB}")
    else:
        p.e(f"s_mul_i32 {s(S_W1B)}, {s(S_M)}, 3")
        p.e(f"s_add_u32 {s(S_W1B)}, {s(S_W1B)}, {s(S_W)}")
        p.e(f"s_mul_i32 {s(S_W1B)}, {s(S_W1B)}, {40 * 1024}")
        p.e(f"s_add_u32 {s(S_W1B)}, {s(S_W1B)}, {W1P}")
        p.e(f"v_mov_b32 {v(V_W1)}, {v(G_VD)}")
    p.e(f"v_and_b32 {v(t2)}, 3, v1")
    p.e(f"v_lshlrev_b32 {v(t2)}, 3, {v(t2)}")
    p.e(f"v_bfe_u32 {v(t1)}, v1, 4, 1")
    p.e(f"s_mul_i32 {s(S_HIL)}, {s(S_G)}, {4 * 114688}")
    p.e(f"s_add_u32 {s(S_HIL)}, {s(S_HIL)}, {HID}")
    p.e(f"s_lshr_b32 {s(X)}, {s(S_M)}, 2")
    p.e(f"s_lshl_b32 {s(S_C3P)}, {s(S_G)}, 11")
    p.e(f"s_add_u32 {s(S_C3P)}, {s(S_C3P)}, {CTR3}")
    p.e(f"s_lshl_b32 {s(Y)}, {s(X)}, 7")
    p.e(f"s_add_u32 {s(S_C3A)}, {s(S_C3P)}, {s(Y)}")
    p.e(f"s_lshl_b32 {s(Y)}, {s(S_W)}, 7")
    p.e(f"s_add_u32 {s(S_C3P)}, {s(S_C3P)}, {s(Y)}")
    p.e(f"s_mul_i32 {s(X)}, {s(X)}, 14336")
    p.e(f"s_add_u32 {s(S_HIS)}, {s(S_HIL)}, {s(X)}")
    p.e(f"s_and_b32 {s(X)}, {s(S_M)}, 3")
    if not w3:
        p.e(f"s_mul_i32 {s(X)}, {s(X)}, 3")
        p.e(f"s_add_u32 {s(X)}, {s(X)}, {s(S_W)}")
        p.e(f"s_lshl_b32 {s(X)}, {s(X)}, 10")
        p.e(f"s_add_u32 {s(S_HIS)}, {s(S_HIS)}, {s(X)}")
        p.e(f"v_lshrrev_b32 {v(t0)}, 5, v1")
        p.e(f"v_bfe_u32 {v(G_VA)}, v1, 2, 2")
        p.e(f"v_lshl_add_u32 {v(G_VA)}, {v(t0)}, 3, {v(G_VA)}")
        p.e(f"v_lshl_add_u32 {v(G_VA)}, {v(G_VA)}, 6, {v(t2)}")
        p.e(f"v_lshl_add_u32 {v(G_VA)}, {v(t1)}, 5, {v(G_VA)}")
        p.e(f"v_xor_b32 {v(G_VB)}, 0x120, {v(G_VA)}")
        p.e(f"v_mul_u32_u24 {v(G_VSH)}, 57344, {v(t1)}")
        p.e(f"v_lshl_add_u32 {v(G_VSH)}, {v(t0)}, 8, {v(G_VSH)}")
        p.e(f"v_and_b32 {v(t0)}, 15, v1")
        p.e(f"v_lshl_add_u32 {v(G_VSH)}, {v(t0)}, 4, {v(G_VSH)}")
        p.e(f"v_and_b32 {v(G_VST)}, 31, v1")
        p.e(f"v_lshlrev_b32 {v(G_VST)}, 5, {v(G_VST)}")
        p.e(f"v_add_u32 {v(G_VST)}, {L_MISC}, {v(G_VST)}")
        p.e(f"s_mul_i32 {s(X)}, {s(S_DS)}, 5")
        p.e(f"s_add_u32 {s(X)}, {s(X)}, {s(S_W)}")
        p.e(f"s_lshl_b32 {s(X)}, {s(X)}, 10")
        p.e(f"v_lshrrev_b32 {v(G_VRR)}, 2, v1")
        p.e(f"v_lshl_add_u32 {v(G_VRR)}, {v(G_VRR)}, 6, {v(t2)}")
        p.e(f"v_xor_b32 {v(t1)}, {s(S_T)}, {v(t1)}")
        p.e(f"v_lshl_add_u32 {v(G_VRR)}, {v(t1)}, 5, {v(G_VRR)}")
        p.e(f"v_add_u32 {v(G_VRR)}, {s(X)}, {v(G_VRR)}")
        p.e(f"v_mul_u32_u24 {v(G_VRW)}, 160, {v(t0)}")
        p.e(f"v_lshrrev_b32 {v(t1)}, 4, v1")
        p.e(f"v_lshl_add_u32 {v(G_VRW)}, {v(t1)}, 3, {v(G_VRW)}")
        p.e(f"s_lshl_b32 {s(X)}, {s(S_W)}, 5")
        p.e(f"s_add_u32 {s(X)}, {s(X)}, {L_RES}")
        p.e(f"v_add_u32 {v(G_VRW)}, {s(X)}, {v(G_VRW)}")
        regs = (G_VA, G_VB, G_VRR)
    else:
        p.e(f"s_lshl_b32 {s(X)}, {s(X)}, 9")
        p.e(f"s_add_u32 {s(X)}, {s(X)}, 12288")
        p.e(f"s_add_u32 {s(S_HIS)}, {s(S_HIS)}, {s(X)}")
        p.e(f"v_lshrrev_b32 {v(G_VA)}, 2, v1")
        p.e(f"v_lshl_add_u32 {v(G_VA)}, {v(G_VA)}, 6, {v(t2)}")
        p.e(f"v_lshl_add_u32 {v(G_VA)}, {v(t1)}, 5, {v(G_VA)}")
        p.e(f"v_xor_b32 {v(G_VB)}, 32, {v(G_VA)}")
        p.e(f"v_mov_b32 {v(G_VSH)}, 0x3f80")
        p.e(f"v_and_b32 {v(t0)}, 15, v1")
        p.e(f"v_lshlrev_b32 {v(G_VST)}, 5, {v(t0)}")
        p.e(f"v_add_u32 {v(G_VST)}, {L_MISC}, {v(G_VST)}")
        p.e(f"v_lshl_add_u32 {v(G_X1)}, {v(t1)}, 9, {v(G_VST)}")
        p.e(f"v_mov_b32 {v(t2)}, {L_MISC + 2048}")
        p.e(f"v_cmp_le_u32 {s(S_MK + 6, 2)}, 48, v1")
        p.e(f"v_cndmask_b32 {v(G_VRR)}, {v(t2)}, {v(G_VST)}, {s(S_MK + 6, 2)}")
        p.e(f"v_lshrrev_b32 {v(t1)}, 4, v1")
        p.e(f"v_lshrrev_b32 {v(t0)}, 2, {v(t0)}")
        p.e(f"v_cmp_eq_u32 vcc, {v(t0)}, {v(t1)}")
        p.e(f"v_cndmask_b32 {v(G_VRW)}, {v(t2)}, {v(G_VST)}, vcc")
        p.e(f"v_and_b32 {v(t0)}, 3, v1")
        for k in range(1, 4):
            p.e(f"v_cmp_eq_u32 {s(S_MK + 2 * (k - 1), 2)}, {k}, {v(t0)}")
        regs = (G_VA, G_VB)
    for x in regs:
        p.e(f"v_add_u32 {v(x)}, {L_HBUF[0]}, {v(x)}")


def gemm_addr_common(p):
    t0, t1, t2 = 28, 29, 30
    X, Y = S_E, S_F
    p.e(f"s_mul_i32 {s(S_WL)}, {s(S_W)}, 10240")
    p.e(f"s_lshl_b32 {s(S_W2B)}, {s(S_DS)}, 2")
    p.e(f"s_add_u32 {s(S_W2B)}, {s(S_W2B)}, {s(S_W)}")
    p.e(f"s_mul_i32 {s(S_W2B)}, {s(S_W2B)}, {70 * 1024}")
    p.e(f"s_add_u32 {s(S_W2B)}, {s(S_W2B)}, {W2P}")
    p.e(f"s_lshl_b32 {s(S_CKA)}, {s(S_XCD)}, 10")
    p.e(f"v_and_b32 {v(V_PA)}, 3, v1")
    p.e(f"v_lshlrev_b32 {v(V_PA)}, 8, {v(V_PA)}")
    p.e(f"s_lshl_b32 {s(S_CKW)}, {s(S_XCD)}, 2")
    p.e(f"s_add_u32 {s(S_CKW)}, {s(S_CKW)}, {s(S_W)}")
    p.e(f"s_lshl_b32 {s(S_CKW)}, {s(S_CKW)}, 8")
    p.e(f"s_lshl_b32 {s(X)}, {s(S_XCD)}, 11")
    p.e(f"v_and_b32 {v(V_POL)}, 7, v1")
    p.e(f"v_lshl_add_u32 {v(V_POL)}, {v(V_POL)}, 8, {s(X)}")
    p.e(f"s_mov_b32 {s(S_ONE)}, 1")
    p.e(f"s_mov_b32 {s(S_SG2)}, {CTR2}")
    p.e(f"s_lshl_b32 {s(S_PL2)}, {s(S_CKW)}, 1")
    p.e(f"s_add_u32 {s(S_PL2)}, {s(S_PL2)}, {CTR2}")
    p.e(f"s_add_u32 {s(S_CV)}, {s(S_CKW)}, {CTR}")
    p.e(f"s_lshl_b32 {s(S_FL)}, {s(S_XCD)}, 8")
    p.e(f"s_add_u32 {s(S_FL)}, {s(S_FL)}, {CTR}")
    p.e(f"s_lshl_b32 {s(X)}, {s(S_T)}, 2")
    p.e(f"s_add_u32 {s(X)}, {s(X)}, {s(S_W)}")
    p.e(f"s_mul_i32 {s(X)}, {s(X)}, 14336")
    p.e(f"s_add_u32 {s(S_HIL)}, {s(S_HIL)}, {s(X)}")
    p.e(f"s_mul_i32 {s(S_HLD)}, {s(S_G)}, 163840")
    p.e(f"s_add_u32 {s(S_HLD)}, {s(S_HLD)}, {s(S_WL)}")
    p.e(f"s_add_u32 {s(S_HLD)}, {s(S_HLD)}, {HB}")
    p.e(f"s_mul_i32 {s(S_WL3)}, {s(S_W)}, 13312")
    p.e(f"s_mul_i32 {s(S_HL3)}, {s(S_W)}, 3072")
    p.e(f"s_add_u32 {s(S_HL3)}, {s(S_HL3)}, {s(S_HLD)}")
    p.e(f"v_and_b32 {v(t0)}, 15, v1")
    p.e(f"v_mul_u32_u24 {v(H_VW)}, 336, {v(t0)}")
    p.e(f"v_lshrrev_b32 {v(t0)}, 4, v1")
    p.e(f"v_lshl_add_u32 {v(H_VW)}, {v(t0)}, 4, {v(H_VW)}")
    p.e(f"s_mul_i32 {s(X)}, {s(S_W)}, 5376")
    p.e(f"v_add_u32 {v(H_VW)}, {s(X)}, {v(H_VW)}")
    p.e(f"v_min_u32 {v(t2)}, 159, v0")
    p.e(f"v_mul_u32_u24 {v(t0)}, 6554, {v(t2)}")
    p.e(f"v_lshrrev_b32 {v(t0)}, 16, {v(t0)}")
    p.e(f"v_mul_u32_u24 {v(t1)}, 10, {v(t0)}")
    p.e(f"v_sub_u32 {v(t1)}, {v(t2)}, {v(t1)}")
    p.e(f"v_mul_u32_u24 {v(H_VR)}, 336, {v(t0)}")
    p.e(f"v_lshl_add_u32 {v(H_VR)}, {v(t1)}, 5, {v(H_VR)}")
    p.e(f"v_lshlrev_b32 {v(H_VRES)}, 4, {v(t2)}")
    p.e(f"v_add_u32 {v(H_VRES)}, {L_RES}, {v(H_VRES)}")
    p.e(f"v_bfe_u32 {v(t2)}, {v(t0)}, 2, 1")
    p.e(f"v_lshlrev_b32 {v(H_VO)}, 8, {v(t2)}")
    p.e(f"v_lshrrev_b32 {v(t2)}, 3, {v(t0)}")
    p.e(f"v_lshl_add_u32 {v(H_VO)}, {v(t2)}, 4, {v(H_VO)}")
    p.e(f"v_and_b32 {v(t2)}, 3, {v(t0)}")
    p.e(f"v_add_u32 {v(H_VO)}, {v(t2)}, {v(H_VO)}")
    p.e(f"v_mul_u32_u24 {v(H_VO)}, 1280, {v(H_VO)}")
    p.e(f"v_lshl_add_u32 {v(H_VO)}, {v(t1)}, 4, {v(H_VO)}")
    p.e(f"v_mov_b32 {v(t2)}, {OOB}")
    p.e(f"v_cmp_gt_u32 vcc, 160, v0")
    p.e(f"v_cndmask_b32 {v(H_VO)}, {v(t2)}, {v(H_VO)}, vcc")
    p.e(f"s_and_b32 {s(Y)}, {s(S_G)}, 3")
    p.e(f"s_lshl_b32 {s(Y)}, {s(Y)}, 1")
    p.e(f"s_add_u32 {s(Y)}, {s(Y)}, {s(S_T)}")
    p.e(f"s_lshl_b32 {s(Y)}, {s(Y)}, 5")
    p.e(f"s_and_b32 {s(S_OSO)}, {s(S_G)}, 12")
    p.e(f"s_add_u32 {s(S_OSO)}, {s(S_OSO)}, {s(Y)}")
    p.e(f"s_mul_i32 {s(S_OSO)}, {s(S_OSO)}, 1280")
    p.e(f"s_mul_i32 {s(X)}, {s(S_DS)}, 160")
    p.e(f"s_add_u32 {s(S_OSO)}, {s(S_OSO)}, {s(X)}")


VK2 = lambda c: Check(R_WS, V_POL, None, CTR2 + 16384 * (1 if 'a' in OPTS.get('dbg', '') or 'h' in OPTS.get('dbg', '') else c), 20)
CK2 = lambda c: SCheck(S_PL2, [16384 * c, 16384 * c + 256], R_WS, V_POL, None, CTR2 + 16384 * c, 0 if (c == 0 and 'a' in OPTS.get('dbg', '')) else 20)
CK3 = lambda c: SCheck(S_C3P, [512 * c], R_WS, None, S_C3P, 512 * c, 16)
VK3 = lambda c: Check(R_WS, None, S_C3P, 512 * c, 16)
VKW = lambda: Check(R_WS, None, S_CKW, CTRW, 0 if 'now2' in OPTS else 14)
CKW = lambda: SCheck(S_CV, [CTRW - CTR], R_WS, None, S_CKW, CTRW, 0 if 'now2' in OPTS else 14)
VKA = lambda: Check(R_WS, V_PA, S_CKA, CTRA, 0 if 'now1' in OPTS else 16)
CKA = lambda: SCheck(S_CV, [CTRA - CTR], R_WS, None, S_CKW, CTRA, 0 if 'now1' in OPTS else 16)


def signal2(c, tok, ck=None, guard=False):
    out = [wait(tok)] + (ck.test() if ck else []) + [Ins("s_barrier")]
    if "nosig" in OPTS:
        return [out]
    at = [Ins(atom(S_SG2, 16384 * c)), Ins(atom(S_SG2, 16384 * c + 2048))]
    if guard:
        Check.n += 1
        at = [Ins(f"s_cmp_lg_u32 {s(S_ROLE)}, 0"), Ins(f"s_cbranch_scc1 L_nosig{Check.n} ; soft")] + at + \
             [Ins(f"L_nosig{Check.n}:", pseudo="raw")]
    return [out + at]


def signal3w(c):
    Check.n += 1
    return [Ins(f"s_cmp_lg_u32 {s(S_W)}, 0"), Ins(f"s_cbranch_scc1 L_nosig{Check.n} ; soft"),
            Ins(f"s_atomic_add {s(S_U)}, {s(R_WS, 2)}, {s(S_C3A)} offset:{512 * c}"), Ins(f"L_nosig{Check.n}:", pseudo="raw")]


def signal3(c, tok):
    if "nosig" in OPTS:
        return []
    if str(c) in OPTS.get("vsig3", ""):
        return [[wait(tok), Ins(f"buffer_atomic_add {v(G_ONE)}, {v(V_W1)}, {srd(R_WS)}, {s(S_C3A)} offen offset:{512 * c} sc1")]]
    return [[wait(tok), Ins(atom(S_C3A, 512 * c))]]


def w2_loads(lo, hi, gap=0, each=False):
    out = []
    if "now2" in OPTS:
        return out
    for i in range(lo, hi):
        x = []
        if i == lo or i % 4 == 0 or each:
            x.append(f"s_add_u32 {s(S_F)}, {s(S_W2B)}, {(i & ~3) * 1024}")
        x.append(f"buffer_load_dwordx4 {r(W2LOC[i], 4)}, {v(G_VD)}, {srd(R_WS)}, {s(S_F)} offen offset:{(i & 3) * 1024} sc1")
        out.append(x)
        if gap:
            out.append(Delay(gap))
    return out


def w1_loads(lo, hi, gap=0):
    out = []
    if "now1" in OPTS:
        return out
    for i in range(lo, hi):
        x = []
        if i % 4 == 0 or i == lo:
            x.append(f"s_add_u32 {s(S_F)}, {s(S_W1B)}, {(i & ~3) * 1024}")
        x.append(f"buffer_load_dwordx4 {a(4 * i, 4)}, {v(G_VD if i >= 20 else V_W1)}, {srd(R_WS)}, {s(S_F)} offen offset:{(i & 3) * 1024} sc1")
        out.append(x)
        if gap:
            out.append(Delay(gap))
    return out


def h_dma(c, tok, gap=0, three=False):
    out = []
    for i in range(14 if three else 10):
        x = []
        if i % 4 == 0:
            x.append(f"s_add_u32 m0, {s(S_WL3 if three else S_WL)}, {L_HBUF[c] + 1024 * i}")
            x.append(f"s_add_u32 {s(S_B)}, {s(S_HL3 if three else S_HLD)}, {40960 * c + 1024 * i}")
        x.append(dma(G_VD, R_WS, s(S_B), tok, f" offset:{1024 * (i % 4)} sc1"))
        out.append(x)
        if gap:
            out.append(Delay(gap))
    return out


def hid_loads(c, gap=0, toks=None):
    b = HIDBUF[c & 1]
    out = []
    for st in range(14):
        x = []
        if st % 4 == 0:
            x.append(f"s_add_u32 {s(S_B)}, {s(S_HIL)}, {114688 * c + 1024 * st}")
        tk = toks[st] if toks else None
        if st < 12:
            x.append(Ins(f"buffer_load_dwordx4 {r(b[st], 4)}, {v(G_VD)}, {srd(R_WS)}, {s(S_B)} offen offset:{1024 * (st & 3)} sc1", tk))
        else:
            for h in range(2):
                x.append(Ins(f"buffer_load_dwordx2 {r(b[st] + 2 * h, 2)}, {v(G_X0)}, {srd(R_WS)}, {s(S_B)} offen offset:{512 * (2 * (st - 12) + h)} sc1", tk))
        out.append(x)
        if gap:
            out.append(Delay(gap))
    return out


class Pacer:
    def __init__(self, fixed, pre, pace, u=1):
        self.fixed, self.pre, self.pace, self.u, self.t, self.rest = fixed, pre, pace, u, 0.0, []
        self.end = 1 << 30

    def put(self, items, at=0, pace=None, w=1.0):
        for x in items:
            self.t = max(self.t, at)
            g = int(self.t * self.u) | (self.u - 1 if opt('w3pair', 1) else 0)
            if g >= self.end:
                self.rest += x
            else:
                self.fixed.setdefault(g, []).extend(x)
            self.t += (self.pace if pace is None else pace) * w
        return self

    def test(self, ck, at=0, extra=()):
        self.t = max(self.t, at)
        g = int(self.t * self.u)
        assert g < self.end
        self.pre.setdefault(g, []).extend(ck.test() + flat(list(extra)))
        return self


C_VT, C_VP, C_VX, C_VS, C_VH = 21, 22, 23, 24, 25
C_AD, C_ACC, C_FR, C_TMP = 28, 32, 64, 160


def conv_build_t(p, mid):
    raw, tmp = SSM_RAW, 32
    va = tmp
    p.e(f"s_mul_i32 {s(S_A)}, {s(S_W)}, 16640")
    p.e(f"v_add_u32 {v(va)}, {s(S_A)}, {v(G_VD)}")
    z = tmp + 2
    for k in range(4):
        p.e(f"v_mov_b32 {v(z + k)}, 0")
    p.e(f"v_bfe_u32 {v(tmp + 1)}, v1, 1, 2")
    p.e(f"v_mul_u32_u24 {v(tmp + 1)}, 4160, {v(tmp + 1)}")
    p.e(f"v_and_b32 {v(tmp + 6)}, 1, v1")
    p.e(f"v_lshl_add_u32 {v(tmp + 1)}, {v(tmp + 6)}, 4, {v(tmp + 1)}")
    p.e(f"v_add_u32 {v(tmp + 1)}, {s(S_A)}, {v(tmp + 1)}")
    p.e(f"ds_write_b128 {v(tmp + 1)}, {v(z, 4)} offset:{L_T}")
    for q in range(4):
        d = raw + 4 * q
        b = tmp + 8 + 14 * (q & 1)
        Q1, Q2, Q3, DM2 = b, b + 4, b + 8, b + 12
        p.e(f"ds_write_b128 {v(va)}, {v(d, 4)} offset:{L_T + 32 + 1024 * q}")
        if q == 0:
            p.e(f"v_mov_b32 {v(Q2)}, 0")
            p.e(f"v_mov_b32 {v(DM2)}, 0")
        else:
            p.e(f"v_mov_b32_dpp {v(Q2)}, {v(d - 1)} wave_ror:1 row_mask:0xf bank_mask:0xf")
            p.e(f"v_mov_b32_dpp {v(DM2)}, {v(d - 2)} wave_ror:1 row_mask:0xf bank_mask:0xf")
        for k in range(3):
            p.e(f"v_mov_b32 {v(Q2 + 1 + k)}, {v(d + k)}")
        p.e(f"v_mov_b32_dpp {v(Q2)}, {v(d + 3)} wave_shr:1 row_mask:0xf bank_mask:0xf")
        p.e(f"v_mov_b32_dpp {v(DM2)}, {v(d + 2)} wave_shr:1 row_mask:0xf bank_mask:0xf")
        for k in range(1, 4):
            p.e(f"v_alignbit_b32 {v(Q1 + k)}, {v(d + k)}, {v(d + k - 1)}, 16")
        p.e(f"v_alignbit_b32 {v(Q1)}, {v(d)}, {v(Q2)}, 16")
        p.e(f"v_alignbit_b32 {v(Q3)}, {v(Q2)}, {v(DM2)}, 16")
        for k in range(3):
            p.e(f"v_mov_b32 {v(Q3 + 1 + k)}, {v(Q1 + k)}")
        p.e(f"ds_write_b128 {v(va)}, {v(Q2, 4)} offset:{L_T + 2 * 4160 + 32 + 1024 * q}")
        p.e(f"ds_write_b128 {v(va)}, {v(Q1, 4)} offset:{L_T + 4160 + 32 + 1024 * q}")
        p.e(f"ds_write_b128 {v(va)}, {v(Q3, 4)} offset:{L_T + 3 * 4160 + 32 + 1024 * q}")
        if q == opt("tmid", 0):
            mid()


def conv_addr(p):
    t0, t1, t2 = 28, 29, 30
    p.e(f"v_and_b32 {v(t0)}, 15, v1")
    p.e(f"v_lshrrev_b32 {v(t1)}, 4, v1")
    p.e(f"v_sub_u32 {v(t2)}, 15, {v(t0)}")
    p.e(f"v_and_b32 {v(C_VT)}, 3, {v(t2)}")
    p.e(f"v_mul_u32_u24 {v(C_VT)}, 4160, {v(C_VT)}")
    p.e(f"v_lshl_add_u32 {v(C_VT)}, {v(t1)}, 4, {v(C_VT)}")
    p.e(f"v_lshrrev_b32 {v(t2)}, 2, {v(t2)}")
    p.e(f"v_lshlrev_b32 {v(t2)}, 3, {v(t2)}")
    p.e(f"v_sub_u32 {v(C_VT)}, {v(C_VT)}, {v(t2)}")
    p.e(f"s_mul_i32 {s(S_A)}, {s(S_W)}, 16640")
    p.e(f"s_add_u32 {s(S_A)}, {s(S_A)}, {L_T + 32}")
    p.e(f"v_add_u32 {v(C_VT)}, {s(S_A)}, {v(C_VT)}")
    p.e(f"s_mul_i32 {s(S_C)}, {s(S_W)}, 4608")
    p.e(f"s_add_u32 {s(S_A)}, {s(S_C)}, {L_U + 480}")
    p.e(f"v_lshl_add_u32 {v(C_VP)}, {v(t1)}, 4, {s(S_A)}")
    p.e(f"v_lshlrev_b32 {v(t2)}, 5, {v(t0)}")
    p.e(f"v_sub_u32 {v(C_VP)}, {v(C_VP)}, {v(t2)}")
    p.e(f"v_lshrrev_b32 {v(t2)}, 3, v1")
    p.e(f"v_add_u32 {v(C_VX)}, {s(S_W)}, {v(t2)}")
    p.e(f"v_and_b32 {v(C_VX)}, 3, {v(C_VX)}")
    p.e(f"v_lshl_add_u32 {v(C_VX)}, {v(t2)}, 2, {v(C_VX)}")
    p.e(f"v_and_b32 {v(t2)}, 7, v1")
    p.e(f"v_lshl_add_u32 {v(C_VX)}, {v(C_VX)}, 3, {v(t2)}")
    p.e(f"v_lshlrev_b32 {v(C_VX)}, 3, {v(C_VX)}")
    p.e(f"v_add_u32 {v(C_VX)}, {L_X}, {v(C_VX)}")
    p.e(f"v_add_u32 {v(C_VS)}, {L_ST}, {v(G_VD)}")
    p.e(f"s_and_b32 {s(S_A)}, {s(S_CW)}, 1")
    p.e(f"s_lshl_b32 {s(S_A)}, {s(S_A)}, 1")
    p.e(f"v_and_b32 {v(t2)}, 3, v1")
    p.e(f"v_xor_b32 {v(t2)}, {s(S_A)}, {v(t2)}")
    p.e(f"v_lshrrev_b32 {v(C_VH)}, 2, v1")
    p.e(f"v_mul_u32_u24 {v(C_VH)}, 163840, {v(C_VH)}")
    p.e(f"v_lshl_add_u32 {v(C_VH)}, {v(t2)}, 4, {v(C_VH)}")
    p.e(f"s_lshl_b32 {s(S_H)}, {s(S_CW)}, 2")
    p.e(f"s_add_u32 {s(S_H)}, {s(S_H)}, {s(S_W)}")
    p.e(f"s_lshl_b32 {s(S_HST)}, {s(S_H)}, 6")
    p.e(f"s_add_u32 {s(S_HST)}, {s(S_HST)}, {HB}")
    p.e(f"s_and_b32 {s(S_A)}, {s(S_CW)}, 7")
    p.e(f"s_lshl_b32 {s(S_SG2)}, {s(S_W)}, 4")
    p.e(f"s_add_u32 {s(S_SG2)}, {s(S_SG2)}, {s(S_A)}")
    p.e(f"s_lshl_b32 {s(S_SG2)}, {s(S_SG2)}, 8")
    p.e(f"s_add_u32 {s(S_SG2)}, {s(S_SG2)}, {CTR2}")


def conv_addr2(p):
    t0, t1, t2 = C_TMP, C_TMP + 1, C_TMP + 2
    p.e(f"v_and_b32 {v(t0)}, 15, v1")
    p.e(f"v_lshrrev_b32 {v(t1)}, 4, v1")
    p.e(f"v_lshl_add_u32 {v(t0)}, {v(t1)}, 3, {v(t0)}")
    p.e(f"v_sub_u32 {v(t0)}, 15, {v(t0)}")
    p.e(f"v_and_b32 {v(t1)}, 1, {v(t0)}")
    p.e(f"v_lshlrev_b32 {v(t1)}, 4, {v(t1)}")
    p.e(f"v_lshlrev_b32 {v(t2)}, {v(t1)}, {v(SSM_RAW + 16)}")
    p.e(f"v_ashrrev_i32 {v(t0)}, 1, {v(t0)}")
    for k in range(4):
        p.e(f"v_cmp_eq_u32 vcc, {k}, {v(t0)}")
        p.e(f"v_cndmask_b32 {v(C_AD + k)}, 0, {v(t2)}, vcc")
    p.e(f"s_mul_i32 {s(S_C)}, {s(S_W)}, 4608")
    p.e(f"s_lshl_b32 {s(S_E)}, {s(S_W)}, 12")
    p.e(f"s_lshl_b32 {s(S_H)}, {s(S_CW)}, 14")
    p.e(f"s_add_u32 {s(S_H)}, {s(S_H)}, {s(S_E)}")
    for k in range(2):
        p.e(f"v_mov_b32 {v(C_TMP + 4 + k)}, 0")
    p.e(f"s_add_u32 {s(S_A)}, {s(S_C)}, {L_U + 4096}")
    p.e(f"v_add_u32 {v(t0)}, {s(S_A)}, {v(G_X0)}")
    p.e(f"ds_write_b64 {v(t0)}, {v(C_TMP + 4, 2)}")


def conv_load_u(p, h):
    tu = p.tok()
    p.e(f"s_add_u32 m0, {s(S_C)}, {L_U}")
    for q in ((3, 2), (1, 0))[h]:
        p.add([dma(G_VD, R_WS, s(S_H), tu, f" offset:{1024 * q} sc1")])
    return tu


def conv_load_x(p, h, S_F=S_F):
    tx = p.tok()
    p.e(f"s_lshr_b32 {s(S_F)}, {s(S_E)}, 1")
    p.e(f"s_add_u32 m0, {s(S_F)}, {L_ST + 8192 * h}")
    p.e(f"s_add_u32 {s(S_B)}, {s(S_F)}, {ST + 8192 * h}")
    for q in range(2):
        p.add([dma(G_VD, R_WS, s(S_B), tx, f" offset:{1024 * q} sc1")])
    p.e(f"s_add_u32 m0, {s(S_F)}, {L_X + 8192 * h}")
    p.e(f"s_sub_u32 {s(S_B)}, {s(S_H)}, {s(S_F)}")
    p.e(f"s_add_u32 {s(S_B)}, {s(S_B)}, {XT + 8192 * h}")
    for q in range(2):
        p.add([dma(G_VD, R_WS, s(S_B), tx, f" offset:{1024 * q} sc1")])
    return tx


def conv_epi(c, tok):
    pre, post = [], []
    tmp = 128 if c & 1 else C_TMP
    XR, RR, Q, XF, O = tmp, tmp + 4, tmp + 8, tmp + 16, tmp + 24
    for jj in range(2):
        j = 2 * c + jj
        pre.append(f"ds_read_b64 {v(XR, 2)}, {v(C_VX)} offset:{2048 * j}")
        pre.append(f"ds_read_b128 {v(RR, 4)}, {v(C_VS)} offset:{2048 * j}")
        pre.append(f"ds_read_b128 {v(Q + 4 * jj, 4)}, {v(C_VS)} offset:{2048 * j + 1024}")
        pre.append(Delay(7))
        for k in range(4):
            pre.append(f"v_and_b32 {v(XF + 4 * jj + k)}, {s(S_HI)}, {v(XR + (k >> 1))}" if k & 1 else
                       f"v_lshlrev_b32 {v(XF + 4 * jj + k)}, 16, {v(XR + (k >> 1))}")
        for k in range(4):
            pre.append(f"v_fmac_f32 {v(Q + 4 * jj + k)}, {v(XF + 4 * jj + k)}, {v(RR + k)}")
        for k in range(4):
            post.append(f"v_fmac_f32 {v(XF + 4 * jj + k)}, {v(Q + 4 * jj + k)}, {v(C_ACC + 4 * j + k)}")
        for k in range(2):
            post.append(f"v_cvt_pk_bf16_f32 {v(O + 2 * jj + k)}, {v(XF + 4 * jj + 2 * k)}, {v(XF + 4 * jj + 2 * k + 1)}")
    post.append([f"s_add_u32 {s(S_A)}, {s(S_HST)}, {40960 * c}",
                 Ins(f"buffer_store_dwordx4 {v(O, 4)}, {v(C_VH)}, {srd(R_WS)}, {s(S_A)} offen sc1", tok)])
    return pre, post


def conv_stages():
    allp = [(m, j) for m in range(8) for j in range(8) if m + j <= 7]
    return [[x for x in allp if sum(x) <= 3], [x for x in allp if sum(x) > 3 and max(x) <= 5], [x for x in allp if max(x) > 5]]


def conv_tpre(p):
    for c in range(8):
        for i in range(2 * opt("tpre", 2)):
            rg = A0 + 164 + 4 * (2 * c + i) if i < 2 else A0 + 4 * (2 * c + i - 2)
            p.e(f"ds_read_b64 {r(rg, 2)}, {v(C_VT)} offset:{512 * i + 64 * c}")
            p.e(f"ds_read_b64 {r(rg + 2, 2)}, {v(C_VT)} offset:{512 * i + 64 * c + 8}")


def conv_main(p, tu2, cks):
    stages = conv_stages()
    HOLD = {}
    if opt("hold", 2) >= 1:
        HOLD.update({("T", i, c): A0 + 164 + 4 * (2 * c + i) for i in range(2) for c in range(8)})
    if opt("hold", 2) >= 2:
        HOLD.update({("P", i, c): 188 + 4 * (2 * c + i) for i in range(2) for c in range(8)})
    held = set()
    if opt("tpre", 2) >= 2:
        HOLD.update({("T", i, c): A0 + 4 * (2 * c + i - 2) for i in (2, 3) for c in range(8)})
    if opt("tpre", 2):
        held.update(q for q in HOLD if q[0] == "T")
    steps, inited, k = [], set(), 0
    for si, pairs in enumerate(stages):
        cs = [[0, 1], [2, 3], [4, 5], [6, 7]] if si == 2 else [[c] for c in range(8)]
        if si == 1:
            for q in [q for q in HOLD if q[0] == "T" and q[1] > 1]:
                del HOLD[q]
                held.discard(q)
        for cl in cs:
            base = C_FR + 32 * (k & 1)
            loc, loads, mf, need = {}, [], [], []
            def get(kind, i, c):
                key = (kind, i, c)
                if key in held:
                    return HOLD[key]
                if key not in loc:
                    if key in HOLD:
                        rg = HOLD[key]
                    else:
                        rg = base + 4 * len([1 for q in loc if q not in HOLD])
                    loc[key] = rg
                    if kind == "T":
                        loads.append(Ins(f"ds_read_b64 {r(rg, 2)}, {v(C_VT)} offset:{512 * i + 64 * c}", p.tok()))
                        loads.append(Ins(f"ds_read_b64 {r(rg + 2, 2)}, {v(C_VT)} offset:{512 * i + 64 * c + 8}", p.tok()))
                    else:
                        loads.append(Ins(f"ds_read_b128 {r(rg, 4)}, {v(C_VP)} offset:{512 * (7 - i) + 64 * c}", p.tok()))
                return loc[key]
            for c in cl:
                rest, have = list(pairs), set((a_, b_) for a_, b_, c_ in held if c_ == c)
                while rest:
                    rest.sort(key=lambda x: ((("T", x[0]) not in have) + (("P", x[1]) not in have), -max(x), x))
                    m, j = rest.pop(0)
                    have.update({("T", m), ("P", j)})
                    pj, tm = get("P", j, c), get("T", m, c)
                    acc = v(C_ACC + 4 * (m + j), 4)
                    if c == 0 and m == 0:
                        mf.append(f"v_mfma_f32_16x16x32_bf16 {acc}, {v(C_AD, 4)}, {r(pj, 4)}, {acc if j in inited else 0}")
                        need.append(len(loads))
                        inited.add(j)
                    mf.append(f"v_mfma_f32_16x16x32_bf16 {acc}, {r(tm, 4)}, {r(pj, 4)}, {acc if m + j in inited else 0}")
                    need.append(len(loads))
                    inited.add(m + j)
            assert len([1 for q in loc if q not in HOLD]) <= 8
            held.update(q for q in loc if q in HOLD)
            steps.append((si, loads, mf, need))
            k += 1
    mfs, fixed, pre, sstart = [], {}, {}, {}
    LAT = opt("dslat", 7)
    prev_pos = [-99] * len(steps[0][1])
    for k, (si, loads, mf, need) in enumerate(steps):
        g0 = len(mfs)
        sstart.setdefault(si, g0)
        nxt = steps[k + 1][1] if k + 1 < len(steps) else []
        span = len(mf) if len(nxt) > len(mf) - 3 else len(nxt)
        pos = [g0 + i * span // len(nxt) for i in range(len(nxt))]
        for g, x in zip(pos, nxt):
            fixed.setdefault(g, []).append(x)
        done = 0
        for i in range(len(mf)):
            if need[i] > done:
                done = max([need[i]] + [q + 1 for q in range(len(loads)) if g0 + i - prev_pos[q] >= LAT])
                pre[g0 + i] = [wait(loads[done - 1].tok)]
        prev_pos = pos
        mfs += mf
    N = len(mfs)
    th = [p.tok(), p.tok()]
    e = [conv_epi(c, th[c >> 1]) for c in range(4)]
    cka, ck0 = CKA(), CK2(0)
    ckb = SCheck(S_CV, [CTRB - CTR], R_WS, None, S_CKW, CTRB, 8)
    s1, s2 = sstart[1], sstart[2]
    LD = opt("cklead", 30)
    BS = opt("cksat", 10)
    XA = BS + opt("xd", 45)
    E0 = max(s1 + 2, XA + opt("pre01", 34))
    E1 = E0 + 20
    B0 = E1 + opt("sigd", 55)
    XB2 = B0 + opt("xbd", 50)
    E2 = max(s2 + 3, XB2 + 22)
    put = lambda g, l: pre.setdefault(g, []).extend(flat(l))
    def xload(h, g):
        q = Prog()
        q.ntok = (1 + h) << 20
        tk = conv_load_x(q, h, S_U)
        for d, (a_, b_) in enumerate(((0, 4), (4, 5), (5, 9), (9, 10))):
            fixed.setdefault(g + 2 * d, []).extend(q.ins[a_:b_])
        return tk
    if BS - LD > 0:
        put(BS - LD, [cks.load()])
    put(BS, cks.test() + ["s_barrier"] + stamp_l(3))
    tx = xload(0, BS)
    BA = opt("ckaat", 0) or XA
    BB = opt("ckbat", 0) or B0
    XB2 = BB + opt("xbd", 50)
    E2 = max(s2 + 3, XB2 + 22)
    assert BA < BB
    put(max(BS + 1, min(BA - LD, B0 - 1) if BA - LD < B0 + 50 else BA - LD), [cka.load()])
    put(XA, [wait(tx)] + (cka.test() if BA == XA else []) + ["s_barrier"] + stamp_l(8))
    if BA not in (XA, B0):
        put(BA, cka.test() + ["s_barrier"] + stamp_l(28))
    put(min(XA, s1 - 12), [wait(tu2)])
    sg = signal2(0, th[0], ckb if BB == B0 else (cka if BA == B0 else None))[0]
    if BA == B0:
        kb = next(i_ for i_, y in enumerate(sg) if y.text == "s_barrier")
        sg = sg[:kb] + ckb.load() + sg[kb:]
    else:
        put(max(BA + 1, BB - LD), [ckb.load()])
    put(B0, [sg] + stamp_l(11))
    if BB != B0:
        put(BB, ckb.test() + ["s_barrier"])
    tx2 = xload(1, BB)
    put(XB2, [wait(tx2), "s_barrier"])
    streams = [
        Stream(e[0][0] + e[1][0], XA, E0),
        Stream(stamp_l(9) + e[0][1] + e[1][1], E0 + 1, E1),
        Stream(e[2][0], XB2, E2 - 1),
        Stream(stamp_l(10) + e[2][1], E2, E2 + 11),
        Stream(e[3][0], XB2 + 8, N),
    ]
    w0 = max(BA, opt("w1at", 0))
    nb = opt("nw1b", 40)
    pc = Pacer(fixed, pre, (N - opt("w1end", 14) - w0) / nb)
    if w0 > s1:
        pc.put(w1_loads(0, nb), w0)
    else:
        assert nb == 40
        pc.put(w1_loads(16, 40), w0)
        pc.put(w1_loads(0, 16), s1 + 1)
    put(N - opt("ck0lead", 25), [ck0.load()])
    for k_, g_ in enumerate(int(x) for x in OPTS.get("cst", "").split(",") if x):
        pre[g_] = flat(stamp_l(16 + k_, True)) + pre.get(g_, [])
    p.add(steps[0][1])
    sched(p, mfs, 2, fixed, streams, pre)
    stamp(p, 12)
    p.add(flat(e[3][1]))
    t0, t1 = p.tok(), p.tok()
    p.add(ck0.test())
    p.e("s_barrier")
    stamp(p, 13)
    p.add(flat(h_dma(0, t0) + h_dma(1, t1)[:opt("h1n", 0)]))
    return t0, t1


G_ACC, G_BF, G_BP, G_SV, G_TMP, G_RT = [24, 40, 56, 24], 72, 104, [108, 112], 116, 124
KK0, KK1 = -2.302208198, 0.044715


def ln_consts(sv, bp):
    sm, sq, t, u = sv, sv + 1, sv + 2, sv + 3
    return [f"v_mul_f32 {v(t)}, {v(sm)}, {v(sm)}",
            f"v_mul_f32 {v(sq)}, {f32((1 + 1e-5) / 640)}, {v(sq)}",
            f"v_and_b32 {v(u)}, {s(S_HI)}, {v(sm)}",
            f"v_fmac_f32 {v(sq)}, {f32(-(1 + 1e-5) / 640 / 640)}, {v(t)}",
            f"v_sub_f32 {v(sm)}, {v(sm)}, {v(u)}",
            f"v_add_f32_e64 {v(sq)}, |{v(sq)}|, {s(S_PL)}",
            f"v_cvt_pk_bf16_f32 {v(bp)}, {v(u)}, {v(sm)}",
            f"v_rsq_f32 {v(t)}, {v(sq)}",
            None,
            f"v_mul_f32 {v(sm)}, {v(sq)}, {v(t)}",
            f"v_mul_f32 {v(sq)}, {f32(KK0)}, {v(t)}",
            f"v_and_b32 {v(u)}, {s(S_HI)}, {v(sm)}",
            f"v_mul_f32 {v(t)}, {v(t)}, {v(t)}",
            f"v_sub_f32 {v(bp + 1)}, {v(sm)}, {v(u)}",
            f"v_mul_f32 {v(t)}, {v(t)}, {v(sq)}",
            f"v_cvt_pk_bf16_f32 {v(bp + 1)}, {v(u)}, {v(bp + 1)}",
            f"v_mul_f32 {v(t)}, {f32(KK1)}, {v(t)}"]


def gelu_ops(acc, n, sv, pk=False):
    out = []
    if pk:
        for k0 in range(0, n, 8):
            m = min(8, n - k0)
            t = lambda j, w=1: v(G_TMP + j, w)
            x = lambda j, w=1: v(acc + k0 + j, w)
            for j in range(0, m, 2):
                out.append(f"v_pk_mul_f32 {t(j, 2)}, {x(j, 2)}, {x(j, 2)}")
            for j in range(0, m, 2):
                out.append(f"v_pk_fma_f32 {t(j, 2)}, {t(j, 2)}, {v(sv + 2, 2)}, {v(sv, 2)} op_sel:[0,0,1] op_sel_hi:[1,0,1]")
            for j in range(0, m, 2):
                out.append(f"v_pk_mul_f32 {t(j, 2)}, {t(j, 2)}, {x(j, 2)}")
            for j in range(m):
                out.append(f"v_exp_f32 {t(j)}, {t(j)}")
            for j in range(0, m, 2):
                out.append(f"v_pk_fma_f32 {t(j, 2)}, {t(j, 2)}, {v(sv, 2)}, {v(sv, 2)} op_sel_hi:[1,0,0]")
            for j in range(m):
                out.append(f"v_rcp_f32 {t(j)}, {t(j)}")
            for j in range(0, m, 2):
                out.append(f"v_pk_mul_f32 {t(j, 2)}, {t(j, 2)}, {x(j, 2)}")
            for j in range(0, m, 2):
                out.append(f"v_cvt_pk_bf16_f32 {x(j // 2)}, {t(j)}, {t(j + 1)}")
            out.append(("store", k0 // 8))
        return out
    def stages(k):
        t = lambda j: v(G_TMP + (k + j) % 6)
        x = lambda j: v(acc + k + j)
        A = [f"v_mul_f32 {t(j)}, {x(j)}, {x(j)}" for j in (0, 1)] + \
            [f"v_fma_f32 {t(j)}, {t(j)}, {v(sv + 2)}, {v(sv + 1)}" for j in (0, 1)] + \
            [f"v_mul_f32 {t(j)}, {t(j)}, {x(j)}" for j in (0, 1)]
        E = [f"v_exp_f32 {t(j)}, {t(j)}" for j in (0, 1)]
        Bv = [f"v_fma_f32 {t(j)}, {t(j)}, {v(sv)}, {v(sv)}" for j in (0, 1)]
        Rr = [f"v_rcp_f32 {t(j)}, {t(j)}" for j in (0, 1)]
        C = [f"v_mul_f32 {t(j)}, {t(j)}, {x(j)}" for j in (0, 1)] + \
            [f"v_cvt_pk_bf16_f32 {v(acc + (k & ~7) + (k & 7) // 2)}, {t(0)}, {t(1)}"]
        return A, E, Bv, Rr, C
    sts = [stages(k) for k in range(0, n, 2)]
    out += sts[0][0]
    for i, (A, E, Bv, Rr, C) in enumerate(sts):
        nA = sts[i + 1][0] if i + 1 < len(sts) else []
        pC = sts[i - 1][4] if i else []
        out += [E[0]] + pC[:2] + [E[1]] + pC[2:]
        if i and (2 * i) % 8 == 0:
            out.append(("store", (2 * i) // 8 - 1))
        out += nA[:1] + Bv[:1] + nA[1:2] + Bv[1:] + [Rr[0]] + nA[2:4] + [Rr[1]] + nA[4:]
    out += sts[-1][4]
    out.append(("store", (n - 1) // 8))
    return out


def g1_consts(c, w3):
    acc = G_ACC[c]
    so = 1024 * (c & 1)
    if not w3:
        return [f"ds_read_b64 {v(G_BP, 2)}, {v(G_VST)} offset:{so + 16}",
                f"ds_read_b128 {v(G_SV[c & 1], 4)}, {v(G_VST)} offset:{so}", Delay(3),
                f"v_mfma_f32_32x32x16_bf16 {v(acc, 16)}, {a(A_P, 4)}, {v(G_BP, 4)}, {v(acc, 16)}"]
    out = [f"ds_read_b64 {v(G_BP + 4 * t, 2)}, {v(G_VST)} offset:{so + 512 * t + 16}" for t in range(2)]
    out += [f"ds_read_b128 {v(acc + 8 * t + 4, 4)}, {v(G_VST)} offset:{so + 512 * t}" for t in range(2)] + [Delay(5)]
    for t in range(2):
        out.append(f"v_mfma_f32_16x16x32_bf16 {v(acc + 8 * t, 4)}, {a(A_P, 4)}, {v(G_BP + 4 * t, 4)}, {v(acc + 8 * t, 4)}")
    return out


def g1_gelu(c, w3, tok, pk=False):
    acc = G_ACC[c]
    out = []
    if not w3:
        for x in gelu_ops(acc, 16, G_SV[c & 1], pk):
            if isinstance(x, tuple):
                q = x[1]
                x = [f"s_add_u32 {s(S_A)}, {s(S_HIS)}, {114688 * c}",
                     Ins(f"buffer_store_dwordx4 {v(acc + 8 * q, 4)}, {v(G_VSH)}, {srd(R_WS)}, {s(S_A)} offen offset:{512 * q} sc1", tok)]
            out.append(x)
    else:
        for t in range(2):
            for x in gelu_ops(acc + 8 * t, 4, acc + 8 * t + 4, pk):
                if isinstance(x, tuple):
                    out.append(f"v_cndmask_b32 {v(acc + 8 * t)}, {v(acc + 8 * t)}, {v(G_VSH)}, {s(S_MK + 6, 2)}")
                    out.append(f"v_cndmask_b32 {v(acc + 8 * t + 1)}, {v(acc + 8 * t + 1)}, 0, {s(S_MK + 6, 2)}")
                    x = [f"s_add_u32 {s(S_A)}, {s(S_HIS)}, {114688 * c + 57344 * t}",
                         Ins(f"buffer_store_dwordx2 {v(acc + 8 * t, 2)}, {v(G_X0)}, {srd(R_WS)}, {s(S_A)} offen sc1", tok)]
                out.append(x)
    return out


def g1_stats_out(c, tok):
    acc = G_ACC[c]
    out = []
    for k in range(1, 4):
        for t in range(2):
            g = acc + 8 * t + 4
            out.append(f"v_cndmask_b32 {v(g)}, {v(g)}, {v(g + k)}, {s(S_MK + 2 * (k - 1), 2)}")
    so = 1024 * (c & 1)
    for t in range(2):
        out.append(f"ds_write_b32 {v(G_VRR)}, {v(acc + 8 * t)} offset:{so + 512 * t + 24}")
        out.append(f"ds_write_b32 {v(G_VRW)}, {v(acc + 8 * t + 4)} offset:{so + 512 * t + 28}")
    out += [f"ds_read_b64 {v(G_SV[1], 2)}, {v(G_X1)} offset:{so + 24}", Delay(5)]
    out += ln_consts(G_SV[1], G_RT)
    out.append(Ins(f"ds_write_b64 {v(G_X1)}, {v(G_RT, 2)} offset:{so + 16}", tok))
    out.append(Ins(f"ds_write_b128 {v(G_X1)}, {v(G_SV[1], 4)} offset:{so}", tok))
    return out


def res_stash(c):
    return [f"ds_read_b64_tr_b16 {v(G_RT, 2)}, {v(G_VRR)} offset:0",
            f"ds_read_b64_tr_b16 {v(G_RT + 2, 2)}, {v(G_VRR)} offset:2048", Delay(4),
            f"ds_write_b64 {v(G_VRW)}, {v(G_RT, 2)} offset:{2560 * c}",
            f"ds_write_b64 {v(G_VRW)}, {v(G_RT + 2, 2)} offset:{2560 * c + 64}"]


def aprime(w3):
    F, P, B, T = 56, 58, 63, 64
    half = 16 if w3 else 32
    out = []
    if w3:
        out += [f"v_and_b32 {v(F)}, 15, v1",
                [f"s_mul_i32 {s(S_C)}, {s(S_M)}, 13108", f"s_lshr_b32 {s(S_C)}, {s(S_C)}, 14", f"s_and_b32 {s(S_C)}, {s(S_C)}, 12"],
                [f"s_mul_i32 {s(S_E)}, {s(S_M)}, 12", f"s_add_u32 {s(S_C)}, {s(S_C)}, {s(S_E)}"],
                [f"s_cmp_eq_u32 {s(S_M)}, 15", f"s_cselect_b32 {s(S_C)}, 60, {s(S_C)}", f"s_cselect_b32 {s(S_E)}, 60, 0"],
                f"s_add_u32 {s(S_C)}, {s(S_C)}, 1536",
                f"v_lshrrev_b32 {v(T)}, 2, {v(F)}",
                f"v_mad_u32_u24 {v(F)}, {v(T)}, {s(S_E)}, {v(F)}",
                f"v_add_u32 {v(F)}, {s(S_C)}, {v(F)}",
                f"v_min_u32 {v(F)}, 1727, {v(F)}"]
    else:
        out += [f"v_and_b32 {v(F)}, 31, v1",
                [f"s_mul_i32 {s(S_C)}, {s(S_M)}, 3", f"s_add_u32 {s(S_C)}, {s(S_C)}, {s(S_W)}"],
                f"v_lshl_add_u32 {v(F)}, {s(S_C)}, 5, {v(F)}"]
    out += [f"v_lshlrev_b32 {v(F + 1)}, 1, {v(F)}", f"v_lshlrev_b32 {v(F)}, 2, {v(F)}",
            f"buffer_load_ushort {v(B)}, {v(F + 1)}, {srd(R_B1)}, 0 offen"]
    n = 5
    for k in range(n):
        out.append([f"s_mov_b32 {s(S_C)}, {CSP + 8192 * k}",
                    f"buffer_load_dword {v(P + k)}, {v(F)}, {srd(R_WS)}, {s(S_C)} offen sc1"])
    post = [f"v_add_f32 {v(P)}, {v(P)}, {v(P + k)}" for k in range(1, n)]
    post += [f"v_mul_f32 {v(P)}, {f32(-1 / 640)}, {v(P)}",
             f"v_lshl_or_b32 {v(B)}, {v(B)}, 16, {v(B)}",
             f"v_cmp_gt_u32 {s(98, 2) if not STAMPS else s(R_SH, 2)}, {half}, v1",
             f"v_and_b32 {v(T)}, {s(S_HI)}, {v(P)}",
             f"v_sub_f32 {v(P)}, {v(P)}, {v(T)}",
             f"v_cndmask_b32 {v(B)}, 0, {v(B)}, {s(98, 2) if not STAMPS else s(R_SH, 2)}",
             f"v_cndmask_b32 {v(T)}, {v(P)}, {v(T)}, {s(98, 2) if not STAMPS else s(R_SH, 2)}"]
    if w3:
        post += [f"v_cmp_gt_u32 {s(98, 2) if not STAMPS else s(R_SH, 2)}, 32, v1", f"v_accvgpr_write_b32 {a(A_P + 2)}, 0",
                 f"v_accvgpr_write_b32 {a(A_P + 3)}, 0",
                 f"v_cndmask_b32 {v(T)}, 0, {v(T)}, {s(98, 2) if not STAMPS else s(R_SH, 2)}"]
    else:
        post += [f"v_accvgpr_write_b32 {a(A_P + 2)}, 0", f"v_accvgpr_write_b32 {a(A_P + 3)}, 0"]
    post += [f"v_cvt_pk_bf16_f32 {v(T)}, {v(T)}, {v(T)}", f"v_accvgpr_write_b32 {a(A_P + 1)}, {v(B)}",
             f"v_accvgpr_write_b32 {a(A_P)}, {v(T)}"]
    return out, post


def gemm1(p, w3, th0, th1):
    EARLY = 0
    th = [th0, th1, p.tok(), p.tok()]
    ts = [p.tok() for _ in range(3)]
    ts.append(ts[2])
    u = 2 if w3 else 1
    LEAD = 7
    p.e(f"s_mov_b32 {s(S_PL)}, {f32(1e-10)}")
    p.e(f"s_mov_b32 {s(S_U)}, 4")
    WS = opt("wsig", 1)
    for k in (2, 3, 6, 7) if w3 else (2, 3):
        p.e(f"v_mov_b32 {v(G_BP + k)}, 0")
    ckh, ck30 = (VK2(1) if 'h' in OPTS.get('vck', '') else CK2(1)), (VK3(0) if '0' in OPTS.get('vck', '') else CK3(0))
    ckh3 = CK2(2)
    SB = opt('sb3', 12) if w3 else opt('sb', 14)
    HB_ = opt('h2bar', 50) or 40 + SB
    T3 = opt('dma3', 1)
    rtok = [p.tok() for _ in range(160)]
    def reads(S):
        st = S % 40
        b = G_BF + 4 * (S % 8)
        if not w3:
            return [Ins(f"ds_read_b64_tr_b16 {v(b, 2)}, {v(G_VA)} offset:{1024 * st}", rtok[S]),
                    Ins(f"ds_read_b64_tr_b16 {v(b + 2, 2)}, {v(G_VB)} offset:{1024 * st}", rtok[S])]
        va = G_VB if st & 1 else G_VA
        return [Ins(f"ds_read_b64_tr_b16 {v(b, 2)}, {v(va)} offset:{2048 * (st >> 1)}", rtok[S]),
                Ins(f"ds_read_b64_tr_b16 {v(b + 2, 2)}, {v(va)} offset:{2048 * (st >> 1) + 1024}", rtok[S])]
    nb, nw = opt("nw1b", 40), opt("nw2c", 0)
    ckw = CKW()
    ap = aprime(w3)
    nd = lambda l: flat([x for x in l if x is not None and not isinstance(x, Delay)])
    if not nw:
        p.add(ckw.load())
    p.add(nd(ap[0]))
    p.add(flat(signal2(1, th[0], guard=True)))
    stamp(p, 14)
    for S in range(LEAD):
        p.add(reads(S))
    mfs, fixed, pre = [], {}, {}
    for S in range(160):
        c, st = divmod(S, 40)
        acc = G_ACC[c]
        b = v(G_BF + 4 * (S % 8), 4)
        rd = reads(S + LEAD) if S + LEAD < 160 else []
        g = len(mfs)
        if S % 4 == 0 and S:
            pre[g] = [wait(rtok[S + 3])]
        gs = [int(x) for x in OPTS.get("gst", "").split(",") if x]
        if S in gs:
            pre[g] = pre.get(g, []) + flat(stamp_l(1 + gs.index(S), True))
        if st == 40 - LEAD and c < 3:
            d = (L_HBUF[c + 1] - L_HBUF[c]) & 0xffffffff
            pre[g] = pre.get(g, []) + [f"v_add_u32 {v(G_VA)}, {d}, {v(G_VA)}", f"v_add_u32 {v(G_VB)}, {d}, {v(G_VB)}",
                                       ] + ([] if (w3 and T3 and c) else [wait(th[c + 1])])
            if c == 0 and EARLY and opt("sig3at", 33) == 33:
                pre[g] += flat(signal2(2, tc3, ckh if HB_ == 33 else None, guard=True))
            elif c == 1 and EARLY and opt("h3bar", 73) == 73:
                pre[g] += ckh3.test() + ["s_barrier"]
            else:
                pre[g] += (ckh.test() if (c == 0 and HB_ == 33) else []) + ["s_barrier"]
            pre[g] += flat(stamp_l(15 + c))
        if not w3:
            mfs.append(f"v_mfma_f32_32x32x16_bf16 {v(acc, 16)}, {a(4 * st, 4)}, {b}, {v(acc, 16) if st else 0}")
            fixed[g] = rd
        else:
            ks, t = st >> 1, st & 1
            x, gr = v(acc + 8 * t, 4), v(acc + 8 * t + 4, 4)
            mfs.append(f"v_mfma_f32_16x16x32_bf16 {x}, {a(80 + 4 * ks, 4)}, {b}, {x if ks else 0}")
            mfs.append(f"v_mfma_f32_16x16x32_bf16 {gr}, {b}, {b}, {gr if ks else 0}")
            fixed[g], fixed[g + 1] = (rd, []) if opt('w3pair', 1) else (rd[:1], rd[1:])
    at = lambda items, S, n=1: Stream(items, S * u, (S + n) * u)
    streams = []
    GE = SB + 6
    GX = opt('gx3', 2) if w3 else opt('gx', 18)
    assert GX <= GE
    g2 = g1_gelu(2, w3, ts[2], pk=w3)
    cut = 0 if w3 else len(g2) * opt("g2cut", 75) // 100
    for c in range(3):
        o = 40 * (c + 1)
        if w3:
            tk = p.tok()
            streams.append(Stream(g1_stats_out(c, tk), u * o + 3, u * (o + SB) - 3))
            pre.setdefault(u * (o + SB), []).append(wait(tk))
        if WS and c == 2:
            pre.setdefault(u * (o + SB), []).extend([wait(ts[0]), "s_barrier"] + signal3w(0))
        else:
            pre.setdefault(u * (o + SB), []).extend((ckh.test() if (c == 0 and not opt('h2bar', 50)) else []) + ["s_barrier"])
        streams.append(at(g1_consts(c, w3), o + SB, GE - SB - 2))
    LD, HP = opt("glead", 12), float(OPTS.get("ghpace", 1.3))
    put = lambda S, l: pre.setdefault(S * u, []).extend(flat(l))
    pc = Pacer(fixed, pre, float(OPTS.get("gpace", 1.5)), u)
    NL = opt("nw2g", 70)
    wl = w2_loads(nw, NL)
    k = 0
    def weights(until):
        nonlocal k
        while k < len(wl) and pc.t < until:
            late = nw + k - NW2_G1
            pc.put([wl[k]], 0 if (late < 0 or w3) else 120 + late)
            k += 1
    pc.put(w1_loads(nb, 40), pace=1)
    pc.put(h_dma(1, th[1])[opt("h1n", 0):], pace=HP)
    if not nw:
        pc.test(ckw, opt("w2at", 6), stamp_l(29))
    put(HB_ - LD, [ckh.load()])
    if opt('h2bar', 50) not in (0, 33):
        put(HB_, ckh.test() + ["s_barrier"])
    weights(HB_ - opt("hquiet", 4))
    hd = lambda c: ([[]] * 10 if w3 else h_dma(c, th[c], three=True)) if T3 else h_dma(c, th[c])
    HP = HP * (10 / 14 if (T3 and not w3) else 1)
    pc.put(hd(2), HB_, pace=HP)
    if EARLY:
        H3 = opt("h3bar", 73)
        put(H3 - LD, [ckh3.load()])
        if H3 != 73:
            put(H3, ckh3.test() + ["s_barrier"])
        weights(H3 - opt("hquiet", 4))
        pc.put(hd(3), H3, pace=HP)
    else:
        weights(opt("h3at", 80))
        pc.put(hd(3), 41 + SB, pace=HP)
    weights(999)
    assert pc.t < 161, pc.t
    streams.append(at(ap[1], 20, 20))
    if not WS:
        streams.append(at(signal3(0, ts[0]), 80 + GX + opt("s3d", 22)))
    if not WS:
        put(160 - opt("ck30lead", 4), [ck30.load()])
        streams.append(at(signal3(1, ts[1]), min(120 + GX + opt("s3d", 22), 159)))
    if not w3:
        for c in range(4):
            x = res_stash(c)
            if c < 3:
                x.append(f"v_add_u32 {v(G_VRR)}, {(L_HBUF[c + 1] - L_HBUF[c]) & 0xffffffff}, {v(G_VRR)}")
            streams.append(at(x, 40 * c, 14))
    for c in range(2):
        streams.append(at(g1_gelu(c, w3, ts[c]), 40 * (c + 1) + GE, 40 + GX - GE))
    streams.append(at(g2[:cut], 120 + GE, 40 - GE))
    sched(p, mfs, 2 if w3 else 6, fixed, streams, pre)
    stamp(p, 18)
    def tail_barrier():
        if WS:
            p.wait(ts[1])
        p.e("s_barrier")
        if WS:
            p.add(ck30.load() + signal3w(1))
    g2r = g2[cut:]
    cs = g1_consts(3, w3)
    k = next(i for i, x in enumerate(cs) if isinstance(x, Delay))
    if w3:
        p.add(nd(g1_stats_out(3, None)))
        p.wait_all(vm=False)
        tail_barrier()
        h = next(i for i, x in enumerate(g2r) if isinstance(x, list)) + 1
        p.add(nd(cs[:k] + g2r[:h] + cs[k:] + g2r[h:]))
    else:
        n1, n2 = max(0, len(g2r) - 26), max(0, len(g2r) - 12)
        p.add(nd(g2r[:n1]))
        p.wait_all(vm=False)
        tail_barrier()
        p.add(nd(cs[:k] + g2r[n1:n2] + cs[k:] + g2r[n2:]))
    p.add(nd(g1_gelu(3, w3, ts[3], pk=True)))
    stamp(p, 19)
    return ts[3], ck30


H_ACC, H_RD, H_SUM, H_O = [44, 24], 64, 96, 104


def gemm2(p, ts3, ck30):
    def red_write(c):
        return [f"ds_write_b128 {v(H_VW)}, {v(H_ACC[c & 1] + 4 * tl, 4)} offset:{L_RED[c & 1] + 64 * tl}" for tl in range(5)]

    def red_pre(c):
        out = [f"ds_read_b128 {v(H_O, 4)}, {v(H_VRES)} offset:{2560 * c}", Delay(6)]
        for k in range(8):
            src = H_O + (k >> 1)
            out.append(f"v_and_b32 {v(H_SUM + k)}, {s(S_HI)}, {v(src)}" if k & 1 else f"v_lshlrev_b32 {v(H_SUM + k)}, 16, {v(src)}")
        return out

    def red_post(c, pk=False):
        out = []
        for w in range(4):
            for h in range(2):
                out.append(f"ds_read_b128 {v(H_RD + 8 * w + 4 * h, 4)}, {v(H_VR)} offset:{L_RED[c & 1] + 5376 * w + 16 * h}")
        out.append(Delay(6))
        for w in range(4):
            if pk:
                for k in range(0, 8, 2):
                    out.append(f"v_pk_add_f32 {v(H_SUM + k, 2)}, {v(H_SUM + k, 2)}, {v(H_RD + 8 * w + k, 2)}")
            else:
                for k in range(8):
                    out.append(f"v_add_f32 {v(H_SUM + k)}, {v(H_SUM + k)}, {v(H_RD + 8 * w + k)}")
        for k in range(4):
            out.append(f"v_cvt_pk_bf16_f32 {v(H_O + k)}, {v(H_SUM + 2 * k)}, {v(H_SUM + 2 * k + 1)}")
        out.append([f"s_add_u32 {s(S_A)}, {s(S_OSO)}, {512 * 1280 * c}",
                    f"buffer_store_dwordx4 {v(H_O, 4)}, {v(H_VO)}, {srd(R_OUT)}, {s(S_A)} offen{OPTS.get('outmod', ' nt')}"])
        return out

    ck1, ck2 = (VK3(c) if str(c) in OPTS.get('vck', '') else CK3(c) for c in (1, 2))
    toks = [[p.tok() for _ in range(14)] for _ in range(4)]
    p.add(ck30.test())
    hl = hid_loads(0, 0, toks[0]) + w2_loads(opt("nw2g", 70), 70)
    n0 = opt("g2n0", 12)
    p.add(flat(hl[:n0]))
    p.add(flat([x for x in red_pre(0) if not isinstance(x, Delay)]))
    if opt("wsig", 1):
        p.add([wait(ts3), "s_barrier"] + ck1.load() + signal3w(2))
    else:
        p.add(ck1.load())
        p.add(flat(signal3(2, ts3)))
    p.add(flat(hl[n0:]))
    stamp(p, 27)
    mf, pre, streams, fixed = [], {}, [], {}
    pc = Pacer(fixed, pre, float(OPTS.get('hgap', 3.5)))
    for c in range(4):
        o = 70 * c
        for st in range(14):
            if st % 2 == 0:
                pre.setdefault(len(mf), []).append(wait(toks[c][st + 1]))
            for tl in range(5):
                acc = v(H_ACC[c & 1] + 4 * tl, 4)
                mf.append(f"v_mfma_f32_16x16x32_bf16 {acc}, {r(W2LOC[5 * st + tl], 4)}, {r(HIDBUF[c & 1][st], 4)}, {acc if st else 0}")
        pre[o].extend(flat(stamp_l(20 + c)))
        if c == 0:
            pc.test(ck1, opt("t31", 22)).put(hid_loads(1, 0, toks[1]))
        if c == 1:
            T = o + opt("t32", 28)
            pre.setdefault(T - opt("ck3lead", 28), []).extend(ck2.load())
            pc.test(ck2, T).put(hid_loads(2, 0, toks[2]))
        if c == 2:
            for st, x in enumerate(hid_loads(3, 0, toks[3])):
                pc.put([x], max(75 + 5 * st, opt("t33", 125)))
        if c:
            fl = []
            for x in red_write(c - 1):
                fl += [x, Delay(2)]
            fl += [Delay(3), [wait_all(vm=False), Ins("s_barrier")]] + red_post(c - 1) + [Delay(1)]
            streams.append(Stream(fl + red_pre(c), o + 4, o + 70))
    sched(p, mf, 2, fixed, streams, pre)
    stamp(p, 24)
    p.add(red_write(3))
    p.wait_all(vm=False)
    p.e("s_barrier")
    p.add(flat([x for x in red_post(3, pk=True) if not isinstance(x, Delay)]))
    stamp(p, 25)


def kernel():
    p = Prog()
    if STAMPS:
        p.e("s_memrealtime s[84:85]")
    for b in (R_Q, R_WS):
        p.e(f"s_load_dwordx2 {s(b, 2)}, s[0:1], {KARG[b]}")
    p.e(f"s_lshr_b32 {s(S_IDX)}, s2, 3")
    touch_code(p)
    p.e(f"s_cmp_ge_u32 {s(S_IDX)}, 24")
    p.e("s_cbranch_scc1 L_prep0")
    p.e(f"s_cmp_ge_u32 {s(S_IDX)}, 20")
    p.e("s_cbranch_scc1 L_stats")
    p.save("entry")
    tu_st = p0_conv(p)
    def mid():
        stamp(p, 4)
        signal(p, tu_st, ready=True, single=True)
        stamp(p, 5)
    conv_build_t(p, mid)
    conv_addr2(p)
    p.e(f"s_cmp_lg_u32 {s(S_W)}, 0")
    p.e("s_cbranch_scc1 L_nopoll")
    p.save("poll")
    if opt("pollw", 1):
        p.raw("    s_waitcnt lgkmcnt(0)")
    c1 = Check(R_WS, None, S_CK1, 0, 16)
    p.add(c1.load())
    p.add(c1.test())
    p.label("L_nopoll")
    p.restore("poll")
    p.e("s_barrier")
    stamp(p, 6)
    tu = conv_load_u(p, 0)
    tu2 = conv_load_u(p, 1)
    cks = SCheck(S_CV, [CTRS - CTR], R_WS, None, S_CKW, CTRS, 8)
    if opt("cksat", 10) - opt("cklead", 30) <= -20:
        p.add(cks.load())
    conv_tpre(p)
    p.wait(tu)
    stamp(p, 7)
    if -20 < opt("cksat", 10) - opt("cklead", 30) <= 0:
        p.add(cks.load())
    G1IN = conv_main(p, tu2, cks)
    p.label("L_g1")
    p.e(f"s_cmp_eq_u32 {s(S_W)}, 3")
    p.e("s_cbranch_scc1 L_g1w3")
    p.save("g1")
    ts3, ck30 = gemm1(p, False, *G1IN)
    p.label("L_g2")
    gemm2(p, ts3, ck30)
    if STAMPS:
        p.wait_all()
        stamp(p, 26)
        stamp_flush(p)
    p.label("L_end")
    p.e("s_endpgm")
    p.label("L_addr3")
    p.reset()
    gemm_addr(p, True)
    p.e("s_branch L_addr_c")
    p.label("L_stats")
    p.restore("entry")
    p0_stats(p)
    p.label("L_prep0")
    p.restore("entry")
    p.e(f"s_cmp_ge_u32 {s(S_IDX)}, 32")
    p.e("s_cbranch_scc1 L_end2")
    p0_prep(p)
    p.label("L_end2")
    p.e("s_endpgm")
    p.label("L_noconv")
    p.raw("    s_waitcnt vmcnt(0) lgkmcnt(0)")
    p.reset()
    ckw, ck0 = VKW(), (Check(R_WS, None, S_FL, FL0 - CTR, 1) if opt("rel0", 0) else VK2(0))
    if opt("rel1", 1):
        p.e(f"s_cmp_ge_u32 {s(S_IDX)}, 28")
        p.e(f"s_cselect_b32 {s(S_PH)}, {s(S_RT)}, 0")
        f1 = Check(R_WS, None, S_FL, FL1 - CTR, s(S_PH))
        p.e("s_cbranch_scc0 L_nof1")
        p.add(f1.load())
        p.add(f1.test())
        p.label("L_nof1")
    helper_checks(p)
    stamp(p, 28)
    p.add(flat(w1_loads(0, 8)))
    p.label("L_w1rest")
    p.add(flat(w1_loads(8, 40)))
    nw = opt("nw2c", 0)
    if nw or opt("ahead", 0):
        p.add(ckw.load())
        p.add(ckw.test())
    stamp(p, 29)
    p.add(flat(w2_loads(0, nw)))
    if opt("ahead", 0):
        per = (70 - nw + 2) // 3
        p.e(f"s_lshr_b32 {s(S_A)}, {s(S_IDX)}, 2")
        p.e(f"s_sub_u32 {s(S_A)}, {s(S_A)}, 5")
        p.e(f"s_lshl_b32 {s(S_A)}, {s(S_A)}, 10")
        p.e(f"s_add_u32 {s(S_A)}, {s(S_A)}, {s(S_W2B)}")
        for k in range(per):
            p.e(f"s_add_u32 {s(S_B)}, {s(S_A)}, {min(nw + 3 * k, 67) * 1024}")
            p.e(f"buffer_load_dwordx4 {v(32 + 4 * k, 4)}, {v(G_VD)}, {srd(R_WS)}, {s(S_B)} offen sc1")
    stamp(p, 7)
    p.e(f"s_cmp_lg_u32 {s(S_W)}, 0")
    p.e("s_cbranch_scc1 L_nopoll2")
    p.add(ck0.load())
    p.add(ck0.test())
    p.label("L_nopoll2")
    p.e("s_barrier")
    stamp(p, 11)
    p.add(flat(h_dma(0, None) + h_dma(1, None)[:opt("h1n", 0)]))
    p.e("s_branch L_g1")
    p.label("L_g1w3")
    p.restore("g1")
    gemm1(p, True, *G1IN)
    p.e("s_branch L_g2")
    emit_slow(p)
    return p


def kernel_iso():
    p = Prog()
    p.e("s_memrealtime s[84:85]")
    for b in (R_Q, R_WS):
        p.e(f"s_load_dwordx2 {s(b, 2)}, s[0:1], {KARG[b]}")
    p.e(f"s_lshr_b32 {s(S_IDX)}, s2, 3")
    prologue(p, (R_K,))
    p.e(f"s_mul_i32 {s(S_CW)}, {s(S_XCD)}, 20")
    p.wait_all(vm=False)
    stamp(p, 0)
    p.e(f"v_lshlrev_b32 {v(G_VD)}, 4, v1")
    for i in range(40):
        p.e(f"s_mov_b32 m0, {4096 * i}")
        p.e(f"v_lshlrev_b32 v32, 4, v0")
        p.e(f"s_lshl_b32 {s(S_A)}, {s(S_W)}, 10")
        p.e(f"s_add_u32 m0, m0, {s(S_A)}")
        p.e(f"s_mov_b32 {s(S_B)}, {4096 * i}")
        descs(p, (R_Q,))
        p.add([dma(32, R_Q, s(S_B))])
    for i in range(64):
        p.e(f"buffer_load_dwordx4 {a(4 * i, 4)}, {v(G_VD)}, {srd(R_Q)}, 0 offen offset:{16 * i}")
    for i in range(8, 63):
        p.e(f"buffer_load_dwordx4 {v(4 * i, 4)}, {v(G_VD)}, {srd(R_Q)}, 0 offen offset:{16 * i}")
    p.wait_all()
    common_addr(p, 0)
    p.label("L_addr_r1")
    p.label("L_addr_r2")
    conv_addr(p)
    conv_addr2(p)
    p.wait_all()
    p.e("s_barrier")
    p.e("s_mov_b32 s95, 2")
    p.label("L_again")
    n0 = len(p.ins)
    which = OPTS["iso"]
    t = [p.tok() for _ in range(4)]
    if which == "conv":
        stamp(p, 7)
        conv_main(p, t[0], CKA())
        stamp(p, 13)
    elif which == "g2":
        gemm2(p, t[0], CK3(0))
    else:
        p.e(f"s_cmp_eq_u32 {s(S_W)}, {3 if which == 'g1' else (9 if which == 'g1a' else 0)}" if which != "g1b" else "s_cmp_eq_u32 0, 0")
        p.e("s_cbranch_scc1 L_g1w3")
        gemm1(p, False, t[0], t[1])
        p.e("s_branch L_g2")
        p.label("L_g1w3")
        gemm1(p, True, t[0], t[1])
        p.label("L_g2")
    vt = set(t)
    keep = []
    drop = OPTS.get("drop", "").split(",")
    for x in p.ins[n0:]:
        kv = OPTS.get("keepvm", "")
        if x.kind == "vmem" and not (("l" in kv and x.writes) or ("d" in kv and "lds" in x.text) or ("s" in kv and "store" in x.op)):
            vt.add(x.tok)
            continue
        if x.op.startswith("s_atomic") or "async" in x.text:
            continue
        if x.pseudo == "wait" and x.arg in vt:
            continue
        if x.pseudo is None and "writelane" not in x.op and any(d and x.op.startswith(d) for d in drop):
            vt.add(x.tok)
            continue
        keep.append(x)
    p.ins[n0:] = keep
    p.wait_all()
    p.e("s_barrier")
    p.e("s_sub_u32 s95, s95, 1")
    p.e("s_cmp_lg_u32 s95, " + OPTS.get("once", "0"))
    p.e("s_cbranch_scc1 L_again")
    stamp(p, 26)
    stamp_flush(p)
    p.e("s_endpgm")
    p.label("L_addr3")
    p.reset()
    gemm_addr(p, True)
    p.e("s_branch L_addr_c")
    emit_slow(p)
    return p


def build():
    head = open(f"cdna_kernels/{NAME}.s.ref").read().split("; Override launch")[0]
    label = NAME + "_kernel"
    body, st = finalize(kernel_iso() if 'iso' in OPTS else kernel())
    print(f"instr {st.n} waits {st.waits} nop-states {st.nops} smblock {st.smblock} dummies {st.dummies}", file=sys.stderr)
    body = body.replace(" ; soft", "").replace(" ; async", "")
    return head + f"""; Generated by gen23.py: one persistent launch, one workgroup per CU.
; @launch grid=(256,1,1) block=(256,1,1) lds={LDS_BYTES}
.amdgcn_target "amdgcn-amd-amdhsa--gfx950"
.text
.globl {label}
.p2align 8
.type {label},@function
{label}:
{body}L_code_end:
.section .rodata,"a"
.p2align 6
.amdhsa_kernel {label}
  .amdhsa_next_free_vgpr 512
  .amdhsa_next_free_sgpr 102
  .amdhsa_accum_offset 256
  .amdhsa_group_segment_fixed_size 0
  .amdhsa_kernarg_size 112
  .amdhsa_user_sgpr_count 2
  .amdhsa_user_sgpr_kernarg_segment_ptr 1
  .amdhsa_system_sgpr_workgroup_id_x 1
  .amdhsa_float_denorm_mode_32 3
.end_amdhsa_kernel
"""


if __name__ == "__main__":
    for o in sys.argv[2:]:
        k, _, val = o.partition("=")
        OPTS[k] = val.replace("+", " ") if val else "1"
    STAMPS = "stamps" in OPTS
    import dsl
    dsl.SM_WINDOW = opt("smw", 1100)
    open(sys.argv[1], "w").write(build())
```

```python
import sys, subprocess, os
sys.path.insert(0, "gen")
NAME = "ub"
M32 = "v_mfma_f32_32x32x16_bf16 v[16:31], a[0:3], v[48:51], v[16:31]"
M16 = ["v_mfma_f32_16x16x32_bf16 v[16:19], a[0:3], v[48:51], v[16:19]", "v_mfma_f32_16x16x32_bf16 v[20:23], a[4:7], v[48:51], v[20:23]"]
def V2(k): return f"v_mul_f32 v{64+k%8}, v{72+k%8}, v{80+k%8}"
def V3(k): return f"v_fma_f32 v{64+k%8}, v{72+k%8}, v{80+k%8}, v{88+k%8}"
def FM(k): return f"v_fmac_f32 v{64+k%8}, v{72+k%8}, v{80+k%8}"
def PK(k): return f"v_pk_fma_f32 v[{64+2*(k%4)}:{65+2*(k%4)}], v[72:73], v[80:81], v[88:89]"
def PM(k): return f"v_pk_mul_f32 v[{64+2*(k%4)}:{65+2*(k%4)}], v[72:73], v[80:81]"
def TR(k): return f"v_exp_f32 v{96+k%4}, v{72+k%8}"
def CV(k): return f"v_cvt_pk_bf16_f32 v{64+k%8}, v{72+k%8}, v{80+k%8}"
def DT(k): return f"ds_read_b64_tr_b16 v[{52+2*(k%4)}:{53+2*(k%4)}], v2 offset:{1024*(k%8)}"
def D8(k): return f"ds_read_b64 v[{52+2*(k%4)}:{53+2*(k%4)}], v3 offset:{1024*(k%8)}"
def D16(k): return f"ds_read_b128 v[{52+4*(k%2)}:{55+4*(k%2)}], v4 offset:{1024*(k%8)}"
W = "s_waitcnt lgkmcnt(6)"
SA = "s_add_u32 s20, s21, 5"
NOP = "s_nop 0"
DOT = lambda k: f"v_dot2_f32_bf16 v{64+k%8}, v{72+k%8}, v{80+k%8}, v{64+k%8}"
seq = lambda f, n, o=0: [f(k + o) for k in range(n)]
RC = lambda k: f"v_rcp_f32 v{100+k%4}, v{72+k%8}"
LD = lambda k: f"buffer_load_dwordx4 a[{16+4*(k%8)}:{19+4*(k%8)}], v4, s[4:7], s21 offen offset:{1024*(k%4)}"
DM = lambda k: f"buffer_load_dwordx4 v4, s[4:7], s21 offen offset:{1024*(k%4)} lds"
WV = "s_waitcnt vmcnt(8)"
DW = lambda k: f"ds_write_b128 v4, v[{64+4*(k%2)}:{67+4*(k%2)}] offset:{16384+1024*(k%8)}"
FK = lambda k: f"v_fmaak_f32 v{64+k%8}, v{72+k%8}, v{80+k%8}, 0x3f801234"
M16b = ["v_mfma_f32_16x16x32_bf16 v[%d:%d], a[0:3], a[4:7], v[%d:%d]" % (16+4*k, 19+4*k, 16+4*k, 19+4*k) for k in range(4)]
Q = ["v_mfma_f32_4x4x4_16b_bf16 v[24:27], v[48:49], v[48:49], v[24:27]", "v_mfma_f32_4x4x4_16b_bf16 v[28:31], v[50:51], v[50:51], v[28:31]"]
G = "v_mfma_f32_16x16x32_bf16 v[20:23], v[48:51], v[48:51], v[20:23]"
B = {
 "W,tr,tr,G@8": [M16[0], DT(0), DT(1), G], "W,tr,tr,G,v,v@8": [M16[0], DT(0), DT(1), G, V2(0), V2(1)],
 "W,tr,tr,q,q@8": [M16[0], DT(0), DT(1), Q[0], Q[1]], "W,tr,tr,q,v,q,v@8": [M16[0], DT(0), DT(1), Q[0], V2(0), Q[1], V2(1)],
 "W,tr,tr,q,q,v,v@8": [M16[0], DT(0), DT(1), Q[0], Q[1], V2(0), V2(1)], "W,tr,tr,q,v,q@8": [M16[0], DT(0), DT(1), Q[0], V2(0), Q[1]],
 "q,q@8": Q, "q,v,q,v@8": [Q[0], V2(0), Q[1], V2(1)], "W,tr,tr,4v@8": [M16[0], DT(0), DT(1)] + seq(V2, 4),
}
REP, IT = 16, 64
def build(block):
    t = '.amdgcn_target "amdgcn-amd-amdhsa--gfx950"\n.text\n'
    kd = '.section .rodata,"a"\n'
    head = ""
    for i, (n, body) in enumerate(B.items()):
        k = f"u{i}_kernel"
        head += f"; @launch kernel={k} grid=(256,1,1) block=({block},1,1) lds=163840\n"
        t += f".globl {k}\n.p2align 8\n.type {k},@function\n{k}:\n"
        t += "s_load_dwordx2 s[4:5], s[0:1], 104\ns_mov_b32 s6, 0x1000000\ns_mov_b32 s7, 0x20000\ns_mov_b32 s21, 0x800000\ns_mov_b32 m0, 32768\n"
        t += "v_and_b32 v1, 63, v0\nv_lshlrev_b32 v2, 3, v1\nv_lshlrev_b32 v3, 3, v1\nv_lshlrev_b32 v4, 4, v1\n"
        t += "v_mul_u32_u24 v5, 0x9e3779, v0\nv_and_b32 v5, 0x3fff3fff, v5\nv_or_b32 v5, 0x3c003c00, v5\n"
        for r in range(16, 32): t += f"v_mov_b32 v{r}, 0\n"
        for r in range(48, 104): t += f"v_mul_u32_u24 v5, 0x9e3779, v5\nv_and_b32 v5, 0xbfffbfff, v5\nv_or_b32 v5, 0x3c003c00, v5\nv_mov_b32 v{r}, v5\n"
        for r in range(8): t += f"v_accvgpr_write_b32 a{r}, v{60+r}\n"
        for r in range(10): t += f"ds_write_b128 v4, v[{64+4*(r%8)}:{67+4*(r%8)}] offset:{1024*r}\n"
        t += f"s_mov_b32 s8, {IT}\ns_waitcnt lgkmcnt(0)\ns_barrier\ns_memtime s[10:11]\ns_memrealtime s[12:13]\ns_waitcnt lgkmcnt(0)\n.p2align 6\n" + "s_nop 0\n" * (int(n.split("@")[1]) // 4) + f"L{i}:\n"
        t += "\n".join(body * REP) + "\n"
        t += f"s_sub_u32 s8, s8, 1\ns_cmp_lg_u32 s8, 0\ns_cbranch_scc1 L{i}\ns_waitcnt vmcnt(0) lgkmcnt(0)\ns_memtime s[14:15]\ns_memrealtime s[16:17]\ns_waitcnt lgkmcnt(0)\n"
        t += f"s_sub_u32 s14, s14, s10\ns_sub_u32 s16, s16, s12\nv_mov_b32 v6, s14\nv_mov_b32 v7, s16\ns_lshl_b32 s9, s2, 3\ns_add_u32 s9, s9, {i*2048}\nv_mov_b32 v8, 0\n"
        t += "buffer_store_dwordx2 v[6:7], v8, s[4:7], s9 offen\ns_endpgm\n"
        kd += f".p2align 6\n.amdhsa_kernel {k}\n  .amdhsa_next_free_vgpr 256\n  .amdhsa_next_free_sgpr 102\n  .amdhsa_accum_offset 128\n  .amdhsa_group_segment_fixed_size 0\n  .amdhsa_kernarg_size 112\n  .amdhsa_user_sgpr_count 2\n  .amdhsa_user_sgpr_kernarg_segment_ptr 1\n  .amdhsa_system_sgpr_workgroup_id_x 1\n.end_amdhsa_kernel\n"
    return head + t + kd
if __name__ == "__main__":
    if sys.argv[1] == "gen":
        open("ub256.s", "w").write(build(256)); open("ub512.s", "w").write(build(512))
    else:
        from runner import *
        import cdna_launch as cl
        res = []
        for f in ("ub256.s",):
            R = Run("gen/" + f)
            R.dbg = DeviceBuffer(65536); R.k.d_debug = (R.dbg.ptr, 65536)
            R.ka = cl.pack_ptr_kernargs([b.ptr for b in R.bufs] + [R.out.ptr, R.dbg.ptr, R.ws.ptr])
            R.launch(); R.launch()
            res.append(R.get(R.ws, 0, 2048 * len(B), np.uint32).reshape(len(B), 256, 2))
        for i, n in enumerate(B):
            o = []
            for x in res:
                c = np.median(x[i, :, 0]) / (REP * IT); us = np.median(x[i, :, 1]) / 100
                o.append(f"{c:7.1f} cyc/body  {np.median(x[i,:,0])/us/1000:.2f} GHz")
            print(f"{n:28s} 1w/SIMD: {o[0]}")
```
